```python
import torch

def _softmax(x, axis=-1):
    return torch.softmax(x, dim=axis)
def _gelu(x):
    return torch.nn.functional.gelu(x, approximate="tanh")
def _silu(x):
    return torch.nn.functional.silu(x)
def _sigmoid(x):
    return torch.sigmoid(x)
def _layernorm(x, axis=-1, eps=1e-5):
    m = x.mean(dim=axis, keepdim=True)
    v = x.var(dim=axis, keepdim=True, unbiased=False)
    return (x - m) / torch.sqrt(v + eps)
def _scatter_add(tgt, idx, src, axis=0):
    return tgt.clone().index_add_(axis, idx, src)
def _segment_sum(src, seg, n):
    out = torch.zeros((n,) + src.shape[1:], dtype=src.dtype)
    return out.index_add_(0, seg, src)
def _pad(x, pw):
    flat = tuple(v for pair in reversed(pw) for v in pair)
    return torch.nn.functional.pad(x, flat)

kernel_name = 'gated_mix__softmax_full_mha__softmax_full_mha__prompt'

def setup_inputs():

    _w = (lambda a: (lambda t: t.to(torch.bfloat16) if t.is_floating_point() else t)(torch.as_tensor(a)))
    def _A_setup():
        B, S, D = 1, 2048, 448
        return {
            "x": _w((lambda *s: torch.randn(*s, dtype=torch.bfloat16) * 0.05)(B, S, D)),
            "wqkv": _w((lambda *s: torch.randn(*s, dtype=torch.bfloat16) * 0.8)(D, 3 * D)),
            "wo": _w((lambda *s: torch.randn(*s, dtype=torch.bfloat16) * 0.05)(D, D)),
        }
    _A_in = _A_setup()

    def _B_setup():
        B, S, D = 1, 2048, 448
        return {
            "x": _w((lambda *s: torch.randn(*s, dtype=torch.bfloat16) * 0.05)(B, S, D)),
            "wqkv": _w((lambda *s: torch.randn(*s, dtype=torch.bfloat16) * 0.8)(D, 3 * D)),
            "wo": _w((lambda *s: torch.randn(*s, dtype=torch.bfloat16) * 0.05)(D, D)),
        }
    _B_in = _B_setup()

    return {
        "A_x": _A_in["x"],
        "A_wqkv": _A_in["wqkv"],
        "A_wo": _A_in["wo"],
        "B_x": _B_in["x"],
        "B_wqkv": _B_in["wqkv"],
        "B_wo": _B_in["wo"],
        "gate_w": _w((lambda *s: torch.randn(*s, dtype=torch.bfloat16) * 0.05)(448) * 16.0),
    }

def reference(A_x, A_wqkv, A_wo, B_x, B_wqkv, B_wo, gate_w):
    def _A_ref(x, wqkv, wo):
        B, S, D = x.shape
        H = 16; Dh = D // H
        qkv = (lambda x, *d: x.permute(*d))((x @ wqkv).reshape(B, S, 3, H, Dh), 2, 0, 3, 1, 4)
        q, k, v = qkv[0], qkv[1], qkv[2]
        scale = Dh ** -0.5
        scores = torch.einsum("bhqd,bhkd->bhqk", q, k) * scale
        p = _softmax(scores, axis=-1)
        o = torch.einsum("bhqk,bhkd->bhqd", p, v)
        return (lambda x, *d: x.permute(*d))(o, 0, 2, 1, 3).reshape(B, S, D) @ wo

    def _B_ref(x, wqkv, wo):
        B, S, D = x.shape
        H = 16; Dh = D // H
        qkv = (lambda x, *d: x.permute(*d))((x @ wqkv).reshape(B, S, 3, H, Dh), 2, 0, 3, 1, 4)
        q, k, v = qkv[0], qkv[1], qkv[2]
        scale = Dh ** -0.5
        scores = torch.einsum("bhqd,bhkd->bhqk", q, k) * scale
        p = _softmax(scores, axis=-1)
        o = torch.einsum("bhqk,bhkd->bhqd", p, v)
        return (lambda x, *d: x.permute(*d))(o, 0, 2, 1, 3).reshape(B, S, D) @ wo

    x = A_x
    g = _sigmoid((x * gate_w).sum(-1, keepdims=True))
    a = _A_ref(x, A_wqkv, A_wo)
    b = _B_ref(x, B_wqkv, B_wo)
    return g * a + (1 - g) * b
```

```python
import struct, math, sys

NAME = "gated_mix__softmax_full_mha__softmax_full_mha__prompt"

QF_OFF = 0
KVF_OFF = 4 << 20
G_OFF = 12 << 20
OF_OFF = 13 << 20
WS_USED = 17 << 20

def f32bits(x):
    return struct.unpack("<I", struct.pack("<f", x))[0]

LOG2E = math.log2(math.e)
QSCALE = (28 ** -0.5) * LOG2E


class Asm:
    def __init__(self):
        self.lines = []

    def __call__(self, s):
        for ln in s.strip("\n").split("\n"):
            self.lines.append("    " + ln.strip() if not ln.strip().endswith(":") else ln.strip())

    def text(self):
        return "\n".join(self.lines) + "\n"


def vr(a, n):
    return f"v[{a}:{a+n-1}]"


def srd(A, d, base, nbytes):
    A(f"s_mov_b32 s{d}, s{base}")
    A(f"s_mov_b32 s{d+1}, s{base+1}")
    A(f"s_mov_b32 s{d+2}, {nbytes}")
    A(f"s_mov_b32 s{d+3}, 0x00020000")


def mfma(d, a, b, c):
    cs = vr(c, 16) if c is not None else "0"
    return f"v_mfma_f32_32x32x16_bf16 {vr(d,16)}, {vr(a,4)}, {vr(b,4)}, {cs}"


def smfmac(d, a, b, idx):
    return f"v_smfmac_f32_32x32x32_bf16 {vr(d,16)}, {vr(a,4)}, {vr(b,8)}, v{idx}"


def gen_k1():
    A = Asm()
    A("s_cmp_ge_u32 s2, 256")
    A("s_cbranch_scc1 L_k1_end")
    A("s_load_dwordx4 s[4:7], s[0:1], 0")
    A("s_load_dwordx2 s[8:9], s[0:1], 32")
    A("s_load_dwordx2 s[10:11], s[0:1], 48")
    A("s_load_dwordx2 s[28:29], s[0:1], 72")
    A("s_and_b32 s30, s2, 7")
    A("s_lshr_b32 s31, s2, 3")
    A("s_and_b32 s32, s31, 3")
    A("s_lshl_b32 s30, s30, 2")
    A("s_add_u32 s32, s32, s30")
    A("s_lshr_b32 s33, s31, 2")
    A("s_and_b32 s34, s32, 15")
    A("v_lshrrev_b32 v1, 6, v0")
    A("v_and_b32 v2, 63, v0")
    A("v_readfirstlane_b32 s35, v1")
    A("v_and_b32 v3, 31, v2")
    A("v_lshrrev_b32 v4, 5, v2")
    A("v_lshrrev_b32 v5, 2, v3")
    A("v_and_b32 v6, 3, v2")
    A("v_mul_u32_u24 v7, 2688, v5")
    A("v_lshl_add_u32 v7, v6, 4, v7")
    A("v_add_u32 v8, 1792, v7")
    A("v_mul_u32_u24 v9, 896, v4")
    A("v_add_u32 v7, v7, v9")
    A("v_mul_u32_u24 v10, 896, v3")
    A("v_lshl_add_u32 v10, v4, 6, v10")
    A("v_min_u32 v12, 447, v0")
    A("v_mul_u32_u24 v11, 2688, v12")
    A("v_lshrrev_b32 v13, 3, v12")
    A("v_mul_u32_u24 v13, 1536, v13")
    A("v_and_b32 v14, 7, v12")
    A("v_lshl_add_u32 v13, v14, 6, v13")
    A("v_lshlrev_b32 v12, 1, v12")
    A("v_mul_u32_u24 v14, 6144, v4")
    A("v_bfe_u32 v15, v2, 2, 2")
    A("v_lshl_add_u32 v14, v15, 6, v14")
    A("v_bfe_u32 v15, v2, 4, 1")
    A("v_lshl_add_u32 v14, v15, 5, v14")
    A("v_lshl_add_u32 v14, v6, 3, v14")
    A("v_add_u32 v15, 49152, v14")
    A("s_lshl_b32 s36, s33, 3")
    A("s_add_u32 s36, s36, s35")
    A("s_mul_i32 s37, s36, 28672")
    A("s_mul_i32 s38, s34, 56")
    A("s_mul_i32 s39, s35, 21504")
    A("s_add_u32 s39, s39, s38")
    A("s_add_u32 s40, s38, 48")
    A("s_mul_i32 s41, s35, 1536")
    A("s_cmp_ge_u32 s32, 16")
    A("s_waitcnt lgkmcnt(0)")
    A("s_cselect_b32 s6, s8, s6")
    A("s_cselect_b32 s7, s9, s7")
    srd(A, 12, 4, 1835008)
    srd(A, 16, 6, 1204224)
    srd(A, 20, 10, 896)
    srd(A, 24, 28, WS_USED)
    A("buffer_load_dwordx2 v[200:201], v11, s[16:19], s40 offen")
    A("buffer_load_ushort v202, v12, s[20:23], 0 offen")
    XB = 88
    for c in range(7):
        A(f"s_mov_b32 m0, s41")
        A("s_mov_b32 exec_lo, 0x77777777")
        A(f"buffer_load_dwordx4 v7, s[16:19], s39 offen lds")
        A(f"s_add_u32 m0, s41, 1024")
        A("s_mov_b32 exec_lo, -1")
        A("s_mov_b32 exec_hi, 0")
        A(f"buffer_load_dwordx4 v8, s[16:19], s39 offen lds")
        A("s_mov_b32 exec_hi, -1")
        for u in range(4):
            A(f"buffer_load_dwordx4 {vr(XB+16*c+4*u,4)}, v10, s[12:15], s37 offen offset:{c*128+u*16}")
        if c < 6:
            A(f"s_add_u32 s39, s39, 172032")
            A(f"s_add_u32 s41, s41, 12288")
    for r in range(16, 64):
        A(f"v_mov_b32 v{r}, 0")
    A("v_mov_b32 v203, 0")
    A("s_waitcnt vmcnt(42)")
    A("ds_write_b128 v13, v[200:203] offset:48")

    WF = [64, 76]

    def trreads(c, u, st):
        base = "v14" if c < 4 else "v15"
        cc = c if c < 4 else c - 4
        for t in range(3):
            for tp in range(2):
                off = (8 * cc + u) * 1536 + t * 512 + tp * 256
                A(f"ds_read_b64_tr_b16 {vr(WF[st]+4*t+2*tp,2)}, {base} offset:{off}")

    A("s_waitcnt vmcnt(36) lgkmcnt(0)")
    A("s_barrier")
    trreads(0, 0, 0)
    step = 0
    for c in range(7):
        for u in range(4):
            st = step % 2
            last = (c == 6 and u == 3)
            if u < 3:
                trreads(c, u + 1, 1 - st)
                A("s_waitcnt lgkmcnt(6)")
            elif not last:
                A(f"s_waitcnt vmcnt({6*(5-c)})")
                A("s_barrier")
                trreads(c + 1, 0, 1 - st)
                A("s_waitcnt lgkmcnt(6)")
            else:
                A("s_waitcnt lgkmcnt(0)")
            xf = XB + 16 * c + 4 * u
            A(mfma(16, WF[st] + 0, xf, 16))
            A(mfma(32, WF[st] + 4, xf, 32))
            A(mfma(48, xf, WF[st] + 8, 48))
            step += 1
    A("v_lshlrev_b32 v5, 4, v2")
    A("v_and_b32 v6, 0x13, v3")
    A("v_bfe_u32 v7, v3, 2, 1")
    A("v_lshl_or_b32 v6, v7, 3, v6")
    A("v_bfe_u32 v7, v3, 3, 1")
    A("v_lshl_or_b32 v6, v7, 2, v6")
    A("v_lshl_add_u32 v6, v4, 5, v6")
    A("v_lshlrev_b32 v6, 4, v6")
    A("v_lshlrev_b32 v7, 2, v3")
    A("s_lshl_b32 s42, s32, 6")
    A("s_add_u32 s42, s42, s36")
    A("s_lshl_b32 s43, s42, 11")
    A(f"s_add_u32 s43, s43, {QF_OFF}")
    A("s_lshl_b32 s44, s42, 12")
    A(f"s_add_u32 s44, s44, {KVF_OFF}")
    A("s_lshl_b32 s45, s36, 7")
    A(f"s_add_u32 s45, s45, {G_OFF}")
    A(f"s_mov_b32 s46, 0x{f32bits(QSCALE):08x}")
    A(f"s_mov_b32 s47, 0x{f32bits(-LOG2E):08x}")
    A("s_nop 7")
    A("v_mul_f32 v8, s47, v28")
    A("v_exp_f32 v8, v8")
    A("s_nop 0")
    A("v_add_f32 v8, 1.0, v8")
    A("v_rcp_f32 v8, v8")
    A("s_mov_b32 exec_lo, 0")
    for r in (28, 29, 30, 31, 44, 45, 46, 47):
        A(f"v_mov_b32 v{r}, 0")
    A("s_cmp_lg_u32 s32, 0")
    A("s_cbranch_scc1 L_k1_nog")
    A("buffer_store_dword v8, v7, s[24:27], s45 offen")
    A("L_k1_nog:")
    A("s_mov_b32 exec_lo, -1")
    for r in range(16, 32):
        A(f"v_mul_f32 v{r}, s46, v{r}")
    for i in range(8):
        A(f"v_cvt_pk_bf16_f32 v{64+i}, v{16+2*i}, v{17+2*i}")
    for i in range(8):
        A(f"v_cvt_pk_bf16_f32 v{72+i}, v{32+2*i}, v{33+2*i}")
    for i in range(8):
        A(f"v_cvt_pk_bf16_f32 v{80+i}, v{48+2*i}, v{49+2*i}")
    A("s_mov_b32 exec_lo, 0x10000000")
    A("s_mov_b32 exec_hi, 0x10000000")
    for i in range(8):
        A(f"v_mov_b32 v{80+i}, 0x3f803f80")
    A("s_mov_b32 exec_lo, 0xe0000000")
    A("s_mov_b32 exec_hi, 0xe0000000")
    for i in range(8):
        A(f"v_mov_b32 v{80+i}, 0")
    A("s_mov_b64 exec, -1")
    A("buffer_store_dwordx4 v[64:67], v5, s[24:27], s43 offen")
    A("buffer_store_dwordx4 v[68:71], v5, s[24:27], s43 offen offset:1024")
    A("buffer_store_dwordx4 v[72:75], v6, s[24:27], s44 offen")
    A("buffer_store_dwordx4 v[76:79], v6, s[24:27], s44 offen offset:1024")
    A("buffer_store_dwordx4 v[80:83], v5, s[24:27], s44 offen offset:2048")
    A("buffer_store_dwordx4 v[84:87], v5, s[24:27], s44 offen offset:3072")
    A("L_k1_end:")
    A("s_endpgm")
    return A.text(), 208, 56


def gen_k2():
    A = Asm()
    Q0, Q1 = 4, 8
    IDX = 3
    CN = 16
    O = 32
    S = [48, 64, 80, 96]
    KF = [112, 120]
    VF = [128, 136]
    T = 144
    A("s_cmp_ge_u32 s2, 256")
    A("s_cbranch_scc1 L_k2_end")
    A("s_load_dwordx2 s[28:29], s[0:1], 72")
    A("s_and_b32 s30, s2, 7")
    A("s_lshr_b32 s31, s2, 3")
    A("s_and_b32 s32, s31, 3")
    A("s_lshl_b32 s30, s30, 2")
    A("s_add_u32 s32, s32, s30")
    A("s_lshr_b32 s33, s31, 2")
    A("v_lshrrev_b32 v1, 6, v0")
    A("v_and_b32 v2, 63, v0")
    A("v_readfirstlane_b32 s35, v1")
    A("v_lshlrev_b32 v1, 4, v2")
    A("v_and_b32 v12, 31, v2")
    A("v_lshrrev_b32 v13, 5, v2")
    A("v_lshlrev_b32 v14, 2, v12")
    A("s_lshl_b32 s36, s33, 3")
    A("s_add_u32 s36, s36, s35")
    A("s_lshl_b32 s42, s32, 6")
    A("s_add_u32 s42, s42, s36")
    A("s_lshl_b32 s43, s42, 11")
    A("s_lshl_b32 s45, s36, 7")
    A(f"s_add_u32 s45, s45, {G_OFF}")
    A("s_lshl_b32 s37, s32, 18")
    A(f"s_add_u32 s37, s37, {KVF_OFF}")
    A("s_lshl_b32 s38, s35, 11")
    A("s_mov_b32 s39, s38")
    A("s_waitcnt lgkmcnt(0)")
    srd(A, 24, 28, WS_USED)
    A("s_add_u32 s20, s28, s37")
    A("s_addc_u32 s21, s29, 0")
    A("s_mov_b32 s22, 262144")
    A("s_mov_b32 s23, 0x00020000")
    A(f"buffer_load_dwordx4 {vr(Q0,4)}, v1, s[24:27], s43 offen")
    A(f"buffer_load_dwordx4 {vr(Q1,4)}, v1, s[24:27], s43 offen offset:1024")
    A(f"buffer_load_dword v15, v14, s[24:27], s45 offen")

    def dma(slot):
        if slot == 0:
            A("s_mov_b32 m0, s39")
        else:
            A(f"s_add_u32 m0, s39, {slot*16384}")
        A("s_nop 0")
        A("buffer_load_dwordx4 v1, s[20:23], s38 offen lds")
        A("buffer_load_dwordx4 v1, s[20:23], s38 offen offset:1024 lds")
        A("s_add_u32 s38, s38, 16384")

    dma(0)
    dma(1)
    dma(2)
    A(f"v_mov_b32 v{IDX}, 0xdddd")
    for r in range(16):
        A(f"v_mov_b32 v{O+r}, 0")
    for r in range(8, 16):
        A(f"v_mov_b32 v{S[3]+r}, 0")
    for r in range(4, 8):
        A(f"v_mov_b32 v{VF[1]+r}, 0")
    A("s_cmp_ge_u32 s32, 16")
    A("s_cselect_b32 s46, -1.0, 1.0")
    A("s_cselect_b32 s47, 1.0, 0")
    A("s_waitcnt vmcnt(4)")
    A("s_barrier")

    def rk(t, buf):
        off = (t % 16) * 4096
        A(f"ds_read_b128 {vr(KF[buf],4)}, v1 offset:{off}")
        A(f"ds_read_b128 {vr(KF[buf]+4,4)}, v1 offset:{off+1024}")

    def rv(t, buf):
        off = (t % 16) * 4096 + 2048
        A(f"ds_read_b128 {vr(VF[buf],4)}, v1 offset:{off}")
        A(f"ds_read_b128 {vr(VF[buf]+4,4)}, v1 offset:{off+1024}")

    rk(0, 0)
    rk(1, 1)
    A("v_mul_f32 v15, s46, v15")
    A("v_add_f32 v15, s47, v15")
    A("s_waitcnt lgkmcnt(2)")
    A(mfma(S[0], KF[0], Q0, None))
    A(mfma(S[0], KF[0] + 4, Q1, S[0]))
    A("s_nop 15")
    s0 = S[0]
    A(f"v_max3_f32 v{T}, v{s0}, v{s0+1}, v{s0+2}")
    A(f"v_max3_f32 v{T+1}, v{s0+3}, v{s0+4}, v{s0+5}")
    A(f"v_max3_f32 v{T+2}, v{s0+6}, v{s0+7}, v{s0+8}")
    A(f"v_max3_f32 v{T+3}, v{s0+9}, v{s0+10}, v{s0+11}")
    A(f"v_max3_f32 v{T+4}, v{s0+12}, v{s0+13}, v{s0+14}")
    A(f"v_max3_f32 v{T}, v{T}, v{T+1}, v{s0+15}")
    A(f"v_max3_f32 v{T+2}, v{T+2}, v{T+3}, v{T+4}")
    A(f"v_max_f32 v{T}, v{T}, v{T+2}")
    A(f"v_mov_b32 v{T+1}, v{T}")
    A("s_nop 1")
    A(f"v_permlane32_swap_b32 v{T}, v{T+1}")
    A("s_nop 1")
    A(f"v_max_f32 v{T}, v{T}, v{T+1}")
    for r in range(16):
        A(f"v_sub_f32 v{CN+r}, 0, v{T}")
    A("s_waitcnt lgkmcnt(0)")
    A("s_nop 0")
    A(mfma(S[0], KF[0], Q0, CN))
    A(mfma(S[0], KF[0] + 4, Q1, S[0]))
    A(mfma(S[1], KF[1], Q0, CN))
    A(mfma(S[1], KF[1] + 4, Q1, S[1]))
    rk(2, 0)
    rv(0, 0)
    A("s_mov_b32 s40, 4")
    A("s_nop 7")
    A(".p2align 6")
    A("L_k2_loop:")
    for i in range(16):
        sc = S[i % 4]
        sp = S[(i - 1) % 4]
        sn = S[(i + 2) % 4]
        E = lambda r: A(f"v_exp_f32 v{sc+r}, v{sc+r}")
        if i % 4 == 0:
            A("s_waitcnt vmcnt(2) lgkmcnt(0)")
            A("s_barrier")
            dma((i // 4 + 3) % 4)
        else:
            A("s_waitcnt lgkmcnt(0)")
        E(0); E(1)
        A(smfmac(O, VF[(i - 1) % 2] + 4, sp + 8, IDX))
        rk(i + 3, (i + 1) % 2)
        E(2); E(3); E(4); E(5)
        A(mfma(sn, KF[i % 2], Q0, CN))
        rv(i + 1, (i + 1) % 2)
        E(6); E(7); E(8); E(9)
        A(mfma(sn, KF[i % 2] + 4, Q1, sn))
        E(10); E(11); E(12); E(13)
        A(smfmac(O, VF[i % 2], sc, IDX))
        E(14); E(15)
    A("s_sub_u32 s40, s40, 1")
    A("s_cmp_lg_u32 s40, 0")
    A("s_cbranch_scc1 L_k2_loop")
    A("s_nop 1")
    A(smfmac(O, VF[1] + 4, S[3] + 8, IDX))
    A("s_mul_i32 s41, s32, 7")
    A(f"s_mul_i32 s44, s36, 57344")
    A(f"s_add_u32 s44, s44, {OF_OFF}")
    A(f"v_add_u32 v{T+8}, s41, v13")
    A(f"v_lshlrev_b32 v{T+9}, 4, v12")
    for g in range(4):
        a = T + 10 + g
        A(f"v_add_u32 v{T+14}, {2*g}, v{T+8}")
        A(f"v_lshrrev_b32 v{T+15}, 1, v{T+14}")
        A(f"v_lshl_add_u32 v{a}, v{T+15}, 9, v{T+9}")
        A(f"v_and_b32 v{T+14}, 1, v{T+14}")
        A(f"v_lshl_add_u32 v{a}, v{T+14}, 3, v{a}")
    A("s_waitcnt lgkmcnt(0)")
    A("s_nop 7")
    A(f"v_add_f32 v{T}, abs(v{O}), abs(v{O+1})")
    for r in range(2, 16):
        A(f"v_add_f32 v{T}, abs(v{O+r}), v{T}")
    A("s_mov_b32 s48, 0x7e000000")
    A(f"v_cmp_nlt_f32 vcc, v{T}, s48")
    A("s_nop 4")
    A("s_cmp_lg_u64 vcc, 0")
    A("s_cbranch_scc1 L_k2_slow")
    A("L_k2_fin:")
    A(f"v_mov_b32 v{T}, v{O+12}")
    A(f"v_mov_b32 v{T+1}, v{O+12}")
    A("s_nop 1")
    A(f"v_permlane32_swap_b32 v{T}, v{T+1}")
    A("s_nop 1")
    A(f"v_rcp_f32 v{T+1}, v{T+1}")
    A("s_nop 0")
    A(f"v_mul_f32 v{T+1}, v{T+1}, v15")
    for r in range(16):
        A(f"v_mul_f32 v{O+r}, v{O+r}, v{T+1}")
    for i in range(8):
        A(f"v_cvt_pk_bf16_f32 v{S[0]+i}, v{O+2*i}, v{O+2*i+1}")
    for g in range(3):
        A(f"buffer_store_dwordx2 {vr(S[0]+2*g,2)}, v{T+10+g}, s[24:27], s44 offen")
    A("s_mov_b32 exec_hi, 0")
    A(f"buffer_store_dwordx2 {vr(S[0]+6,2)}, v{T+13}, s[24:27], s44 offen")
    A("L_k2_end:")
    A("s_endpgm")
    A("L_k2_slow:")
    M = T + 2
    A("s_waitcnt vmcnt(0) lgkmcnt(0)")
    for r in range(16):
        A(f"v_mov_b32 v{O+r}, 0")
    A(f"v_mov_b32 v{M}, 0xff7fffff")
    A("s_mov_b32 s49, 0")
    A("L_k2_slow_loop:")
    A(f"buffer_load_dwordx4 {vr(KF[0],4)}, v1, s[20:23], s49 offen")
    A(f"buffer_load_dwordx4 {vr(KF[0]+4,4)}, v1, s[20:23], s49 offen offset:1024")
    A(f"buffer_load_dwordx4 {vr(VF[0],4)}, v1, s[20:23], s49 offen offset:2048")
    A(f"buffer_load_dwordx4 {vr(VF[0]+4,4)}, v1, s[20:23], s49 offen offset:3072")
    A("s_waitcnt vmcnt(0)")
    A(mfma(S[0], KF[0], Q0, None))
    A(mfma(S[0], KF[0] + 4, Q1, S[0]))
    A("s_nop 15")
    A("s_nop 3")
    A(f"v_max3_f32 v{T}, v{s0}, v{s0+1}, v{s0+2}")
    for r in range(3, 15, 2):
        A(f"v_max3_f32 v{T}, v{T}, v{s0+r}, v{s0+r+1}")
    A(f"v_max_f32 v{T}, v{T}, v{s0+15}")
    A(f"v_mov_b32 v{T+1}, v{T}")
    A("s_nop 1")
    A(f"v_permlane32_swap_b32 v{T}, v{T+1}")
    A("s_nop 1")
    A(f"v_max3_f32 v{T}, v{T}, v{T+1}, v{M}")
    A(f"v_sub_f32 v{T+1}, v{M}, v{T}")
    A(f"v_exp_f32 v{T+1}, v{T+1}")
    A(f"v_mov_b32 v{M}, v{T}")
    for r in range(16):
        A(f"v_sub_f32 v{s0+r}, v{s0+r}, v{T}")
    for r in range(16):
        A(f"v_exp_f32 v{s0+r}, v{s0+r}")
    for r in range(16):
        A(f"v_mul_f32 v{O+r}, v{O+r}, v{T+1}")
    A("s_nop 3")
    A(smfmac(O, VF[0], s0, IDX))
    A(smfmac(O, VF[0] + 4, s0 + 8, IDX))
    A("s_nop 15")
    A("s_nop 3")
    A("s_add_u32 s49, s49, 4096")
    A("s_cmp_lt_u32 s49, 262144")
    A("s_cbranch_scc1 L_k2_slow_loop")
    A("s_branch L_k2_fin")
    return A.text(), 160, 56


def gen_k3():
    A = Asm()
    ACC = [16, 32, 48, 64]
    WF = [80, 88]
    AB = 96
    A("s_cmp_ge_u32 s2, 224")
    A("s_cbranch_scc1 L_k3_end")
    A("s_load_dwordx2 s[4:5], s[0:1], 16")
    A("s_load_dwordx2 s[6:7], s[0:1], 40")
    A("s_load_dwordx2 s[8:9], s[0:1], 56")
    A("s_load_dwordx2 s[28:29], s[0:1], 72")
    A("s_and_b32 s30, s2, 7")
    A("s_lshr_b32 s31, s2, 3")
    A("s_and_b32 s32, s31, 3")
    A("s_lshl_b32 s30, s30, 2")
    A("s_add_u32 s32, s32, s30")
    A("s_lshr_b32 s33, s31, 2")
    A("v_lshrrev_b32 v1, 6, v0")
    A("v_and_b32 v2, 63, v0")
    A("v_readfirstlane_b32 s35, v1")
    A("v_lshlrev_b32 v1, 4, v2")
    A("v_lshrrev_b32 v3, 2, v2")
    A("v_and_b32 v4, 3, v2")
    A("v_mul_u32_u24 v5, 896, v3")
    A("v_lshl_add_u32 v5, v4, 4, v5")
    A("v_add_u32 v6, 64, v5")
    A("v_lshrrev_b32 v7, 5, v2")
    A("v_and_b32 v8, 31, v2")
    A("s_mul_i32 s41, s35, 28672")
    A("v_lshlrev_b32 v9, 9, v7")
    A("v_bfe_u32 v10, v2, 2, 2")
    A("v_lshl_add_u32 v9, v10, 6, v9")
    A("v_bfe_u32 v10, v2, 4, 1")
    A("v_lshl_add_u32 v9, v10, 5, v9")
    A("v_lshl_add_u32 v9, v4, 3, v9")
    A("v_add_u32 v9, s41, v9")
    A("s_and_b32 s36, s35, 1")
    A("s_mul_i32 s36, s36, 200704")
    A("s_lshl_b32 s37, s33, 7")
    A("s_add_u32 s36, s36, s37")
    A("s_mul_i32 s38, s32, 114688")
    A("s_mul_i32 s39, s35, 14336")
    A("s_add_u32 s38, s38, s39")
    A(f"s_add_u32 s38, s38, {OF_OFF}")
    A("s_add_u32 s39, s38, 57344")
    A("s_cmp_ge_u32 s35, 2")
    A("s_waitcnt lgkmcnt(0)")
    A("s_cselect_b32 s4, s6, s4")
    A("s_cselect_b32 s5, s7, s5")
    srd(A, 12, 4, 401408)
    srd(A, 16, 8, 1835008)
    srd(A, 24, 28, WS_USED)
    A("s_mov_b32 s42, s41")
    for ks in range(14):
        A("s_mov_b32 m0, s42")
        A("s_add_u32 s42, s42, 1024")
        A("buffer_load_dwordx4 v5, s[12:15], s36 offen lds")
        A("s_mov_b32 m0, s42")
        A("s_add_u32 s42, s42, 1024")
        A("buffer_load_dwordx4 v6, s[12:15], s36 offen lds")
        A(f"buffer_load_dwordx4 {vr(AB+8*ks,4)}, v1, s[24:27], s38 offen offset:{(ks%4)*1024}")
        A(f"buffer_load_dwordx4 {vr(AB+8*ks+4,4)}, v1, s[24:27], s39 offen offset:{(ks%4)*1024}")
        A("s_add_u32 s36, s36, 14336")
        if ks % 4 == 3:
            A("s_add_u32 s38, s38, 4096")
            A("s_add_u32 s39, s39, 4096")
    for r in range(16, 80):
        A(f"v_mov_b32 v{r}, 0")

    def trreads(ks, st):
        for ct in range(2):
            for tp in range(2):
                A(f"ds_read_b64_tr_b16 {vr(WF[st]+4*ct+2*tp,2)}, v9 offset:{(ks*2+ct)*1024+tp*256}")

    A(f"s_waitcnt vmcnt({4*13})")
    trreads(0, 0)
    for ks in range(14):
        st = ks % 2
        if ks < 13:
            A(f"s_waitcnt vmcnt({4*(12-ks)})")
            trreads(ks + 1, 1 - st)
            A("s_waitcnt lgkmcnt(4)")
        else:
            A("s_waitcnt lgkmcnt(0)")
        for ti in range(2):
            for ct in range(2):
                A(mfma(ACC[ti * 2 + ct], WF[st] + 4 * ct, AB + 8 * ks + 4 * ti, ACC[ti * 2 + ct]))
    A("v_add_u32 v10, s41, v1")
    A("s_lshl_b32 s43, s35, 12")
    A("v_add_u32 v11, s43, v1")
    A("v_mul_u32_u24 v12, 896, v8")
    A("v_lshl_add_u32 v12, v7, 4, v12")
    A("s_lshr_b32 s44, s35, 1")
    A("s_and_b32 s45, s35, 1")
    A("s_lshl_b32 s46, s32, 1")
    A("s_add_u32 s46, s46, s44")
    A("s_mul_i32 s46, s46, 28672")
    A("s_lshl_b32 s47, s33, 7")
    A("s_add_u32 s46, s46, s47")
    A("s_lshl_b32 s45, s45, 6")
    A("s_add_u32 s46, s46, s45")
    A("s_nop 7")
    for tile in range(4):
        for r4 in range(4):
            A(f"ds_write_b128 v10, {vr(ACC[tile]+4*r4,4)} offset:{tile*4096+r4*1024}")
    A("s_waitcnt lgkmcnt(0)")
    A("s_barrier")
    for w in range(4):
        for r4 in range(4):
            off = w * 28672 + r4 * 1024
            if off < 65536:
                A(f"ds_read_b128 {vr(AB+16*w+4*r4,4)}, v11 offset:{off}")
            else:
                if r4 == 0:
                    A("v_add_u32 v13, 65536, v11")
                A(f"ds_read_b128 {vr(AB+16*w+4*r4,4)}, v13 offset:{off-65536}")
    A("s_waitcnt lgkmcnt(8)")
    for r in range(16):
        A(f"v_add_f32 v{AB+r}, v{AB+r}, v{AB+16+r}")
    A("s_waitcnt lgkmcnt(0)")
    for r in range(16):
        A(f"v_add_f32 v{AB+32+r}, v{AB+32+r}, v{AB+48+r}")
    for r in range(16):
        A(f"v_add_f32 v{AB+r}, v{AB+r}, v{AB+32+r}")
    for i in range(8):
        A(f"v_cvt_pk_bf16_f32 v{16+i}, v{AB+2*i}, v{AB+2*i+1}")
    A("s_nop 1")
    A("v_permlane32_swap_b32 v16, v18")
    A("v_permlane32_swap_b32 v17, v19")
    A("v_permlane32_swap_b32 v20, v22")
    A("v_permlane32_swap_b32 v21, v23")
    A("s_nop 1")
    A("buffer_store_dwordx4 v[16:19], v12, s[16:19], s46 offen")
    A("buffer_store_dwordx4 v[20:23], v12, s[16:19], s46 offen offset:32")
    A("L_k3_end:")
    A("s_endpgm")
    return A.text(), 208, 56


HEADER = """; Kernarg layout for this problem (80 bytes, ptrs only, base s[0:1]):
"""


def main(outpath):
    ks = [("gm_qkv_kernel", gen_k1(), 256, 512, 86016),
          ("gm_attn_kernel", gen_k2(), 256, 512, 65536),
          ("gm_oproj_kernel", gen_k3(), 224, 256, 114688)]
    out = HEADER
    for name, _, grid, block, lds in ks:
        out += f"; @launch kernel={name} grid=({grid},1,1) block=({block},1,1) lds={lds}\n"
    out += '.amdgcn_target "amdgcn-amd-amdhsa--gfx950"\n.text\n'
    for name, (body, nv, ns), *_ in ks:
        out += f".globl {name}\n.p2align 8\n.type {name},@function\n{name}:\n{body}"
    out += '.section .rodata,"a"\n'
    for name, (body, nv, ns), *_ in ks:
        out += f""".p2align 6
.amdhsa_kernel {name}
  .amdhsa_next_free_vgpr {nv}
  .amdhsa_next_free_sgpr {ns}
  .amdhsa_accum_offset {(nv+3)//4*4}
  .amdhsa_group_segment_fixed_size 0
  .amdhsa_kernarg_size 80
  .amdhsa_user_sgpr_count 2
  .amdhsa_user_sgpr_kernarg_segment_ptr 1
  .amdhsa_system_sgpr_workgroup_id_x 1
.end_amdhsa_kernel
"""
    open(outpath, "w").write(out)


if __name__ == "__main__":
    main(sys.argv[1] if len(sys.argv) > 1 else f"cdna_kernels/{NAME}.s")
```

```python
import struct, math, sys, os

NAME = "gated_mix__softmax_full_mha__softmax_full_mha__prompt"

KVF_OFF = 0
OF_OFF = 8 << 20
WI_OFF = 13 << 20
FL_OFF = 12 << 20
WS_USED = 24 << 20
STAMP_OFF = 20 << 20
STAMP = bool(os.environ.get("STAMP"))
OPT = dict(kv.split("=") for kv in os.environ.get("OPT", "").split(",") if kv)


def opt(name, default):
    return type(default)(OPT.get(name, default))


def f32bits(x):
    return struct.unpack("<I", struct.pack("<f", x))[0]


LOG2E = math.log2(math.e)
QSCALE = (28 ** -0.5) * LOG2E


class Asm:
    def __init__(self):
        self.lines = []
        self.nst = 0

    def __call__(self, s):
        for ln in s.strip("\n").split("\n"):
            self.lines.append("    " + ln.strip() if not ln.strip().endswith(":") else ln.strip())

    def text(self):
        return "\n".join(self.lines) + "\n"

    def stamp(self):
        if not STAMP:
            return
        k = self.nst
        self.nst += 1
        assert k < 14
        if k == 0:
            self("s_memrealtime s[96:97]")
        self(f"s_memtime s[{68+2*k}:{69+2*k}]")
        self("s_waitcnt lgkmcnt(0)")

    def stamp_flush(self, kidx, wave_sgpr, nwaves, srd="s[24:27]"):
        if not STAMP:
            return
        self("s_waitcnt vmcnt(0)")
        self("s_memtime s[98:99]")
        self("s_memrealtime s[100:101]")
        self("s_waitcnt lgkmcnt(0)")
        self("s_mov_b64 exec, 1")
        self(f"s_mul_i32 s67, s2, {nwaves}")
        self(f"s_add_u32 s67, s67, s{wave_sgpr}")
        self("s_lshl_b32 s67, s67, 7")
        self(f"s_add_u32 s67, s67, {STAMP_OFF + kidx*(1<<20)}")
        self("v_mov_b32 v0, 0")
        regs = [96, 100, 98] + [68 + 2 * k for k in range(self.nst)]
        for i, r in enumerate(regs):
            self(f"v_mov_b32 v1, s{r}")
            self(f"buffer_store_dword v1, v0, {srd}, s67 offen offset:{4*i}")
            self("s_nop 1")


def vr(a, n):
    return f"v[{a}:{a+n-1}]"


def srd(A, d, base, nbytes):
    A(f"s_mov_b32 s{d}, s{base}")
    A(f"s_mov_b32 s{d+1}, s{base+1}")
    A(f"s_mov_b32 s{d+2}, {nbytes}")
    A(f"s_mov_b32 s{d+3}, 0x00020000")


def mfma(d, a, b, c):
    cs = vr(c, 16) if c is not None else "0"
    return f"v_mfma_f32_32x32x16_bf16 {vr(d,16)}, {vr(a,4)}, {vr(b,4)}, {cs}"


def smfmac(d, a, b, idx):
    return f"v_smfmac_f32_32x32x32_bf16 {vr(d,16)}, {vr(a,4)}, {vr(b,8)}, v{idx}"


S_BH, S_TB, S_H, S_W, S_TT, S_ROT = 32, 33, 34, 35, 36, 37
S_WOFF, S_XOFF, S_T0, S_T1, S_T2 = 38, 39, 40, 41, 42
S_KH, S_QP, S_JB, S_FLAGS, S_GS, S_GO = 43, 44, 45, 46, 47, 48
S_LW, S_T3, S_T4 = 49, 50, 51
S_NEXT = 60
S_SPIN = 61
S_REM = 62
S_FL = 3
S_POLL = 65
S_A = 66

WIMG = 65536
CNT_ADDR = 159744
MX_ADDR = CNT_ADDR + 1024
REGOK_OFF = 68
FO_OFF = (12 << 20) + 65536
S_CB, S_QC, S_KQ = 8, 9, 10
FLAGW = CNT_ADDR + 64
WRDY = CNT_ADDR + 68
SNAPL = CNT_ADDR + 128
SLOT_OF_BLOCK = [0, 2, 3, 1, 0, 2, 3, 1]
VSNAP = 224


def gen_ka():
    A = Asm()
    A("s_cmp_ge_u32 s2, 256")
    A("s_cbranch_scc1 L_ka_end")
    A.stamp()
    A("s_load_dwordx4 s[4:7], s[0:1], 0")
    A("s_load_dwordx2 s[8:9], s[0:1], 32")
    A("s_load_dwordx2 s[10:11], s[0:1], 48")
    A("s_load_dwordx4 s[28:31], s[0:1], 64")
    A("v_lshrrev_b32 v1, 6, v0")
    A("v_and_b32 v2, 63, v0")
    A(f"v_readfirstlane_b32 s{S_W}, v1")
    A(f"s_and_b32 s{S_T0}, s2, 7")
    A(f"s_lshr_b32 s{S_T1}, s2, 3")
    A(f"s_and_b32 s{S_A}, s{S_T1}, 3")
    A(f"s_lshl_b32 s{S_BH}, s{S_T0}, 2")
    A(f"s_add_u32 s{S_BH}, s{S_BH}, s{S_A}")
    A(f"s_lshr_b32 s{S_TB}, s{S_T1}, 2")
    A(f"s_and_b32 s{S_H}, s{S_BH}, 15")
    rm = opt("rot", 3)
    if rm == 3:
        A(f"s_add_u32 s{S_ROT}, s{S_TB}, s{S_T0}")
        A(f"s_cmp_ge_u32 s{S_ROT}, 7")
        A(f"s_cselect_b32 s{S_T1}, 7, 0")
        A(f"s_sub_u32 s{S_ROT}, s{S_ROT}, s{S_T1}")
    elif rm == 0:
        A(f"s_lshl_b32 s{S_ROT}, s{S_A}, 1")
        A(f"s_add_u32 s{S_ROT}, s{S_ROT}, s{S_T0}")
    elif rm == 1:
        A(f"s_mov_b32 s{S_ROT}, s{S_T0}")
    elif rm == 2:
        A(f"s_and_b32 s{S_ROT}, s{S_A}, 1")
        A(f"s_mul_i32 s{S_ROT}, s{S_ROT}, 3")
        A(f"s_add_u32 s{S_ROT}, s{S_ROT}, s{S_T0}")
    A(f"s_cmp_ge_u32 s{S_ROT}, 7")
    A(f"s_cselect_b32 s{S_T1}, 7, 0")
    A(f"s_sub_u32 s{S_ROT}, s{S_ROT}, s{S_T1}")
    A("v_lshlrev_b32 v1, 4, v2")
    A("v_and_b32 v3, 31, v2")
    A("v_lshrrev_b32 v4, 5, v2")
    A("v_lshrrev_b32 v5, 2, v3")
    A("v_and_b32 v6, 3, v2")
    A("v_mul_u32_u24 v7, 2688, v5")
    A("v_lshl_add_u32 v7, v6, 4, v7")
    A("v_mov_b32 v8, v7")
    A("v_mul_u32_u24 v9, 896, v4")
    A("v_add3_u32 v7, v7, v9, v9" if False else "v_add_u32 v7, v7, v9")
    A("v_add_u32 v7, 896, v7")
    A("v_lshrrev_b32 v5, 3, v2")
    A("v_mul_u32_u24 v9, 896, v5")
    A("v_and_b32 v5, 7, v2")
    A("v_lshrrev_b32 v11, 4, v2")
    A("v_xor_b32 v5, v5, v11")
    A("v_xor_b32 v11, 4, v5")
    A("v_lshl_add_u32 v10, v11, 4, v9")
    A("v_lshl_add_u32 v9, v5, 4, v9")
    A("v_lshlrev_b32 v225, 2, v3")
    A(f"s_lshl_b32 s{S_LW}, s{S_W}, 12")
    A(f"s_lshl_b32 s{S_TT}, s{S_TB}, 3")
    A(f"s_add_u32 s{S_TT}, s{S_TT}, s{S_W}")
    A(f"s_mul_i32 s{S_XOFF}, s{S_TT}, 28672")
    A(f"s_add_u32 s{S_T4}, s{S_XOFF}, 896")
    A(f"s_lshl_b32 s{S_T1}, s{S_ROT}, 7")
    A(f"s_add_u32 s{S_XOFF}, s{S_XOFF}, s{S_T1}")
    A(f"s_lshl_b32 s{S_FL}, s{S_BH}, 7")
    A(f"s_add_u32 s{S_FL}, s{S_FL}, {FL_OFF}")
    A(f"s_mov_b32 s{S_POLL}, 0")
    A(f"s_mul_i32 s{S_T0}, s{S_H}, 56")
    A(f"s_mul_i32 s{S_WOFF}, s{S_W}, 21504")
    A(f"s_add_u32 s{S_WOFF}, s{S_WOFF}, s{S_T0}")
    A(f"s_add_u32 s{S_T3}, s{S_WOFF}, {7*172032}")
    A(f"s_mul_i32 s{S_T1}, s{S_ROT}, 172032")
    A(f"s_add_u32 s{S_WOFF}, s{S_WOFF}, s{S_T1}")
    A(f"s_mul_i32 s{S_T2}, s{S_W}, 1536")
    A(f"s_add_u32 s{S_T2}, s{S_T2}, {WIMG}")
    A(f"s_cmp_ge_u32 s{S_BH}, 16")
    A("s_waitcnt lgkmcnt(0)")
    A("s_cselect_b32 s6, s8, s6")
    A("s_cselect_b32 s7, s9, s7")
    A.stamp()
    srd(A, 12, 4, 1835008)
    srd(A, 16, 6, 1204224)
    srd(A, 24, 30, WS_USED)

    XB = 88
    AK, AV, AQ = 16, 32, 48
    WF = [64, 76]

    def dma_x(c):
        for i in range(4):
            A(f"s_add_u32 m0, s{S_LW}, {(c%2)*32768 + i*1024}")
            if i == 0:
                A("s_nop 0")
                A(f"buffer_load_dwordx4 v9, s[12:15], s{S_XOFF} offen lds")
            else:
                A(f"s_add_u32 s{S_T1}, s{S_XOFF}, {i*7168}")
                A(f"buffer_load_dwordx4 v{9 + (i&1)}, s[12:15], s{S_T1} offen lds")
        A(f"s_add_u32 s{S_XOFF}, s{S_XOFF}, 128")
        A(f"s_cmp_ge_u32 s{S_XOFF}, s{S_T4}")
        A(f"s_cselect_b32 s{S_T1}, 896, 0")
        A(f"s_sub_u32 s{S_XOFF}, s{S_XOFF}, s{S_T1}")

    def read_x(c):
        for u in range(4):
            A(f"ds_read_b128 {vr(XB+16*c+4*u,4)}, v{200+u} offset:{(c%2)*32768}")

    def hx(c, vm):
        A(f"s_waitcnt vmcnt({vm})")
        read_x(c)
        if c + 2 < 7:
            A("s_waitcnt lgkmcnt(0)")
            dma_x(c + 2)

    def late_setup():
        srd(A, 56, 28, 256)
        A(f"s_lshl_b32 s{S_T1}, s{S_BH}, 18")
        A(f"s_add_u32 s20, s30, s{S_T1}")
        A("s_addc_u32 s21, s31, 0")
        A("s_mov_b32 s22, 262144")
        A("s_mov_b32 s23, 0x00020000")
        A(f"s_lshl_b32 s63, s{S_BH}, 3")
        A("v_bfe_u32 v5, v3, 1, 3")
        A("v_lshlrev_b32 v11, 2, v4")
        A("v_xor_b32 v5, v5, v11")
        A("v_lshlrev_b32 v11, 7, v3")
        A(f"v_add_u32 v11, s{S_LW}, v11")
        for u in range(4):
            A(f"v_xor_b32 v12, {u}, v5")
            A(f"v_lshl_add_u32 v{200+u}, v12, 4, v11")
        A("v_mul_u32_u24 v14, 6144, v4")
        A("v_bfe_u32 v15, v2, 2, 2")
        A("v_lshl_add_u32 v14, v15, 6, v14")
        A("v_bfe_u32 v15, v2, 4, 1")
        A("v_lshl_add_u32 v14, v15, 5, v14")
        A("v_lshl_add_u32 v14, v6, 3, v14")
        A(f"v_add_u32 v14, {WIMG}, v14")
        A("v_add_u32 v15, 49152, v14")
        A(f"s_lshr_b32 s{S_KH}, s{S_W}, 2")
        A(f"s_and_b32 s{S_QP}, s{S_W}, 3")
        A(f"s_cmp_ge_u32 s{S_BH}, 16")
        A(f"s_cselect_b32 s{S_GS}, -1.0, 1.0")
        A(f"s_cselect_b32 s{S_GO}, 1.0, 0")
        for r in range(16, 64):
            A(f"v_mov_b32 v{r}, 0")
        A("v_mov_b32 v207, 0")
        A(f"v_mov_b32 v5, {CNT_ADDR}")
        A("ds_write_b32 v5, v207")
        A("ds_write_b32 v5, v207 offset:64")
        srd(A, 52, 10, 896)
        A("v_lshrrev_b32 v12, 3, v2")
        A("v_min_u32 v12, 6, v12")
        A("v_and_b32 v204, 7, v2")
        A("v_mul_u32_u24 v13, 12288, v12")
        A("v_lshl_add_u32 v13, v204, 6, v13")
        A(f"s_add_u32 s{S_T1}, s{S_T2}, 56")
        A(f"v_add_u32 v13, s{S_T1}, v13")
        A(f"v_add_u32 v12, s{S_ROT}, v12")
        A("v_subrev_u32 v11, 7, v12")
        A("v_min_u32 v12, v12, v11")
        A("v_lshl_add_u32 v12, v12, 6, v204")
        A(f"s_lshl_b32 s{S_T1}, s{S_W}, 3")
        A(f"v_add_u32 v12, s{S_T1}, v12")
        A("v_lshlrev_b32 v12, 1, v12")
        A("buffer_load_ushort v206, v12, s[52:55], 0 offen")
        A("ds_write_b32 v5, v207 offset:68")
        A(f"s_min_u32 s{S_CB}, s{S_TB}, 6")
        A(f"s_lshl_b32 s{S_QC}, s{S_BH}, 1")
        A(f"s_and_b32 s{S_T1}, s{S_W}, 1")
        A(f"s_add_u32 s{S_QC}, s{S_QC}, s{S_T1}")
        A(f"s_lshr_b32 s{S_KQ}, s{S_W}, 1")
        A(f"s_lshl_b32 s{S_T1}, s{S_BH}, 8")
        A(f"v_lshl_add_u32 v239, v2, 2, s{S_T1}")
        A("ds_write_b64 v5, v[16:17] offset:80")
        A(f"s_lshl_b32 s{S_T1}, s{S_TB}, 3")
        A(f"s_lshl_b32 s11, s{S_QP}, 1")
        A(f"s_add_u32 s{S_T1}, s{S_T1}, s11")
        A(f"s_add_u32 s{S_T1}, s{S_T1}, s{S_KH}")
        A(f"s_lshl_b32 s64, s{S_T1}, 16")
        A(f"s_lshl_b32 s11, s{S_BH}, 11")
        A(f"s_add_u32 s64, s64, s11")
        A(f"s_add_u32 s64, s64, {OF_OFF}")
        A(f"s_lshl_b32 s{S_T1}, s{S_T1}, 7")
        A(f"s_lshl_b32 s11, s{S_BH}, 2")
        A(f"s_add_u32 s{S_T1}, s{S_T1}, s11")
        A(f"v_mov_b32 v234, s{S_T1}")
        A(f"s_mov_b32 s11, {FO_OFF}")
        A(f"s_cmp_lg_u32 s{S_W}, s{S_POLL}")
        A("s_cbranch_scc1 L_ka_nosnap3")
        A("buffer_load_dword v240, v239, s[24:27], s11 offen sc1")
        A("L_ka_nosnap3:")
        A("s_mov_b64 exec, 1")
        A("buffer_load_dword v233, v234, s[24:27], s11 offen sc1")
        A("s_mov_b64 exec, -1")

    def trreads(c, u, st, slices):
        base = "v14" if c < 4 else "v15"
        cc = c if c < 4 else c - 4
        n = 0
        for t in slices:
            for tp in range(2):
                off = (8 * cc + u) * 1536 + t * 512 + tp * 256
                A(f"ds_read_b64_tr_b16 {vr(WF[st]+4*t+2*tp,2)}, {base} offset:{off}")
                n += 1
        return n

    def mm(c, u, st, slices):
        xf = XB + 16 * c + 4 * u
        for t in slices:
            if t == 0:
                A(mfma(AQ, WF[st] + 0, xf, AQ))
            elif t == 1:
                A(mfma(AK, WF[st] + 4, xf, AK))
            else:
                A(mfma(AV, xf, WF[st] + 8, AV))

    def chunks_mfma(cs, slices=(1, 2)):
        steps = [(c, u) for c in cs for u in range(4)]
        trreads(*steps[0], 0, slices)
        for i, (c, u) in enumerate(steps):
            if i + 1 < len(steps):
                n = trreads(*steps[i + 1], (i + 1) % 2, slices)
                A(f"s_waitcnt lgkmcnt({n})")
            else:
                A("s_waitcnt lgkmcnt(0)")
            mm(c, u, i % 2, slices)

    def adv_w():
        A(f"s_add_u32 s{S_WOFF}, s{S_WOFF}, 172032")
        A(f"s_cmp_ge_u32 s{S_WOFF}, s{S_T3}")
        A(f"s_cselect_b32 s{S_T1}, {7*172032}, 0")
        A(f"s_sub_u32 s{S_WOFF}, s{S_WOFF}, s{S_T1}")

    q = []

    def dma_wkv(c):
        A(f"s_add_u32 m0, s{S_T2}, {c*12288 + 512}")
        A("s_nop 0")
        A(f"buffer_load_dwordx4 v7, s[16:19], s{S_WOFF} offen lds")
        adv_w()
        q.append(("W", c))

    def dma_wq(c):
        A(f"s_add_u32 m0, s{S_T2}, {c*12288}")
        A("s_mov_b32 exec_hi, 0")
        A(f"buffer_load_dwordx4 v8, s[16:19], s{S_WOFF} offen lds")
        A("s_mov_b32 exec_hi, -1")
        adv_w()
        q.append(("Q", c))

    def dma_xq(c):
        dma_x(c)
        q.extend([("X", c)] * 4)

    def younger(*tags):
        last = max(i for i, t in enumerate(q) if t in tags)
        return len(q) - 1 - last

    A(f"s_cmp_lg_u32 s{S_W}, s{S_POLL}")
    A("s_cbranch_scc1 L_ka_nosnap")
    A(f"buffer_load_dword v{VSNAP}, v225, s[24:27], s{S_FL} offen sc1")
    A("L_ka_nosnap:")
    WLA = opt("wla", 3)
    dma_wkv(0)
    dma_xq(0)
    dma_wkv(1)
    dma_xq(1)
    for c in range(2, WLA):
        dma_wkv(c)
    late_setup()
    q.append(("G", 0))
    q.append(("G", 1))
    A.stamp()
    QAT = opt("qat", 5)
    nq = 0
    for c in range(7):
        A(f"s_waitcnt vmcnt({younger(('X', c), ('W', c))})")
        read_x(c)
        if c == 0:
            A(f"s_cmp_lg_u32 s{S_W}, s{S_POLL}")
            A("s_cbranch_scc1 L_ka_nosnap2")
            A(f"v_add_u32 v11, {SNAPL}, v225")
            A(f"ds_write_b32 v11, v{VSNAP}")
            A("L_ka_nosnap2:")
        A("s_waitcnt lgkmcnt(0)")
        if c + WLA < 7:
            dma_wkv(c + WLA)
        if c + 2 < 7:
            dma_xq(c + 2)
        if c >= QAT and c + WLA >= 6:
            todo = (7 - nq + (6 - c)) // (7 - c)
            for _ in range(todo):
                dma_wq(nq)
                nq += 1
        if c in (0,):
            A.stamp()
        A("s_barrier")
        chunks_mfma([c])
    assert nq == 7
    A.stamp()
    qsteps = [(c, u) for c in range(7) for u in range(4)]
    A("v_and_b32 v6, 0x13, v3")
    A("v_bfe_u32 v7, v3, 2, 1")
    A("v_lshl_or_b32 v6, v7, 3, v6")
    A("v_bfe_u32 v7, v3, 3, 1")
    A("v_lshl_or_b32 v6, v7, 2, v6")
    A("v_lshl_add_u32 v6, v4, 5, v6")
    A("v_lshlrev_b32 v6, 4, v6")
    A(f"v_add_u32 v7, s{S_LW}, v6")
    A(f"v_add_u32 v8, s{S_LW}, v1")
    A(f"s_lshl_b32 s{S_T0}, s{S_TT}, 12")
    A("s_nop 5")
    A("s_mov_b32 exec_lo, 0")
    A(f"v_mov_b32 v{AK+12}, 1.0")
    for r in range(13, 16):
        A(f"v_mov_b32 v{AK+r}, 0")
    A("s_mov_b32 exec_lo, -1")
    PK, PV = 208, 216
    for i in range(8):
        A(f"v_cvt_pk_bf16_f32 v{PK+i}, v{AK+2*i}, v{AK+2*i+1}")
    A(f"buffer_store_dwordx4 {vr(PK,4)}, v6, s[20:23], s{S_T0} offen sc1")
    A(f"buffer_store_dwordx4 {vr(PK+4,4)}, v6, s[20:23], s{S_T0} offen offset:1024 sc1")
    for i in range(8):
        A(f"v_cvt_pk_bf16_f32 v{PV+i}, v{AV+2*i}, v{AV+2*i+1}")
    A("s_mov_b32 exec_lo, 0x10000000")
    A("s_mov_b32 exec_hi, 0x10000000")
    for i in range(8):
        A(f"v_mov_b32 v{PV+i}, 0x3f803f80")
    A("s_mov_b32 exec_lo, 0xe0000000")
    A("s_mov_b32 exec_hi, 0xe0000000")
    for i in range(8):
        A(f"v_mov_b32 v{PV+i}, 0")
    A("s_mov_b64 exec, -1")
    A(f"buffer_store_dwordx4 {vr(PV,4)}, v1, s[20:23], s{S_T0} offen offset:2048 sc1")
    A(f"buffer_store_dwordx4 {vr(PV+4,4)}, v1, s[20:23], s{S_T0} offen offset:3072 sc1")
    A(f"ds_write_b128 v7, {vr(PK,4)}")
    A(f"ds_write_b128 v7, {vr(PK+4,4)} offset:1024")
    A(f"ds_write_b128 v8, {vr(PV,4)} offset:2048")
    A(f"ds_write_b128 v8, {vr(PV+4,4)} offset:3072")
    A("s_waitcnt vmcnt(4)")
    A("s_mov_b32 exec_hi, 0x00ffffff")
    A("ds_write_b16 v13, v206")
    A("s_mov_b32 exec_hi, -1")
    A("s_waitcnt lgkmcnt(0)")
    A("s_barrier")
    A.stamp()
    trreads(0, 0, 0, [0])

    def publish():
        A("s_waitcnt vmcnt(0)")
        A("v_mov_b32 v9, 1")
        A(f"s_lshl_b32 s{S_T2}, s{S_TB}, 2")
        A(f"v_mov_b32 v11, s{S_T2}")
        A("s_mov_b64 exec, 1")
        A("ds_add_rtn_u32 v10, v5, v9")
        A(f"v_add_u32 v12, {SNAPL}, v11")
        A("ds_read_b32 v9, v12")
        A("s_waitcnt lgkmcnt(0)")
        A(f"v_readfirstlane_b32 s{S_T1}, v10")
        A("v_add_u32 v9, 1, v9")
        A("s_nop 0")
        A(f"s_cmp_lg_u32 s{S_T1}, 7")
        A("s_cbranch_scc1 L_ka_nopub")
        A(f"buffer_store_dword v9, v11, s[24:27], s{S_FL} offen sc1")
        A("L_ka_nopub:")
        A("s_mov_b64 exec, -1")

    IDX = 5
    QF = [64, 72]
    O = [16, 32]
    S = [112, 128, 144, 160]
    KF = [176, 184]
    VF = [192, 200, 208, 216]
    T = 48
    VB = 6
    GB = [12, 13]
    MREF = [14, 15]
    PUB_AT = opt("pubat", 4)
    POLL_AT = opt("pollat", 22)
    zero_list = [O[0] + r for r in range(16)] + [O[1] + r for r in range(16)]
    for i, (c, u) in enumerate(qsteps):
        if i == PUB_AT:
            publish()
        if i == POLL_AT:
            A(f"s_cmp_lg_u32 s{S_W}, s{S_POLL}")
            A("s_cbranch_scc1 L_ka_nopoll")
            A(f"buffer_load_dword v227, v225, s[24:27], s{S_FL} offen sc1")
            A("L_ka_nopoll:")
        if i + 1 < len(qsteps):
            trreads(qsteps[i + 1][0], qsteps[i + 1][1], (i + 1) % 2, [0])
            A("s_waitcnt lgkmcnt(2)")
        else:
            A("s_waitcnt lgkmcnt(0)")
        mm(c, u, i % 2, [0])
        for _ in range(2):
            if zero_list:
                A(f"v_mov_b32 v{zero_list.pop()}, 0")
    A.stamp()
    A(f"s_mov_b32 s{S_T0}, 0x{f32bits(QSCALE):08x}")
    A(f"s_mov_b32 s{S_T1}, 0x{f32bits(-LOG2E):08x}")
    A("v_lshlrev_b32 v9, 2, v3")
    A(f"v_add_u32 v9, s{S_LW}, v9")
    A(f"s_lshl_b32 s{S_T2}, s{S_QP}, 13")
    A(f"s_lshl_b32 s{S_T3}, s{S_KH}, 12")
    A(f"s_add_u32 s{S_T2}, s{S_T2}, s{S_T3}")
    A(f"s_xor_b32 s{S_T3}, s{S_T2}, 4096")
    A(f"v_add_u32 v7, s{S_T3}, v1")
    A(f"v_add_u32 v226, s{S_T2}, v1")
    A(f"v_add_u32 v11, s{S_T2}, v225")
    A(f"s_lshl_b32 s{S_T2}, s{S_KH}, 14")
    A(f"v_add_u32 v10, s{S_T2}, v1")
    A(f"v_mov_b32 v{VB}, v10")
    A(f"v_mov_b32 v{IDX}, 0xdddd")
    if STAMP:
        A("v_mov_b32 v232, 0")
    A("s_nop 2")
    A(f"v_mul_f32 v12, s{S_T1}, v{AQ+12}")
    A("v_exp_f32 v12, v12")
    for r in range(12):
        A(f"v_mul_f32 v{AQ+r}, s{S_T0}, v{AQ+r}")
    A("v_add_f32 v12, 1.0, v12")
    A("v_rcp_f32 v12, v12")
    for r in range(12, 16):
        A(f"v_mul_f32 v{AQ+r}, s{S_T0}, v{AQ+r}")
    A(f"v_mul_f32 v12, s{S_GS}, v12")
    A(f"v_add_f32 v12, s{S_GO}, v12")
    for i in range(8):
        A(f"v_cvt_pk_bf16_f32 v{PK+i}, v{AQ+2*i}, v{AQ+2*i+1}")
    A("s_mov_b32 exec_lo, 0")
    A(f"ds_write_b32 v9, v12 offset:{32768+2048}")
    A(f"v_mov_b32 v{PK+6}, 0")
    A(f"v_mov_b32 v{PK+7}, 0")
    A("s_mov_b32 exec_lo, -1")
    A(f"ds_write_b128 v8, {vr(PK,4)} offset:32768")
    A(f"ds_write_b128 v8, {vr(PK+4,4)} offset:{32768+1024}")
    for r in range(8, 16):
        A(f"v_mov_b32 v{S[3]+r}, 0")
    for r in range(4, 8):
        A(f"v_mov_b32 v{VF[3]+r}, 0")
    A(f"s_mov_b32 s{S_FLAGS}, 0")
    A(f"s_mov_b32 s{S_NEXT}, 1")
    A(f"s_mov_b32 s{S_REM}, 0xff")
    A(f"s_bitset0_b32 s{S_REM}, s{S_TB}")
    A(f"s_cmp_lg_u32 s{S_W}, s{S_POLL}")
    A("s_cbranch_scc1 L_ka_nofw")
    A("s_waitcnt vmcnt(0)")
    A(f"v_cmp_ne_u32 vcc, v227, v{VSNAP}")
    A(f"v_mov_b32 v8, {FLAGW}")
    A("s_nop 4")
    A(f"s_and_b32 s{S_FLAGS}, vcc_lo, 0xff")
    A(f"v_mov_b32 v9, s{S_FLAGS}")
    A("ds_write_b32 v8, v9")
    A("L_ka_nofw:")
    A("s_waitcnt lgkmcnt(0)")
    A("s_barrier")
    A.stamp()
    for s in range(2):
        qa = "v7" if s == 0 else "v226"
        A(f"ds_read_b128 {vr(QF[s],4)}, {qa} offset:{32768}")
        A(f"ds_read_b128 {vr(QF[s]+4,4)}, {qa} offset:{32768+1024}")

    def rtile(q_, I):
        A(f"ds_read_b128 {vr(KF[I%2],4)}, v{VB} offset:{q_*4096}")
        A(f"ds_read_b128 {vr(KF[I%2]+4,4)}, v{VB} offset:{q_*4096+1024}")
        A(f"ds_read_b128 {vr(VF[I%4],4)}, v{VB} offset:{q_*4096+2048}")
        A(f"ds_read_b128 {vr(VF[I%4]+4,4)}, v{VB} offset:{q_*4096+3072}")

    rtile(0, 0)
    rtile(1, 1)
    A(f"ds_read_b32 v{GB[1]}, v11 offset:{32768+2048}")
    A("s_waitcnt lgkmcnt(7)")
    for s in range(2):
        A(mfma(S[s], KF[0], QF[s], None))
        A(mfma(S[s], KF[0] + 4, QF[s] + 4, S[s]))

    def dma_block():
        lbl = f"L_ka_fl{len(A.lines)}"
        A(f"s_and_b32 s{S_T0}, s{S_FLAGS}, s{S_REM}")
        A(f"s_cbranch_scc1 {lbl}_ok")
        A(f"s_mov_b32 s{S_SPIN}, 0")
        A(f"v_mov_b32 v8, {FLAGW}")
        A(f"{lbl}_spin:")
        A(f"s_cmp_lg_u32 s{S_W}, s{S_POLL}")
        A(f"s_cbranch_scc1 {lbl}_lds")
        A(f"buffer_load_dword v11, v225, s[24:27], s{S_FL} offen sc1")
        A("v_mov_b32 v9, 0")
        A(f"s_and_b32 s{S_T1}, s{S_SPIN}, 7")
        A(f"s_cmp_lg_u32 s{S_T1}, 7")
        A(f"s_cbranch_scc1 {lbl}_nodbg")
        A("buffer_load_dword v9, v9, s[56:59], s63 offen sc1")
        A(f"{lbl}_nodbg:")
        A("s_waitcnt vmcnt(0)")
        A(f"v_cmp_ne_u32 vcc, v11, v{VSNAP}")
        A("s_nop 4")
        A(f"s_or_b32 s{S_T1}, vcc_lo, s{S_FLAGS}")
        A(f"v_or_b32 v11, s{S_T1}, v9")
        A("v_and_b32 v11, 0xff, v11")
        A("ds_write_b32 v8, v11")
        A(f"s_branch {lbl}_chk")
        A(f"{lbl}_lds:")
        A("ds_read_b32 v11, v8")
        A("s_waitcnt lgkmcnt(0)")
        A(f"{lbl}_chk:")
        A(f"v_readfirstlane_b32 s{S_FLAGS}, v11")
        A(f"s_add_u32 s{S_SPIN}, s{S_SPIN}, 1")
        A(f"s_mov_b32 s{S_T0}, s{S_REM}")
        A(f"s_cmp_ge_u32 s{S_SPIN}, 0x40000")
        A(f"s_cbranch_scc1 {lbl}_ok")
        A(f"s_and_b32 s{S_T0}, s{S_FLAGS}, s{S_REM}")
        A(f"s_cbranch_scc1 {lbl}_ok")
        A(f"s_sleep {opt('sleep', 1)}")
        A(f"s_branch {lbl}_spin")
        A(f"{lbl}_ok:")
        A(f"s_lshl_b32 s{S_T1}, s{S_T0}, 8")
        A(f"s_or_b32 s{S_T0}, s{S_T0}, s{S_T1}")
        A(f"s_lshr_b32 s{S_T0}, s{S_T0}, s{S_TB}")
        A(f"s_ff1_i32_b32 s{S_T0}, s{S_T0}")
        A(f"s_add_u32 s{S_T0}, s{S_T0}, s{S_TB}")
        A(f"s_and_b32 s{S_T0}, s{S_T0}, 7")
        A(f"s_bitset0_b32 s{S_REM}, s{S_T0}")
        A(f"s_lshl_b32 s{S_T0}, s{S_T0}, 15")
        A(f"s_add_u32 s{S_T0}, s{S_T0}, s{S_LW}")
        tab = sum(sl_ << (4 * j) for j, sl_ in enumerate(SLOT_OF_BLOCK))
        A(f"s_lshl_b32 s{S_T1}, s{S_NEXT}, 2")
        A(f"s_lshr_b32 s{S_T1}, 0x{tab:08x}, s{S_T1}")
        A(f"s_and_b32 s{S_T1}, s{S_T1}, 15")
        A(f"s_lshl_b32 s{S_T1}, s{S_T1}, 15")
        A(f"s_add_u32 m0, s{S_T1}, s{S_LW}")
        A(f"s_add_u32 s{S_NEXT}, s{S_NEXT}, 1")
        for i in range(4):
            A(f"buffer_load_dwordx4 v1, s[20:23], s{S_T0} offen offset:{i*1024} sc1 lds")

    dma_block()
    for s in range(2):
        s0 = S[s]
        t = T + 8 * s
        A(f"v_max3_f32 v{t}, v{s0}, v{s0+1}, v{s0+2}")
        A(f"v_max3_f32 v{t+1}, v{s0+3}, v{s0+4}, v{s0+5}")
        A(f"v_max3_f32 v{t+2}, v{s0+6}, v{s0+7}, v{s0+8}")
        A(f"v_max3_f32 v{t+3}, v{s0+9}, v{s0+10}, v{s0+11}")
        A(f"v_max3_f32 v{t+4}, v{s0+12}, v{s0+13}, v{s0+14}")
        A(f"v_max3_f32 v{t}, v{t}, v{t+1}, v{s0+15}")
        A(f"v_max3_f32 v{t+2}, v{t+2}, v{t+3}, v{t+4}")
        A(f"v_max_f32 v{t}, v{t}, v{t+2}")
        A(f"v_mov_b32 v{t+1}, v{t}")
    A("s_nop 1")
    for s in range(2):
        t = T + 8 * s
        A(f"v_permlane32_swap_b32 v{t}, v{t+1}")
    A("s_nop 1")
    for s in range(2):
        t = T + 8 * s
        A(f"v_max_f32 v{t}, v{t}, v{t+1}")
        A(f"v_ashrrev_i32 v{t+1}, 31, v{t}")
        A(f"v_and_b32 v{t+1}, 0xffff, v{t+1}")
        A(f"v_add_u32 v{t}, v{t}, v{t+1}")
        A(f"v_and_b32 v{MREF[s]}, 0xffff0000, v{t}")
        A(f"v_lshrrev_b32 v{t}, 16, v{MREF[s]}")
        A(f"v_xor_b32 v{t}, 0x8000, v{t}")
    A("s_mov_b32 exec_lo, 0")
    for s in range(2):
        A(f"v_mov_b32 v{QF[s]+6}, v{T+8*s}")
    A("s_mov_b32 exec_lo, -1")
    A("s_nop 1")
    for s in range(2):
        A(mfma(S[s], KF[0], QF[s], None))
        A(mfma(S[s], KF[0] + 4, QF[s] + 4, S[s]))
    dma_block()
    CN = [None, None]

    PRIO = opt("prio", 1)

    def unit(I, s, q=None, do_qk=True, first=False):
        u = 2 * I + s
        sc = S[u % 4]
        sp = S[(u - 1) % 4]
        sn = S[(u + 2) % 4]
        E = lambda r: A(f"v_exp_f32 v{sc+r}, v{sc+r}")
        if s == 0:
            A("s_waitcnt lgkmcnt(0)")
        E(0); E(1)
        if s == 0:
            A(smfmac(O[1], VF[(I - 1) % 4] + 4, sp + 8, IDX))
        else:
            A(smfmac(O[0], VF[I % 4] + 4, sp + 8, IDX))
        if s == 0 and q is not None:
            A(f"ds_read_b128 {vr(KF[I%2],4)}, v{VB} offset:{q*4096}")
            A(f"ds_read_b128 {vr(KF[I%2]+4,4)}, v{VB} offset:{q*4096+1024}")
        E(2); E(3); E(4); E(5)
        if do_qk:
            A(mfma(sn, KF[(I + 1) % 2], QF[s], CN[s]))
        if s == 0 and q is not None:
            A(f"ds_read_b128 {vr(VF[(I+2)%4],4)}, v{VB} offset:{q*4096+2048}")
            A(f"ds_read_b128 {vr(VF[(I+2)%4]+4,4)}, v{VB} offset:{q*4096+3072}")
        E(6); E(7); E(8); E(9)
        if do_qk:
            A(mfma(sn, KF[(I + 1) % 2] + 4, QF[s] + 4, sn))
        E(10); E(11); E(12); E(13)
        A(smfmac(O[s], VF[I % 4], sc, IDX))
        E(14); E(15)

    def iteration(I, q, do_qk=True, prio=None, mid=None, mid2=None):
        if PRIO and prio is not None:
            A(f"s_setprio {prio}")
        unit(I, 0, q, do_qk)
        if mid:
            mid()
        unit(I, 1, q, do_qk)

    tab = sum(sl_ << (4 * j) for j, sl_ in enumerate(SLOT_OF_BLOCK))

    def next_vb():
        A(f"s_lshl_b32 s{S_T1}, s{S_JB}, 2")
        A(f"s_lshr_b32 s{S_T1}, 0x{tab >> 4:08x}, s{S_T1}")
        A(f"s_and_b32 s{S_T1}, s{S_T1}, 15")
        A(f"s_lshl_b32 s{S_T1}, s{S_T1}, 15")
        A(f"v_add_u32 v{VB}, s{S_T1}, v10")
        A(f"s_add_u32 s{S_JB}, s{S_JB}, 1")

    WO_REGION = [131072, 0, 65536, 32768]

    def wo_stage(kq, warm=False):
        srdn = "s[12:15]" if kq < 2 else "s[16:19]"
        A(f"s_min_u32 s{S_T0}, s{S_W}, 6")
        A(f"s_mul_i32 s{S_T1}, s{S_T0}, {2*14336}")
        A(f"s_lshl_b32 s{S_T2}, s{S_CB}, 7")
        A(f"s_add_u32 s{S_T1}, s{S_T1}, s{S_T2}")
        if kq & 1:
            A(f"s_add_u32 s{S_T1}, s{S_T1}, 200704")
        A(f"s_lshl_b32 s{S_T0}, s{S_T0}, 11")
        for i in range(4):
            if i == 2:
                A(f"s_add_u32 s{S_T1}, s{S_T1}, 14336")
            if warm:
                if i % 2 == 0:
                    A(f"buffer_load_dwordx4 v[228:231], v236, {srdn}, s{S_T1} offen")
            else:
                A(f"s_add_u32 m0, s{S_T0}, {WO_REGION[kq] + (i & 1)*14336 + (i >> 1)*1024}")
                A("s_nop 0")
                A(f"buffer_load_dwordx4 v{236 + (i & 1)}, {srdn}, s{S_T1} offen lds")

    def side_call(kh):
        def f():
            A(f"s_cmp_eq_u32 s{S_KH}, {kh}")
            A("s_cbranch_scc1 L_ka_sidein")
            A(f"L_ka_ret{kh}:")
        return f

    def side_blocks():
        A("L_ka_sidein:")
        A(f"s_cmp_eq_u32 s{S_JB}, 5")
        A("s_cbranch_scc1 L_ka_x4")
        A("L_ka_x4r:")
        A(f"s_cmp_ge_u32 s{S_JB}, 6")
        A("s_cbranch_scc1 L_ka_nodma")
        dma_block()
        A("L_ka_nodma:")
        A(f"s_bitcmp1_b32 0x7e, s{S_JB}")
        A("s_cbranch_scc1 L_ka_side")
        A("L_ka_nodma2:")
        A(f"s_cmp_eq_u32 s{S_KH}, 0")
        A("s_cbranch_scc1 L_ka_ret0")
        A("s_branch L_ka_ret1")
        A("L_ka_x4:")
        A(f"s_cmp_lg_u32 s{S_W}, s{S_POLL}")
        A("s_cbranch_scc1 L_ka_x4r")
        A("v_lshlrev_b32 v235, 2, v2")
        A("buffer_load_dword v235, v235, s[56:59], 0 offen sc1")
        A("s_branch L_ka_x4r")
        A("L_ka_side:")
        for jb in (3, 4, 5, 6):
            A(f"s_cmp_eq_u32 s{S_JB}, {jb}")
            A(f"s_cbranch_scc1 L_ka_s{jb}")
        A(f"s_cmp_lg_u32 s{S_W}, 1")
        A("s_cbranch_scc1 L_ka_nodma2")
        A(f"s_and_b32 s{S_T1}, s{S_TB}, 1")
        A(f"s_add_u32 s{S_T1}, s{S_T1}, 1")
        A(f"s_cmp_lg_u32 s{S_T1}, s{S_JB}")
        A("s_cbranch_scc1 L_ka_nodma2")
        A(f"s_lshl_b32 s{S_T1}, 0x101, s{S_TB}")
        A(f"v_mov_b32 v9, s{S_T1}")
        A("v_mov_b32 v11, 0")
        A("s_mov_b64 exec, 1")
        A("buffer_atomic_or v9, v11, s[56:59], s63 offen sc1")
        A("s_mov_b64 exec, -1")
        A("s_branch L_ka_nodma2")
        A("L_ka_s3:")
        wo_stage(0)
        A("s_branch L_ka_nodma2")
        A("L_ka_s4:")
        wo_stage(3, warm=True)
        A("s_branch L_ka_nodma2")
        A("L_ka_s5:")
        wo_stage(1)
        A("s_branch L_ka_nodma2")
        A("L_ka_s6:")
        wo_stage(2)
        A(f"s_cmp_lg_u32 s{S_W}, s{S_POLL}")
        A("s_cbranch_scc1 L_ka_nodma2")
        A("v_bfe_u32 v235, v235, 8, 8")
        A("v_mov_b32 v9, 0xff")
        A("v_cmp_eq_u32 vcc, v235, v9")
        A(f"v_mov_b32 v9, {CNT_ADDR}")
        A("v_mov_b32 v11, 1")
        A("s_nop 3")
        A(f"s_and_b32 s{S_T0}, vcc_lo, vcc_hi")
        A(f"s_and_b32 s{S_T0}, s{S_T0}, 0x55555555")
        A(f"s_cmp_lg_u32 s{S_T0}, 0x55555555")
        A("s_cbranch_scc1 L_ka_nodma2")
        A(f"ds_write_b32 v9, v11 offset:{REGOK_OFF}")
        A("s_branch L_ka_nodma2")

    A("s_load_dwordx2 s[4:5], s[0:1], 16")
    A("s_load_dwordx2 s[6:7], s[0:1], 40")
    A("s_load_dwordx2 s[28:29], s[0:1], 56")
    A("v_lshrrev_b32 v236, 2, v2")
    A("v_mul_u32_u24 v236, 896, v236")
    A("v_and_b32 v237, 3, v2")
    A("v_lshl_add_u32 v236, v237, 4, v236")
    A("v_add_u32 v237, 64, v236")
    A("s_waitcnt lgkmcnt(0)")
    srd(A, 12, 4, 401408)
    srd(A, 16, 6, 401408)
    srd(A, 52, 28, 1835008)

    A.stamp()
    A(f"s_mov_b32 s{S_JB}, 0")
    iteration(0, 2, prio=1)
    iteration(1, 3, prio=0, mid=next_vb)
    A(".p2align 6")
    A("L_ka_loop:")
    LST = STAMP and opt("lst", 0)
    if LST:
        A("s_memtime s[94:95]")
        A(f"s_mov_b32 m0, s{S_JB}")
        A("s_waitcnt lgkmcnt(0)")
        A(f"v_writelane_b32 v232, s94, m0")
    A(f"s_cmp_ge_u32 s{S_JB}, 7")
    A("s_cbranch_scc1 L_ka_w0")
    A("s_waitcnt vmcnt(4)")
    A("s_barrier")
    A("L_ka_w1:")
    if LST:
        A("s_memtime s[94:95]")
        A(f"s_add_u32 m0, s{S_JB}, 16")
        A("s_waitcnt lgkmcnt(0)")
        A(f"v_writelane_b32 v232, s94, m0")
    p0, p1 = opt("p0", 0), opt("p1", 1)
    mids = [None, None, None]
    if p0 == p1:
        mids[p0] = lambda: (side_call(0)(), side_call(1)())
    else:
        mids[p0] = side_call(0)
        mids[p1] = side_call(1)
    iteration(2, 0, prio=3, mid=mids[0])
    iteration(3, 1, prio=2, mid=mids[1])
    iteration(4, 2, prio=1, mid=mids[2])
    iteration(5, 3, prio=0, mid=next_vb)
    A(f"s_cmp_lt_u32 s{S_JB}, 8")
    A("s_cbranch_scc1 L_ka_loop")

    def tail_addr():
        A(f"s_add_u32 s{S_T0}, s{S_LW}, 98304")
        A(f"v_add_u32 v8, s{S_T0}, v1")
        A(f"s_xor_b32 s{S_T0}, s{S_T0}, 16384")
        A(f"v_add_u32 v9, s{S_T0}, v1")
        A("v_lshlrev_b32 v7, 2, v2")
        A(f"s_lshl_b32 s{S_T1}, s{S_W}, 8")
        A(f"s_add_u32 s{S_T0}, s{S_T1}, {MX_ADDR}")
        A(f"v_add_u32 v11, s{S_T0}, v7")
        A(f"s_xor_b32 s{S_T1}, s{S_T1}, 1024")
        A(f"s_add_u32 s{S_T1}, s{S_T1}, {MX_ADDR}")
        A(f"v_add_u32 v7, s{S_T1}, v7")
        A(f"ds_write_b32 v11, v{MREF[0]}")
        A(f"s_mov_b32 s66, 0")

    iteration(30, None, True, prio=1, mid=tail_addr)
    iteration(31, None, False, prio=0)
    for r4 in range(4):
        A(f"ds_write_b128 v8, {vr(O[0]+4*r4,4)} offset:{r4*1024}")
    A(smfmac(O[1], VF[31 % 4] + 4, S[3] + 8, IDX))
    A.stamp()
    A("s_waitcnt lgkmcnt(0)")
    A("s_barrier")
    A(f"ds_read_b32 v{MREF[0]}, v7")
    for r4 in (3, 0, 1, 2):
        A(f"ds_read_b128 {vr(O[0]+4*r4,4)}, v9 offset:{r4*1024}")
    A(f"v_mov_b32 v235, {CNT_ADDR}")
    A(f"ds_read_b32 v235, v235 offset:{REGOK_OFF}")
    wo_stage(3)
    A("s_waitcnt lgkmcnt(4)")
    OK_, OO = O[1], O[0]
    F1, F2 = T + 1, T + 2
    A(f"v_max_f32 v{T}, v{MREF[0]}, v{MREF[1]}")
    A(f"v_sub_f32 v{F1}, v{MREF[1]}, v{T}")
    A(f"v_sub_f32 v{F2}, v{MREF[0]}, v{T}")
    A(f"v_exp_f32 v{F1}, v{F1}")
    A(f"v_exp_f32 v{F2}, v{F2}")
    A("L_ka_fin:")
    A("s_nop 0")
    A(f"v_mul_f32 v{T+3}, v{OK_+12}, v{F1}")
    A(f"v_fmac_f32 v{T+3}, v{OO+12}, v{F2}")
    A(f"v_mov_b32 v{T+4}, v{T+3}")
    A("s_nop 1")
    A(f"v_permlane32_swap_b32 v{T+3}, v{T+4}")
    A("s_nop 1")
    A(f"v_rcp_f32 v{T+4}, v{T+4}")
    A("s_nop 0")
    A(f"v_mul_f32 v{T+4}, v{T+4}, v{GB[1]}")
    A(f"v_mul_f32 v{F1}, v{F1}, v{T+4}")
    A(f"v_mul_f32 v{F2}, v{F2}, v{T+4}")
    A("s_waitcnt lgkmcnt(0)")
    R = S[1]
    for r in range(16):
        A(f"v_mul_f32 v{R+r}, v{OK_+r}, v{F1}")
        A(f"v_fmac_f32 v{R+r}, v{OO+r}, v{F2}")
    for i in range(8):
        A(f"v_cvt_pk_bf16_f32 v{S[0]+i}, v{R+2*i}, v{R+2*i+1}")
    A(f"v_maximum3_f32 v{T+3}, abs(v{R}), abs(v{R+1}), abs(v{R+2})")
    for r in range(3, 15, 2):
        A(f"v_maximum3_f32 v{T+3}, v{T+3}, abs(v{R+r}), abs(v{R+r+1})")
    A(f"v_maximum3_f32 v{T+3}, v{T+3}, abs(v{R+15}), abs(v{R+15})")
    A("s_mov_b32 s65, 0x7f000000")
    A(f"v_cmp_nlt_f32 vcc, v{T+3}, s65")
    A("s_cmp_lg_u32 s66, 0")
    A("s_cbranch_scc1 L_ka_st")
    A("s_nop 2")
    A("s_cmp_lg_u64 vcc, 0")
    A("s_cbranch_scc1 L_ka_slow")
    A("L_ka_st:")
    A("s_mov_b32 exec_lo, 0")
    A(f"v_mov_b32 v{S[0]+6}, 0")
    A(f"v_mov_b32 v{S[0]+7}, 0")
    A("s_mov_b32 exec_lo, -1")
    A(f"buffer_store_dwordx4 {vr(S[0],4)}, v1, s[24:27], s64 offen sc1")
    A(f"buffer_store_dwordx4 {vr(S[0]+4,4)}, v1, s[24:27], s64 offen offset:1024 sc1")
    ACC = [16, 32]
    AB3 = 64
    WF3 = [136, 144]
    A(f"v_readfirstlane_b32 s{S_T0}, v235")
    A("v_add_u32 v238, 1, v233")
    A(f"s_lshl_b32 s{S_T1}, s{S_KQ}, 2")
    A(f"s_lshr_b32 s{S_T1}, 0x1204, s{S_T1}")
    A(f"s_and_b32 s{S_T1}, s{S_T1}, 15")
    A(f"s_lshl_b32 s{S_T1}, s{S_T1}, 15")
    A("v_bfe_u32 v9, v2, 2, 2")
    A("v_lshlrev_b32 v7, 6, v9")
    A("v_bfe_u32 v9, v2, 4, 1")
    A("v_lshl_add_u32 v7, v9, 5, v7")
    A("v_and_b32 v9, 3, v2")
    A("v_lshl_add_u32 v7, v9, 3, v7")
    A(f"v_add_u32 v7, s{S_T1}, v7")
    A("v_lshl_add_u32 v8, v4, 8, v7")
    for r in range(32):
        A(f"v_mov_b32 v{16+r}, 0")
    A(f"s_lshl_b32 s{S_T2}, s{S_QC}, 16")
    A(f"s_lshl_b32 s{S_T1}, s{S_KQ}, 14")
    A(f"s_add_u32 s{S_T2}, s{S_T2}, s{S_T1}")
    A(f"s_add_u32 s{S_T2}, s{S_T2}, {OF_OFF}")
    A(f"s_cmp_lg_u32 s{S_T0}, 0")
    A("s_cbranch_scc0 L_ka_regspin")
    A("L_ka_regok:")
    A("s_waitcnt vmcnt(0)")
    A.stamp()
    A("s_mov_b64 exec, 1")
    A("buffer_store_dword v238, v234, s[24:27], s11 offen sc1")
    A("s_mov_b64 exec, -1")
    A(f"s_cmp_ge_u32 s{S_TB}, 7")
    A("s_cbranch_scc1 L_ka_done")
    A("s_barrier")
    A(f"s_mov_b32 s{S_SPIN}, 0")
    A(f"v_mov_b32 v10, {CNT_ADDR}")
    A(f"s_and_b32 s{S_T3}, s{S_W}, 1")
    A(f"s_lshl_b32 s{S_T3}, s{S_T3}, 5")
    A(f"s_lshl_b32 s{S_T4}, s{S_KQ}, 3")
    A(f"s_add_u32 s{S_T3}, s{S_T3}, s{S_T4}")
    A(f"s_cmp_lg_u32 s{S_W}, 0")
    A("s_cbranch_scc1 L_ka_p3lds")
    A("L_ka_p3spin:")
    A("buffer_load_dword v9, v239, s[24:27], s11 offen sc1")
    A("s_waitcnt vmcnt(0)")
    A("v_cmp_ne_u32 vcc, v9, v240")
    A(f"s_add_u32 s{S_SPIN}, s{S_SPIN}, 1")
    A("s_nop 3")
    A("v_mov_b32 v12, vcc_lo")
    A("v_mov_b32 v13, vcc_hi")
    A("ds_write_b64 v10, v[12:13] offset:80")
    A("s_cmp_eq_u64 vcc, -1")
    A("s_cbranch_scc1 L_ka_p3go")
    A(f"s_cmp_ge_u32 s{S_SPIN}, 0x40000")
    A("s_cbranch_scc1 L_ka_p3go")
    A(f"s_sleep {opt('sleep3', 4)}")
    A("s_branch L_ka_p3spin")
    A("L_ka_p3lds:")
    A("ds_read_b64 v[12:13], v10 offset:80")
    A("s_waitcnt lgkmcnt(0)")
    A("v_readfirstlane_b32 s4, v12")
    A("v_readfirstlane_b32 s5, v13")
    A(f"s_add_u32 s{S_SPIN}, s{S_SPIN}, 1")
    A("s_nop 1")
    A(f"s_lshr_b64 s[4:5], s[4:5], s{S_T3}")
    A("s_and_b32 s4, s4, 0xff")
    A("s_cmp_eq_u32 s4, 0xff")
    A("s_cbranch_scc1 L_ka_p3go")
    A(f"s_cmp_ge_u32 s{S_SPIN}, 0x400000")
    A("s_cbranch_scc1 L_ka_p3go")
    A("s_sleep 1")
    A("s_branch L_ka_p3lds")
    A("L_ka_p3go:")
    A.stamp()
    for ks in range(16):
        if ks and ks % 4 == 0:
            A(f"s_add_u32 s{S_T2}, s{S_T2}, 4096")
        A(f"buffer_load_dwordx4 {vr(AB3+4*ks,4)}, v1, s[24:27], s{S_T2} offen offset:{(ks%4)*1024} sc1")

    def tr3(ks, st):
        for ct in range(2):
            for tp in range(2):
                hd, s_ = divmod(ks, 2)
                base = "v7" if (s_ == 1 and tp == 1) else "v8"
                A(f"ds_read_b64_tr_b16 {vr(WF3[st]+4*ct+2*tp,2)}, {base} offset:{ct*14336 + (28*hd + 16*s_ + 8*tp)*64}")

    tr3(0, 0)
    A(f"s_lshl_b32 s{S_T0}, s{S_W}, 13")
    A(f"s_and_b32 s{S_T1}, s{S_W}, 1")
    A(f"s_lshl_b32 s{S_T0}, s{S_T1}, 15")
    A(f"s_lshl_b32 s{S_T3}, s{S_KQ}, 13")
    A(f"s_add_u32 s{S_T3}, s{S_T3}, s{S_T0}")
    A(f"v_add_u32 v10, s{S_T3}, v1")
    A(f"s_and_b32 s{S_T3}, s{S_KQ}, 1")
    A(f"s_lshr_b32 s{S_T4}, s{S_KQ}, 1")
    A(f"s_lshl_b32 s{S_T1}, s{S_T3}, 12")
    A(f"s_add_u32 s{S_T0}, s{S_T0}, s{S_T1}")
    A(f"s_lshl_b32 s{S_T1}, s{S_T4}, 11")
    A(f"s_add_u32 s{S_T0}, s{S_T0}, s{S_T1}")
    A(f"v_add_u32 v11, s{S_T0}, v1")
    A("v_mul_u32_u24 v12, 896, v3")
    A("v_lshl_add_u32 v12, v4, 4, v12")
    A(f"s_mul_i32 s{S_T0}, s{S_QC}, 28672")
    A(f"s_lshl_b32 s{S_T1}, s{S_CB}, 7")
    A(f"s_add_u32 s{S_T0}, s{S_T0}, s{S_T1}")
    A(f"s_lshl_b32 s{S_T1}, s{S_T3}, 6")
    A(f"s_add_u32 s{S_T0}, s{S_T0}, s{S_T1}")
    A(f"s_lshl_b32 s{S_T1}, s{S_T4}, 5")
    A(f"s_add_u32 s{S_T0}, s{S_T0}, s{S_T1}")
    for ks in range(16):
        st = ks % 2
        if ks < 15:
            tr3(ks + 1, 1 - st)
            A(f"s_waitcnt vmcnt({15-ks}) lgkmcnt(4)")
        else:
            A("s_waitcnt vmcnt(0) lgkmcnt(0)")
        for ct in range(2):
            A(mfma(ACC[ct], WF3[st] + 4 * ct, AB3 + 4 * ks, ACC[ct]))
    A.stamp()
    A("s_barrier")
    A("s_nop 7")
    A("s_nop 3")
    for ct in range(2):
        for r4 in range(4):
            A(f"ds_write_b128 v10, {vr(ACC[ct]+4*r4,4)} offset:{ct*4096+r4*1024}")
    A("s_waitcnt lgkmcnt(0)")
    A("s_barrier")
    for k in range(4):
        for h2 in range(2):
            A(f"ds_read_b128 {vr(AB3+8*k+4*h2,4)}, v11 offset:{k*8192+h2*1024}")
    A("s_waitcnt lgkmcnt(4)")
    for r in range(8):
        A(f"v_add_f32 v{AB3+r}, v{AB3+r}, v{AB3+8+r}")
    A("s_waitcnt lgkmcnt(0)")
    for r in range(8):
        A(f"v_add_f32 v{AB3+16+r}, v{AB3+16+r}, v{AB3+24+r}")
    for r in range(8):
        A(f"v_add_f32 v{AB3+r}, v{AB3+r}, v{AB3+16+r}")
    for i in range(4):
        A(f"v_cvt_pk_bf16_f32 v{16+i}, v{AB3+2*i}, v{AB3+2*i+1}")
    A("s_nop 1")
    A("v_permlane32_swap_b32 v16, v18")
    A("v_permlane32_swap_b32 v17, v19")
    A("s_nop 1")
    A(f"buffer_store_dwordx4 v[16:19], v12, s[52:55], s{S_T0} offen")
    A("L_ka_done:")
    if STAMP:
        A("s_mov_b64 exec, -1")
        A(f"s_mul_i32 s67, s2, 8")
        A(f"s_add_u32 s67, s67, s{S_W}")
        A("s_lshl_b32 s67, s67, 8")
        A(f"s_add_u32 s67, s67, {STAMP_OFF + 2*(1<<20)}")
        A("v_lshlrev_b32 v0, 2, v2")
        A("v_mov_b32 v1, s68")
        A("v_sub_u32 v232, v232, v1")
        A("buffer_store_dword v232, v0, s[24:27], s67 offen")
    A.stamp_flush(0, S_W, 8)
    A("L_ka_end:")
    A("s_endpgm")
    A("L_ka_w0:")
    A("s_waitcnt vmcnt(0)")
    A("s_barrier")
    A("s_branch L_ka_w1")
    side_blocks()
    A("L_ka_regspin:")
    A(f"s_mov_b32 s{S_SPIN}, 0")
    A("L_ka_regspin2:")
    A("v_lshlrev_b32 v235, 2, v2")
    A("buffer_load_dword v235, v235, s[56:59], 0 offen sc1")
    A("v_mov_b32 v9, 0xff")
    A("s_waitcnt vmcnt(0)")
    A("v_bfe_u32 v235, v235, 8, 8")
    A("v_cmp_eq_u32 vcc, v235, v9")
    A(f"s_add_u32 s{S_SPIN}, s{S_SPIN}, 1")
    A("s_nop 3")
    A(f"s_and_b32 s{S_T0}, vcc_lo, vcc_hi")
    A(f"s_and_b32 s{S_T0}, s{S_T0}, 0x55555555")
    A(f"s_cmp_eq_u32 s{S_T0}, 0x55555555")
    A("s_cbranch_scc1 L_ka_regok")
    A(f"s_cmp_ge_u32 s{S_SPIN}, 0x40000")
    A("s_cbranch_scc1 L_ka_regok")
    A("s_sleep 8")
    A("s_branch L_ka_regspin2")
    A("L_ka_slow:")
    M = T + 5
    s0 = S[0]
    A("s_waitcnt vmcnt(0) lgkmcnt(0)")
    for r in range(16):
        A(f"v_mov_b32 v{OK_+r}, 0")
        A(f"v_mov_b32 v{OO+r}, 0")
    A(f"v_mov_b32 v{M}, 0xff7fffff")
    A("L_ka_slow_loop:")
    A(f"buffer_load_dwordx4 {vr(KF[0],4)}, v1, s[20:23], s66 offen sc1")
    A(f"buffer_load_dwordx4 {vr(KF[0]+4,4)}, v1, s[20:23], s66 offen offset:1024 sc1")
    A(f"buffer_load_dwordx4 {vr(VF[0],4)}, v1, s[20:23], s66 offen offset:2048 sc1")
    A(f"buffer_load_dwordx4 {vr(VF[0]+4,4)}, v1, s[20:23], s66 offen offset:3072 sc1")
    A("s_waitcnt vmcnt(0)")
    A(mfma(s0, KF[0], QF[1], None))
    A(mfma(s0, KF[0] + 4, QF[1] + 4, s0))
    A("s_nop 15")
    A("s_nop 3")
    A(f"v_max3_f32 v{T}, v{s0}, v{s0+1}, v{s0+2}")
    for r in range(3, 15, 2):
        A(f"v_max3_f32 v{T}, v{T}, v{s0+r}, v{s0+r+1}")
    A(f"v_max_f32 v{T}, v{T}, v{s0+15}")
    A(f"v_mov_b32 v{T+1}, v{T}")
    A("s_nop 1")
    A(f"v_permlane32_swap_b32 v{T}, v{T+1}")
    A("s_nop 1")
    A(f"v_max3_f32 v{T}, v{T}, v{T+1}, v{M}")
    A(f"v_sub_f32 v{T+1}, v{M}, v{T}")
    A(f"v_exp_f32 v{T+1}, v{T+1}")
    A(f"v_mov_b32 v{M}, v{T}")
    for r in range(16):
        A(f"v_sub_f32 v{s0+r}, v{s0+r}, v{T}")
    for r in range(16):
        A(f"v_exp_f32 v{s0+r}, v{s0+r}")
    for r in range(16):
        A(f"v_mul_f32 v{OK_+r}, v{OK_+r}, v{T+1}")
    A("s_nop 3")
    A(smfmac(OK_, VF[0], s0, IDX))
    A(smfmac(OK_, VF[0] + 4, s0 + 8, IDX))
    A("s_nop 15")
    A("s_nop 3")
    A("s_add_u32 s66, s66, 4096")
    A("s_cmp_lt_u32 s66, 262144")
    A("s_cbranch_scc1 L_ka_slow_loop")
    A(f"v_mov_b32 v{F1}, 1.0")
    A(f"v_mov_b32 v{F2}, 0")
    A("s_branch L_ka_fin")
    return A.text(), 248, 68


def gen_kb():
    A = Asm()
    ACC = [16, 32, 48, 64]
    WF = [80, 88]
    AB = 96
    A("s_cmp_ge_u32 s2, 224")
    A("s_cbranch_scc1 L_k3_end")
    A.stamp()
    A("s_load_dwordx2 s[4:5], s[0:1], 16")
    A("s_load_dwordx2 s[6:7], s[0:1], 40")
    A("s_load_dwordx2 s[8:9], s[0:1], 56")
    A("s_load_dwordx2 s[28:29], s[0:1], 72")
    A("s_and_b32 s30, s2, 7")
    A("s_lshr_b32 s31, s2, 3")
    A("s_and_b32 s32, s31, 3")
    A("s_lshl_b32 s30, s30, 2")
    A("s_add_u32 s32, s32, s30")
    A("s_lshr_b32 s33, s31, 2")
    A("v_lshrrev_b32 v1, 6, v0")
    A("v_and_b32 v2, 63, v0")
    A("v_readfirstlane_b32 s35, v1")
    A("v_lshlrev_b32 v1, 4, v2")
    A("v_lshrrev_b32 v3, 2, v2")
    A("v_and_b32 v4, 3, v2")
    A("v_mul_u32_u24 v5, 896, v3")
    A("v_lshl_add_u32 v5, v4, 4, v5")
    A("v_add_u32 v6, 64, v5")
    A("v_lshrrev_b32 v7, 5, v2")
    A("v_and_b32 v8, 31, v2")
    A("s_mul_i32 s41, s35, 28672")
    A("v_lshlrev_b32 v9, 9, v7")
    A("v_bfe_u32 v10, v2, 2, 2")
    A("v_lshl_add_u32 v9, v10, 6, v9")
    A("v_bfe_u32 v10, v2, 4, 1")
    A("v_lshl_add_u32 v9, v10, 5, v9")
    A("v_lshl_add_u32 v9, v4, 3, v9")
    A("v_add_u32 v9, s41, v9")
    A("s_and_b32 s36, s35, 1")
    A("s_mul_i32 s36, s36, 200704")
    A("s_lshl_b32 s37, s33, 7")
    A("s_add_u32 s36, s36, s37")
    A("s_mul_i32 s38, s32, 114688")
    A("s_mul_i32 s39, s35, 14336")
    A("s_add_u32 s38, s38, s39")
    A(f"s_add_u32 s38, s38, {OF_OFF}")
    A("s_and_b32 s48, s32, 3")
    A("s_lshl_b32 s48, s48, 2")
    A("s_lshr_b32 s48, 0xa730, s48")
    A("s_and_b32 s48, s48, 15")
    A("s_lshl_b32 s49, s33, 1")
    A("s_add_u32 s48, s48, s49")
    A("s_cmp_ge_u32 s48, 14")
    A("s_cselect_b32 s49, 14, 0")
    A("s_sub_u32 s48, s48, s49")
    if not opt("rotb", 1):
        A("s_mov_b32 s48, 0")
    A("s_add_u32 s50, s38, 14336")
    A("s_mul_i32 s49, s48, 14336")
    A("s_add_u32 s36, s36, s49")
    A("s_lshl_b32 s49, s48, 10")
    A("s_add_u32 s38, s38, s49")
    A("s_add_u32 s39, s38, 57344")
    A("s_cmp_ge_u32 s35, 2")
    A("s_waitcnt lgkmcnt(0)")
    A("s_cselect_b32 s4, s6, s4")
    A("s_cselect_b32 s5, s7, s5")
    A.stamp()
    srd(A, 12, 4, 401408)
    srd(A, 16, 8, 1835008)
    srd(A, 24, 28, WS_USED)
    A("s_mov_b32 s42, s41")

    def loads(ks):
        A("s_mov_b32 m0, s42")
        A("s_add_u32 s42, s42, 1024")
        A("buffer_load_dwordx4 v5, s[12:15], s36 offen lds")
        A("s_mov_b32 m0, s42")
        A("s_add_u32 s42, s42, 1024")
        A("buffer_load_dwordx4 v6, s[12:15], s36 offen lds")
        A(f"buffer_load_dwordx4 {vr(AB+8*ks,4)}, v1, s[24:27], s38 offen")
        A(f"buffer_load_dwordx4 {vr(AB+8*ks+4,4)}, v1, s[24:27], s39 offen")
        if ks < 13:
            A("s_add_u32 s36, s36, 14336")
            A("s_add_u32 s38, s38, 1024")
            A("s_cmp_ge_u32 s38, s50")
            A("s_cselect_b32 s49, 14336, 0")
            A("s_cselect_b32 s51, 200704, 0")
            A("s_sub_u32 s38, s38, s49")
            A("s_sub_u32 s36, s36, s51")
            A("s_add_u32 s39, s38, 57344")

    D = opt("bd", 6)
    for ks in range(D):
        loads(ks)
    A.stamp()
    for r in range(16, 80):
        A(f"v_mov_b32 v{r}, 0")

    def trreads(ks, st):
        for ct in range(2):
            for tp in range(2):
                A(f"ds_read_b64_tr_b16 {vr(WF[st]+4*ct+2*tp,2)}, v9 offset:{(ks*2+ct)*1024+tp*256}")

    A(f"s_waitcnt vmcnt({4*(D-1)})")
    A.stamp()
    trreads(0, 0)
    for ks in range(14):
        st = ks % 2
        if ks + D < 14:
            loads(ks + D)
        if ks < 13:
            A(f"s_waitcnt vmcnt({4*(min(13, ks+D)-(ks+1))})")
            trreads(ks + 1, 1 - st)
            A("s_waitcnt lgkmcnt(4)")
        else:
            A("s_waitcnt lgkmcnt(0)")
        for ti in range(2):
            for ct in range(2):
                A(mfma(ACC[ti * 2 + ct], WF[st] + 4 * ct, AB + 8 * ks + 4 * ti, ACC[ti * 2 + ct]))
    A.stamp()
    A("v_add_u32 v10, s41, v1")
    A("s_lshl_b32 s43, s35, 12")
    A("v_add_u32 v11, s43, v1")
    A("v_mul_u32_u24 v12, 896, v8")
    A("v_lshl_add_u32 v12, v7, 4, v12")
    A("s_lshr_b32 s44, s35, 1")
    A("s_and_b32 s45, s35, 1")
    A("s_lshl_b32 s46, s32, 1")
    A("s_add_u32 s46, s46, s44")
    A("s_mul_i32 s46, s46, 28672")
    A("s_lshl_b32 s47, s33, 7")
    A("s_add_u32 s46, s46, s47")
    A("s_lshl_b32 s45, s45, 6")
    A("s_add_u32 s46, s46, s45")
    A("s_nop 7")
    for tile in range(4):
        for r4 in range(4):
            A(f"ds_write_b128 v10, {vr(ACC[tile]+4*r4,4)} offset:{tile*4096+r4*1024}")
    A("s_waitcnt lgkmcnt(0)")
    A.stamp()
    A("s_barrier")
    A.stamp()
    for w in range(4):
        for r4 in range(4):
            off = w * 28672 + r4 * 1024
            if off < 65536:
                A(f"ds_read_b128 {vr(AB+16*w+4*r4,4)}, v11 offset:{off}")
            else:
                if r4 == 0:
                    A("v_add_u32 v13, 65536, v11")
                A(f"ds_read_b128 {vr(AB+16*w+4*r4,4)}, v13 offset:{off-65536}")
    A("s_waitcnt lgkmcnt(8)")
    for r in range(16):
        A(f"v_add_f32 v{AB+r}, v{AB+r}, v{AB+16+r}")
    A("s_waitcnt lgkmcnt(0)")
    for r in range(16):
        A(f"v_add_f32 v{AB+32+r}, v{AB+32+r}, v{AB+48+r}")
    for r in range(16):
        A(f"v_add_f32 v{AB+r}, v{AB+r}, v{AB+32+r}")
    for i in range(8):
        A(f"v_cvt_pk_bf16_f32 v{16+i}, v{AB+2*i}, v{AB+2*i+1}")
    A("s_nop 1")
    A("v_permlane32_swap_b32 v16, v18")
    A("v_permlane32_swap_b32 v17, v19")
    A("v_permlane32_swap_b32 v20, v22")
    A("v_permlane32_swap_b32 v21, v23")
    A("s_nop 1")
    A("buffer_store_dwordx4 v[16:19], v12, s[16:19], s46 offen")
    A("buffer_store_dwordx4 v[20:23], v12, s[16:19], s46 offen offset:32")
    A.stamp()
    A.stamp_flush(1, 35, 4)
    A("L_k3_end:")
    A("s_endpgm")
    return A.text(), 208, 56


HEADER = """; Kernarg layout for this problem (80 bytes, ptrs only, base s[0:1]):
"""


def main(outpath):
    name = NAME + "_kernel"
    body, nv, ns = gen_ka()
    out = HEADER
    out += "; @launch grid=(256,1,1) block=(512,1,1) lds=163840\n"
    out += '.amdgcn_target "amdgcn-amd-amdhsa--gfx950"\n.text\n'
    out += f".globl {name}\n.p2align 8\n.type {name},@function\n{name}:\n{body}"
    out += '.section .rodata,"a"\n'
    out += f""".p2align 6
.amdhsa_kernel {name}
  .amdhsa_next_free_vgpr {nv}
  .amdhsa_next_free_sgpr {102 if STAMP else ns}
  .amdhsa_accum_offset {(nv+3)//4*4}
  .amdhsa_group_segment_fixed_size 0
  .amdhsa_kernarg_size 80
  .amdhsa_user_sgpr_count 2
  .amdhsa_user_sgpr_kernarg_segment_ptr 1
  .amdhsa_system_sgpr_workgroup_id_x 1
.end_amdhsa_kernel
"""
    open(outpath, "w").write(out)


if __name__ == "__main__":
    main(sys.argv[1] if len(sys.argv) > 1 else f"cdna_kernels/{NAME}.s")
```

```python
import struct, math, sys, os

NAME = "gated_mix__softmax_full_mha__softmax_full_mha__prompt"

KVF_OFF = 0
OF_OFF = 8 << 20
WI_OFF = 13 << 20
FL_OFF = 12 << 20
WS_USED = 24 << 20
STAMP_OFF = 20 << 20
STAMP = bool(os.environ.get("STAMP"))
OPT = dict(kv.split("=") for kv in os.environ.get("OPT", "").split(",") if kv)


def opt(name, default):
    return type(default)(OPT.get(name, default))


def f32bits(x):
    return struct.unpack("<I", struct.pack("<f", x))[0]


LOG2E = math.log2(math.e)
QSCALE = (28 ** -0.5) * LOG2E


class Asm:
    def __init__(self):
        self.lines = []
        self.nst = 0

    def __call__(self, s):
        for ln in s.strip("\n").split("\n"):
            self.lines.append("    " + ln.strip() if not ln.strip().endswith(":") else ln.strip())

    def text(self):
        return "\n".join(self.lines) + "\n"

    def stamp(self):
        if not STAMP:
            return
        k = self.nst
        self.nst += 1
        assert k < 14
        if k == 0:
            self("s_memrealtime s[96:97]")
        self(f"s_memtime s[{68+2*k}:{69+2*k}]")
        self("s_waitcnt lgkmcnt(0)")

    def stamp_flush(self, kidx, wave_sgpr, nwaves, srd="s[24:27]"):
        if not STAMP:
            return
        self("s_waitcnt vmcnt(0)")
        self("s_memtime s[98:99]")
        self("s_memrealtime s[100:101]")
        self("s_waitcnt lgkmcnt(0)")
        self("s_mov_b64 exec, 1")
        self(f"s_mul_i32 s67, s2, {nwaves}")
        self(f"s_add_u32 s67, s67, s{wave_sgpr}")
        self("s_lshl_b32 s67, s67, 7")
        self(f"s_add_u32 s67, s67, {STAMP_OFF + kidx*(1<<20)}")
        self("v_mov_b32 v0, 0")
        regs = [96, 100, 98] + [68 + 2 * k for k in range(self.nst)]
        for i, r in enumerate(regs):
            self(f"v_mov_b32 v1, s{r}")
            self(f"buffer_store_dword v1, v0, {srd}, s67 offen offset:{4*i}")
            self("s_nop 1")


def vr(a, n):
    return f"v[{a}:{a+n-1}]"


def srd(A, d, base, nbytes):
    A(f"s_mov_b32 s{d}, s{base}")
    A(f"s_mov_b32 s{d+1}, s{base+1}")
    A(f"s_mov_b32 s{d+2}, {nbytes}")
    A(f"s_mov_b32 s{d+3}, 0x00020000")


def mfma(d, a, b, c):
    cs = vr(c, 16) if c is not None else "0"
    return f"v_mfma_f32_32x32x16_bf16 {vr(d,16)}, {vr(a,4)}, {vr(b,4)}, {cs}"


def smfmac(d, a, b, idx):
    return f"v_smfmac_f32_32x32x32_bf16 {vr(d,16)}, {vr(a,4)}, {vr(b,8)}, v{idx}"


S_BH, S_TB, S_H, S_W, S_TT, S_ROT = 32, 33, 34, 35, 36, 37
S_WOFF, S_XOFF, S_T0, S_T1, S_T2 = 38, 39, 40, 41, 42
S_KH, S_QP, S_JB, S_FLAGS, S_GS, S_GO = 43, 44, 45, 46, 47, 48
S_LW, S_T3, S_T4 = 49, 50, 51
S_NEXT = 60
S_SPIN = 61
S_REM = 62
S_FL = 3
S_POLL = 65
S_A = 66

WIMG = 65536
CNT_ADDR = 159744
MX_ADDR = CNT_ADDR + 1024
REGOK_OFF = 68
FO_OFF = (12 << 20) + 65536
S_CB, S_QC, S_KQ = 8, 9, 10
FLAGW = CNT_ADDR + 64
WRDY = CNT_ADDR + 68
SNAPL = CNT_ADDR + 128
SLOT_OF_BLOCK = [0, 2, 3, 1, 0, 2, 3, 1]
VSNAP = 224


def gen_ka():
    A = Asm()
    A("s_cmp_ge_u32 s2, 256")
    A("s_cbranch_scc1 L_ka_end")
    A.stamp()
    DT = opt("dbgtime", 0)
    if DT:
        A("s_memrealtime s[70:71]")
    A("s_load_dwordx4 s[4:7], s[0:1], 0")
    A("s_load_dwordx2 s[8:9], s[0:1], 32")
    A("s_load_dwordx2 s[10:11], s[0:1], 48")
    A("s_load_dwordx4 s[28:31], s[0:1], 64")
    A("v_lshrrev_b32 v1, 6, v0")
    A("v_and_b32 v2, 63, v0")
    A(f"v_readfirstlane_b32 s{S_W}, v1")
    A(f"s_and_b32 s{S_T0}, s2, 7")
    A(f"s_lshr_b32 s{S_T1}, s2, 3")
    A(f"s_and_b32 s{S_A}, s{S_T1}, 3")
    A(f"s_lshl_b32 s{S_BH}, s{S_T0}, 2")
    A(f"s_add_u32 s{S_BH}, s{S_BH}, s{S_A}")
    A(f"s_lshr_b32 s{S_TB}, s{S_T1}, 2")
    A(f"s_and_b32 s{S_H}, s{S_BH}, 15")
    rm = opt("rot", 3)
    if rm == 3:
        A(f"s_add_u32 s{S_ROT}, s{S_TB}, s{S_T0}")
        A(f"s_cmp_ge_u32 s{S_ROT}, 7")
        A(f"s_cselect_b32 s{S_T1}, 7, 0")
        A(f"s_sub_u32 s{S_ROT}, s{S_ROT}, s{S_T1}")
    elif rm == 0:
        A(f"s_lshl_b32 s{S_ROT}, s{S_A}, 1")
        A(f"s_add_u32 s{S_ROT}, s{S_ROT}, s{S_T0}")
    elif rm == 1:
        A(f"s_mov_b32 s{S_ROT}, s{S_T0}")
    elif rm == 2:
        A(f"s_and_b32 s{S_ROT}, s{S_A}, 1")
        A(f"s_mul_i32 s{S_ROT}, s{S_ROT}, 3")
        A(f"s_add_u32 s{S_ROT}, s{S_ROT}, s{S_T0}")
    A(f"s_cmp_ge_u32 s{S_ROT}, 7")
    A(f"s_cselect_b32 s{S_T1}, 7, 0")
    A(f"s_sub_u32 s{S_ROT}, s{S_ROT}, s{S_T1}")
    A("v_lshlrev_b32 v1, 4, v2")
    A("v_and_b32 v3, 31, v2")
    A("v_lshrrev_b32 v4, 5, v2")
    A("v_lshrrev_b32 v5, 2, v3")
    A("v_and_b32 v6, 3, v2")
    A("v_mul_u32_u24 v7, 2688, v5")
    A("v_lshl_add_u32 v7, v6, 4, v7")
    A("v_mov_b32 v8, v7")
    A("v_mul_u32_u24 v9, 896, v4")
    A("v_add3_u32 v7, v7, v9, v9" if False else "v_add_u32 v7, v7, v9")
    A("v_add_u32 v7, 896, v7")
    A("v_lshrrev_b32 v5, 3, v2")
    A("v_mul_u32_u24 v9, 896, v5")
    A("v_and_b32 v5, 7, v2")
    A("v_lshrrev_b32 v11, 4, v2")
    A("v_xor_b32 v5, v5, v11")
    A("v_xor_b32 v11, 4, v5")
    A("v_lshl_add_u32 v10, v11, 4, v9")
    A("v_lshl_add_u32 v9, v5, 4, v9")
    A("v_lshlrev_b32 v225, 2, v3")
    A(f"s_lshl_b32 s{S_LW}, s{S_W}, 12")
    A(f"s_lshl_b32 s{S_TT}, s{S_TB}, 3")
    A(f"s_add_u32 s{S_TT}, s{S_TT}, s{S_W}")
    A(f"s_mul_i32 s{S_XOFF}, s{S_TT}, 28672")
    A(f"s_add_u32 s{S_T4}, s{S_XOFF}, 896")
    A(f"s_lshl_b32 s{S_T1}, s{S_ROT}, 7")
    A(f"s_add_u32 s{S_XOFF}, s{S_XOFF}, s{S_T1}")
    A(f"s_lshl_b32 s{S_FL}, s{S_BH}, 7")
    A(f"s_add_u32 s{S_FL}, s{S_FL}, {FL_OFF}")
    A(f"s_mov_b32 s{S_POLL}, 0")
    A(f"s_mul_i32 s{S_T0}, s{S_H}, 56")
    A(f"s_mul_i32 s{S_WOFF}, s{S_W}, 21504")
    A(f"s_add_u32 s{S_WOFF}, s{S_WOFF}, s{S_T0}")
    A(f"s_add_u32 s{S_T3}, s{S_WOFF}, {7*172032}")
    A(f"s_mul_i32 s{S_T1}, s{S_ROT}, 172032")
    A(f"s_add_u32 s{S_WOFF}, s{S_WOFF}, s{S_T1}")
    A(f"s_mul_i32 s{S_T2}, s{S_W}, 1536")
    A(f"s_add_u32 s{S_T2}, s{S_T2}, {WIMG}")
    A(f"s_cmp_ge_u32 s{S_BH}, 16")
    A("s_waitcnt lgkmcnt(0)")
    A("s_cselect_b32 s6, s8, s6")
    A("s_cselect_b32 s7, s9, s7")
    A.stamp()
    srd(A, 12, 4, 1835008)
    srd(A, 16, 6, 1204224)
    srd(A, 24, 30, WS_USED)

    XB = 88
    AK, AV, AQ = 16, 32, 48
    WF = [64, 76]

    def dma_x(c):
        for i in range(4):
            A(f"s_add_u32 m0, s{S_LW}, {(c%2)*32768 + i*1024}")
            if i == 0:
                A("s_nop 0")
                A(f"buffer_load_dwordx4 v9, s[12:15], s{S_XOFF} offen lds")
            else:
                A(f"s_add_u32 s{S_T1}, s{S_XOFF}, {i*7168}")
                A(f"buffer_load_dwordx4 v{9 + (i&1)}, s[12:15], s{S_T1} offen lds")
        A(f"s_add_u32 s{S_XOFF}, s{S_XOFF}, 128")
        A(f"s_cmp_ge_u32 s{S_XOFF}, s{S_T4}")
        A(f"s_cselect_b32 s{S_T1}, 896, 0")
        A(f"s_sub_u32 s{S_XOFF}, s{S_XOFF}, s{S_T1}")

    def read_x(c):
        for u in range(4):
            A(f"ds_read_b128 {vr(XB+16*c+4*u,4)}, v{200+u} offset:{(c%2)*32768}")

    def hx(c, vm):
        A(f"s_waitcnt vmcnt({vm})")
        read_x(c)
        if c + 2 < 7:
            A("s_waitcnt lgkmcnt(0)")
            dma_x(c + 2)

    def late_setup():
        srd(A, 56, 28, 256)
        A(f"s_lshl_b32 s{S_T1}, s{S_BH}, 18")
        A(f"s_add_u32 s20, s30, s{S_T1}")
        A("s_addc_u32 s21, s31, 0")
        A("s_mov_b32 s22, 262144")
        A("s_mov_b32 s23, 0x00020000")
        A(f"s_lshl_b32 s63, s{S_BH}, 3")
        A("v_bfe_u32 v5, v3, 1, 3")
        A("v_lshlrev_b32 v11, 2, v4")
        A("v_xor_b32 v5, v5, v11")
        A("v_lshlrev_b32 v11, 7, v3")
        A(f"v_add_u32 v11, s{S_LW}, v11")
        for u in range(4):
            A(f"v_xor_b32 v12, {u}, v5")
            A(f"v_lshl_add_u32 v{200+u}, v12, 4, v11")
        A("v_mul_u32_u24 v14, 6144, v4")
        A("v_bfe_u32 v15, v2, 2, 2")
        A("v_lshl_add_u32 v14, v15, 6, v14")
        A("v_bfe_u32 v15, v2, 4, 1")
        A("v_lshl_add_u32 v14, v15, 5, v14")
        A("v_lshl_add_u32 v14, v6, 3, v14")
        A(f"v_add_u32 v14, {WIMG}, v14")
        A("v_add_u32 v15, 49152, v14")
        A(f"s_lshr_b32 s{S_KH}, s{S_W}, 2")
        A(f"s_and_b32 s{S_QP}, s{S_W}, 3")
        A(f"s_cmp_ge_u32 s{S_BH}, 16")
        A(f"s_cselect_b32 s{S_GS}, -1.0, 1.0")
        A(f"s_cselect_b32 s{S_GO}, 1.0, 0")
        for r in range(16, 64):
            A(f"v_mov_b32 v{r}, 0")
        A("v_mov_b32 v207, 0")
        A(f"v_mov_b32 v5, {CNT_ADDR}")
        A("ds_write_b32 v5, v207")
        A("ds_write_b32 v5, v207 offset:64")
        srd(A, 52, 10, 896)
        A("v_lshrrev_b32 v12, 3, v2")
        A("v_min_u32 v12, 6, v12")
        A("v_and_b32 v204, 7, v2")
        A("v_mul_u32_u24 v13, 12288, v12")
        A("v_lshl_add_u32 v13, v204, 6, v13")
        A(f"s_add_u32 s{S_T1}, s{S_T2}, 56")
        A(f"v_add_u32 v13, s{S_T1}, v13")
        A(f"v_add_u32 v12, s{S_ROT}, v12")
        A("v_subrev_u32 v11, 7, v12")
        A("v_min_u32 v12, v12, v11")
        A("v_lshl_add_u32 v12, v12, 6, v204")
        A(f"s_lshl_b32 s{S_T1}, s{S_W}, 3")
        A(f"v_add_u32 v12, s{S_T1}, v12")
        A("v_lshlrev_b32 v12, 1, v12")
        A("buffer_load_ushort v206, v12, s[52:55], 0 offen")
        A("ds_write_b32 v5, v207 offset:68")
        A(f"s_min_u32 s{S_CB}, s{S_TB}, 6")
        A(f"s_lshl_b32 s{S_QC}, s{S_BH}, 1")
        A(f"s_and_b32 s{S_T1}, s{S_W}, 1")
        A(f"s_add_u32 s{S_QC}, s{S_QC}, s{S_T1}")
        A(f"s_lshr_b32 s{S_KQ}, s{S_W}, 1")
        A(f"s_lshl_b32 s{S_T1}, s{S_BH}, 8")
        A(f"v_lshl_add_u32 v239, v2, 2, s{S_T1}")
        A("ds_write_b64 v5, v[16:17] offset:80")
        A(f"s_lshl_b32 s{S_T1}, s{S_TB}, 3")
        A(f"s_lshl_b32 s11, s{S_QP}, 1")
        A(f"s_add_u32 s{S_T1}, s{S_T1}, s11")
        A(f"s_add_u32 s{S_T1}, s{S_T1}, s{S_KH}")
        A(f"s_lshl_b32 s64, s{S_T1}, 16")
        A(f"s_lshl_b32 s11, s{S_BH}, 11")
        A(f"s_add_u32 s64, s64, s11")
        A(f"s_add_u32 s64, s64, {OF_OFF}")
        A(f"s_lshl_b32 s{S_T1}, s{S_T1}, 7")
        A(f"s_lshl_b32 s11, s{S_BH}, 2")
        A(f"s_add_u32 s{S_T1}, s{S_T1}, s11")
        A(f"v_mov_b32 v234, s{S_T1}")
        A(f"s_mov_b32 s11, {FO_OFF}")
        A(f"s_cmp_lg_u32 s{S_W}, s{S_POLL}")
        A("s_cbranch_scc1 L_ka_nosnap3")
        A("buffer_load_dword v240, v239, s[24:27], s11 offen sc1")
        A("L_ka_nosnap3:")
        A("s_mov_b64 exec, 1")
        A("buffer_load_dword v233, v234, s[24:27], s11 offen sc1")
        A("s_mov_b64 exec, -1")

    def trreads(c, u, st, slices):
        base = "v14" if c < 4 else "v15"
        cc = c if c < 4 else c - 4
        n = 0
        for t in slices:
            for tp in range(2):
                off = (8 * cc + u) * 1536 + t * 512 + tp * 256
                A(f"ds_read_b64_tr_b16 {vr(WF[st]+4*t+2*tp,2)}, {base} offset:{off}")
                n += 1
        return n

    def mm(c, u, st, slices):
        xf = XB + 16 * c + 4 * u
        for t in slices:
            if t == 0:
                A(mfma(AQ, WF[st] + 0, xf, AQ))
            elif t == 1:
                A(mfma(AK, WF[st] + 4, xf, AK))
            else:
                A(mfma(AV, xf, WF[st] + 8, AV))

    def chunks_mfma(cs, slices=(1, 2)):
        steps = [(c, u) for c in cs for u in range(4)]
        trreads(*steps[0], 0, slices)
        for i, (c, u) in enumerate(steps):
            if i + 1 < len(steps):
                n = trreads(*steps[i + 1], (i + 1) % 2, slices)
                A(f"s_waitcnt lgkmcnt({n})")
            else:
                A("s_waitcnt lgkmcnt(0)")
            mm(c, u, i % 2, slices)

    def adv_w():
        A(f"s_add_u32 s{S_WOFF}, s{S_WOFF}, 172032")
        A(f"s_cmp_ge_u32 s{S_WOFF}, s{S_T3}")
        A(f"s_cselect_b32 s{S_T1}, {7*172032}, 0")
        A(f"s_sub_u32 s{S_WOFF}, s{S_WOFF}, s{S_T1}")

    q = []

    def dma_wkv(c):
        A(f"s_add_u32 m0, s{S_T2}, {c*12288 + 512}")
        A("s_nop 0")
        A(f"buffer_load_dwordx4 v7, s[16:19], s{S_WOFF} offen lds")
        adv_w()
        q.append(("W", c))

    def dma_wq(c):
        A(f"s_add_u32 m0, s{S_T2}, {c*12288}")
        A("s_mov_b32 exec_hi, 0")
        A(f"buffer_load_dwordx4 v8, s[16:19], s{S_WOFF} offen lds")
        A("s_mov_b32 exec_hi, -1")
        adv_w()
        q.append(("Q", c))

    def dma_xq(c):
        dma_x(c)
        q.extend([("X", c)] * 4)

    def younger(*tags):
        last = max(i for i, t in enumerate(q) if t in tags)
        return len(q) - 1 - last

    A(f"s_cmp_lg_u32 s{S_W}, s{S_POLL}")
    A("s_cbranch_scc1 L_ka_nosnap")
    A(f"buffer_load_dword v{VSNAP}, v225, s[24:27], s{S_FL} offen sc1")
    A("L_ka_nosnap:")
    WLA = opt("wla", 3)
    dma_wkv(0)
    dma_xq(0)
    dma_wkv(1)
    dma_xq(1)
    for c in range(2, WLA):
        dma_wkv(c)
    late_setup()
    q.append(("G", 0))
    q.append(("G", 1))
    A.stamp()
    QAT = opt("qat", 5)
    nq = 0
    for c in range(7):
        A(f"s_waitcnt vmcnt({younger(('X', c), ('W', c))})")
        read_x(c)
        if c == 0:
            A(f"s_cmp_lg_u32 s{S_W}, s{S_POLL}")
            A("s_cbranch_scc1 L_ka_nosnap2")
            A(f"v_add_u32 v11, {SNAPL}, v225")
            A(f"ds_write_b32 v11, v{VSNAP}")
            A("L_ka_nosnap2:")
        A("s_waitcnt lgkmcnt(0)")
        if c + WLA < 7:
            dma_wkv(c + WLA)
        if c + 2 < 7:
            dma_xq(c + 2)
        if c >= QAT and c + WLA >= 6:
            todo = (7 - nq + (6 - c)) // (7 - c)
            for _ in range(todo):
                dma_wq(nq)
                nq += 1
        if c in (0,):
            A.stamp()
        A("s_barrier")
        chunks_mfma([c])
    assert nq == 7
    A.stamp()
    qsteps = [(c, u) for c in range(7) for u in range(4)]
    A("v_and_b32 v6, 0x13, v3")
    A("v_bfe_u32 v7, v3, 2, 1")
    A("v_lshl_or_b32 v6, v7, 3, v6")
    A("v_bfe_u32 v7, v3, 3, 1")
    A("v_lshl_or_b32 v6, v7, 2, v6")
    A("v_lshl_add_u32 v6, v4, 5, v6")
    A("v_lshlrev_b32 v6, 4, v6")
    A(f"v_add_u32 v7, s{S_LW}, v6")
    A(f"v_add_u32 v8, s{S_LW}, v1")
    A(f"s_lshl_b32 s{S_T0}, s{S_TT}, 12")
    A("s_nop 5")
    A("s_mov_b32 exec_lo, 0")
    A(f"v_mov_b32 v{AK+12}, 1.0")
    for r in range(13, 16):
        A(f"v_mov_b32 v{AK+r}, 0")
    A("s_mov_b32 exec_lo, -1")
    PK, PV = 208, 216
    for i in range(8):
        A(f"v_cvt_pk_bf16_f32 v{PK+i}, v{AK+2*i}, v{AK+2*i+1}")
    A(f"buffer_store_dwordx4 {vr(PK,4)}, v6, s[20:23], s{S_T0} offen sc1")
    A(f"buffer_store_dwordx4 {vr(PK+4,4)}, v6, s[20:23], s{S_T0} offen offset:1024 sc1")
    for i in range(8):
        A(f"v_cvt_pk_bf16_f32 v{PV+i}, v{AV+2*i}, v{AV+2*i+1}")
    A("s_mov_b32 exec_lo, 0x10000000")
    A("s_mov_b32 exec_hi, 0x10000000")
    for i in range(8):
        A(f"v_mov_b32 v{PV+i}, 0x3f803f80")
    A("s_mov_b32 exec_lo, 0xe0000000")
    A("s_mov_b32 exec_hi, 0xe0000000")
    for i in range(8):
        A(f"v_mov_b32 v{PV+i}, 0")
    A("s_mov_b64 exec, -1")
    A(f"buffer_store_dwordx4 {vr(PV,4)}, v1, s[20:23], s{S_T0} offen offset:2048 sc1")
    A(f"buffer_store_dwordx4 {vr(PV+4,4)}, v1, s[20:23], s{S_T0} offen offset:3072 sc1")
    A(f"ds_write_b128 v7, {vr(PK,4)}")
    A(f"ds_write_b128 v7, {vr(PK+4,4)} offset:1024")
    A(f"ds_write_b128 v8, {vr(PV,4)} offset:2048")
    A(f"ds_write_b128 v8, {vr(PV+4,4)} offset:3072")
    A("s_waitcnt vmcnt(4)")
    A("s_mov_b32 exec_hi, 0x00ffffff")
    A("ds_write_b16 v13, v206")
    A("s_mov_b32 exec_hi, -1")
    A("s_waitcnt lgkmcnt(0)")
    A("s_barrier")
    A.stamp()
    trreads(0, 0, 0, [0])

    def publish():
        A("s_waitcnt vmcnt(0)")
        A("v_mov_b32 v9, 1")
        A(f"s_lshl_b32 s{S_T2}, s{S_TB}, 2")
        A(f"v_mov_b32 v11, s{S_T2}")
        A("s_mov_b64 exec, 1")
        A("ds_add_rtn_u32 v10, v5, v9")
        A(f"v_add_u32 v12, {SNAPL}, v11")
        A("ds_read_b32 v9, v12")
        A("s_waitcnt lgkmcnt(0)")
        A(f"v_readfirstlane_b32 s{S_T1}, v10")
        A("v_add_u32 v9, 1, v9")
        A("s_nop 0")
        A(f"s_cmp_lg_u32 s{S_T1}, 7")
        A("s_cbranch_scc1 L_ka_nopub")
        A(f"buffer_store_dword v9, v11, s[24:27], s{S_FL} offen sc1")
        A("L_ka_nopub:")
        A("s_mov_b64 exec, -1")

    IDX = 5
    QF = [64, 72]
    O = [16, 32]
    S = [112, 128, 144, 160]
    KF = [176, 184]
    VF = [192, 200, 208, 216]
    T = 48
    VB = 6
    GB = [12, 13]
    MREF = [14, 15]
    PUB_AT = opt("pubat", 4)
    POLL_AT = opt("pollat", 22)
    zero_list = [O[0] + r for r in range(16)] + [O[1] + r for r in range(16)]
    for i, (c, u) in enumerate(qsteps):
        if i == PUB_AT:
            publish()
        if i == POLL_AT:
            A(f"s_cmp_lg_u32 s{S_W}, s{S_POLL}")
            A("s_cbranch_scc1 L_ka_nopoll")
            A(f"buffer_load_dword v227, v225, s[24:27], s{S_FL} offen sc1")
            A("L_ka_nopoll:")
        if i + 1 < len(qsteps):
            trreads(qsteps[i + 1][0], qsteps[i + 1][1], (i + 1) % 2, [0])
            A("s_waitcnt lgkmcnt(2)")
        else:
            A("s_waitcnt lgkmcnt(0)")
        mm(c, u, i % 2, [0])
        for _ in range(2):
            if zero_list:
                A(f"v_mov_b32 v{zero_list.pop()}, 0")
    A.stamp()
    A(f"s_mov_b32 s{S_T0}, 0x{f32bits(QSCALE):08x}")
    A(f"s_mov_b32 s{S_T1}, 0x{f32bits(-LOG2E):08x}")
    A("v_lshlrev_b32 v9, 2, v3")
    A(f"v_add_u32 v9, s{S_LW}, v9")
    A(f"s_lshl_b32 s{S_T2}, s{S_QP}, 13")
    A(f"s_lshl_b32 s{S_T3}, s{S_KH}, 12")
    A(f"s_add_u32 s{S_T2}, s{S_T2}, s{S_T3}")
    A(f"s_xor_b32 s{S_T3}, s{S_T2}, 4096")
    A(f"v_add_u32 v7, s{S_T3}, v1")
    A(f"v_add_u32 v226, s{S_T2}, v1")
    A(f"v_add_u32 v11, s{S_T2}, v225")
    A(f"s_lshl_b32 s{S_T2}, s{S_KH}, 14")
    A(f"v_add_u32 v10, s{S_T2}, v1")
    A(f"v_mov_b32 v{VB}, v10")
    A(f"v_mov_b32 v{IDX}, 0xdddd")
    if STAMP:
        A("v_mov_b32 v232, 0")
    A("s_nop 2")
    A(f"v_mul_f32 v12, s{S_T1}, v{AQ+12}")
    A("v_exp_f32 v12, v12")
    for r in range(12):
        A(f"v_mul_f32 v{AQ+r}, s{S_T0}, v{AQ+r}")
    A("v_add_f32 v12, 1.0, v12")
    A("v_rcp_f32 v12, v12")
    for r in range(12, 16):
        A(f"v_mul_f32 v{AQ+r}, s{S_T0}, v{AQ+r}")
    A(f"v_mul_f32 v12, s{S_GS}, v12")
    A(f"v_add_f32 v12, s{S_GO}, v12")
    for i in range(8):
        A(f"v_cvt_pk_bf16_f32 v{PK+i}, v{AQ+2*i}, v{AQ+2*i+1}")
    A("s_mov_b32 exec_lo, 0")
    A(f"ds_write_b32 v9, v12 offset:{32768+2048}")
    A(f"v_mov_b32 v{PK+6}, 0")
    A(f"v_mov_b32 v{PK+7}, 0")
    A("s_mov_b32 exec_lo, -1")
    A(f"ds_write_b128 v8, {vr(PK,4)} offset:32768")
    A(f"ds_write_b128 v8, {vr(PK+4,4)} offset:{32768+1024}")
    for r in range(8, 16):
        A(f"v_mov_b32 v{S[3]+r}, 0")
    for r in range(4, 8):
        A(f"v_mov_b32 v{VF[3]+r}, 0")
    A(f"s_mov_b32 s{S_FLAGS}, 0")
    A(f"s_mov_b32 s{S_NEXT}, 1")
    A(f"s_mov_b32 s{S_REM}, 0xff")
    A(f"s_bitset0_b32 s{S_REM}, s{S_TB}")
    A(f"s_cmp_lg_u32 s{S_W}, s{S_POLL}")
    A("s_cbranch_scc1 L_ka_nofw")
    A("s_waitcnt vmcnt(0)")
    A(f"v_cmp_ne_u32 vcc, v227, v{VSNAP}")
    A(f"v_mov_b32 v8, {FLAGW}")
    A("s_nop 4")
    A(f"s_and_b32 s{S_FLAGS}, vcc_lo, 0xff")
    A(f"v_mov_b32 v9, s{S_FLAGS}")
    A("ds_write_b32 v8, v9")
    A("L_ka_nofw:")
    A("s_waitcnt lgkmcnt(0)")
    A("s_barrier")
    A.stamp()
    for s in range(2):
        qa = "v7" if s == 0 else "v226"
        A(f"ds_read_b128 {vr(QF[s],4)}, {qa} offset:{32768}")
        A(f"ds_read_b128 {vr(QF[s]+4,4)}, {qa} offset:{32768+1024}")

    def rtile(q_, I):
        A(f"ds_read_b128 {vr(KF[I%2],4)}, v{VB} offset:{q_*4096}")
        A(f"ds_read_b128 {vr(KF[I%2]+4,4)}, v{VB} offset:{q_*4096+1024}")
        A(f"ds_read_b128 {vr(VF[I%4],4)}, v{VB} offset:{q_*4096+2048}")
        A(f"ds_read_b128 {vr(VF[I%4]+4,4)}, v{VB} offset:{q_*4096+3072}")

    rtile(0, 0)
    rtile(1, 1)
    A(f"ds_read_b32 v{GB[1]}, v11 offset:{32768+2048}")
    A("s_waitcnt lgkmcnt(7)")
    for s in range(2):
        A(mfma(S[s], KF[0], QF[s], None))
        A(mfma(S[s], KF[0] + 4, QF[s] + 4, S[s]))

    def dma_block():
        lbl = f"L_ka_fl{len(A.lines)}"
        A(f"s_and_b32 s{S_T0}, s{S_FLAGS}, s{S_REM}")
        A(f"s_cbranch_scc1 {lbl}_ok")
        A(f"s_mov_b32 s{S_SPIN}, 0")
        A(f"v_mov_b32 v8, {FLAGW}")
        A(f"{lbl}_spin:")
        A(f"s_cmp_lg_u32 s{S_W}, s{S_POLL}")
        A(f"s_cbranch_scc1 {lbl}_lds")
        A(f"buffer_load_dword v11, v225, s[24:27], s{S_FL} offen sc1")
        A("v_mov_b32 v9, 0")
        A(f"s_and_b32 s{S_T1}, s{S_SPIN}, 7")
        A(f"s_cmp_lg_u32 s{S_T1}, 7")
        A(f"s_cbranch_scc1 {lbl}_nodbg")
        A("buffer_load_dword v9, v9, s[56:59], s63 offen sc1")
        A(f"{lbl}_nodbg:")
        A("s_waitcnt vmcnt(0)")
        A(f"v_cmp_ne_u32 vcc, v11, v{VSNAP}")
        A("s_nop 4")
        A(f"s_or_b32 s{S_T1}, vcc_lo, s{S_FLAGS}")
        A(f"v_or_b32 v11, s{S_T1}, v9")
        A("v_and_b32 v11, 0xff, v11")
        A("ds_write_b32 v8, v11")
        A(f"s_branch {lbl}_chk")
        A(f"{lbl}_lds:")
        A("ds_read_b32 v11, v8")
        A("s_waitcnt lgkmcnt(0)")
        A(f"{lbl}_chk:")
        A(f"v_readfirstlane_b32 s{S_FLAGS}, v11")
        A(f"s_add_u32 s{S_SPIN}, s{S_SPIN}, 1")
        A(f"s_mov_b32 s{S_T0}, s{S_REM}")
        A(f"s_cmp_ge_u32 s{S_SPIN}, 0x40000")
        A(f"s_cbranch_scc1 {lbl}_ok")
        A(f"s_and_b32 s{S_T0}, s{S_FLAGS}, s{S_REM}")
        A(f"s_cbranch_scc1 {lbl}_ok")
        A(f"s_sleep {opt('sleep', 1)}")
        A(f"s_branch {lbl}_spin")
        A(f"{lbl}_ok:")
        A(f"s_lshl_b32 s{S_T1}, s{S_T0}, 8")
        A(f"s_or_b32 s{S_T0}, s{S_T0}, s{S_T1}")
        A(f"s_lshr_b32 s{S_T0}, s{S_T0}, s{S_TB}")
        A(f"s_ff1_i32_b32 s{S_T0}, s{S_T0}")
        A(f"s_add_u32 s{S_T0}, s{S_T0}, s{S_TB}")
        A(f"s_and_b32 s{S_T0}, s{S_T0}, 7")
        A(f"s_bitset0_b32 s{S_REM}, s{S_T0}")
        A(f"s_lshl_b32 s{S_T0}, s{S_T0}, 15")
        A(f"s_add_u32 s{S_T0}, s{S_T0}, s{S_LW}")
        tab = sum(sl_ << (4 * j) for j, sl_ in enumerate(SLOT_OF_BLOCK))
        A(f"s_lshl_b32 s{S_T1}, s{S_NEXT}, 2")
        A(f"s_lshr_b32 s{S_T1}, 0x{tab:08x}, s{S_T1}")
        A(f"s_and_b32 s{S_T1}, s{S_T1}, 15")
        A(f"s_lshl_b32 s{S_T1}, s{S_T1}, 15")
        A(f"s_add_u32 m0, s{S_T1}, s{S_LW}")
        A(f"s_add_u32 s{S_NEXT}, s{S_NEXT}, 1")
        for i in range(4):
            A(f"buffer_load_dwordx4 v1, s[20:23], s{S_T0} offen offset:{i*1024} sc1 lds")

    dma_block()
    for s in range(2):
        s0 = S[s]
        t = T + 8 * s
        A(f"v_max3_f32 v{t}, v{s0}, v{s0+1}, v{s0+2}")
        A(f"v_max3_f32 v{t+1}, v{s0+3}, v{s0+4}, v{s0+5}")
        A(f"v_max3_f32 v{t+2}, v{s0+6}, v{s0+7}, v{s0+8}")
        A(f"v_max3_f32 v{t+3}, v{s0+9}, v{s0+10}, v{s0+11}")
        A(f"v_max3_f32 v{t+4}, v{s0+12}, v{s0+13}, v{s0+14}")
        A(f"v_max3_f32 v{t}, v{t}, v{t+1}, v{s0+15}")
        A(f"v_max3_f32 v{t+2}, v{t+2}, v{t+3}, v{t+4}")
        A(f"v_max_f32 v{t}, v{t}, v{t+2}")
        A(f"v_mov_b32 v{t+1}, v{t}")
    A("s_nop 1")
    for s in range(2):
        t = T + 8 * s
        A(f"v_permlane32_swap_b32 v{t}, v{t+1}")
    A("s_nop 1")
    for s in range(2):
        t = T + 8 * s
        A(f"v_max_f32 v{t}, v{t}, v{t+1}")
        A(f"v_ashrrev_i32 v{t+1}, 31, v{t}")
        A(f"v_and_b32 v{t+1}, 0xffff, v{t+1}")
        A(f"v_add_u32 v{t}, v{t}, v{t+1}")
        A(f"v_and_b32 v{MREF[s]}, 0xffff0000, v{t}")
        A(f"v_lshrrev_b32 v{t}, 16, v{MREF[s]}")
        A(f"v_xor_b32 v{t}, 0x8000, v{t}")
    A("s_mov_b32 exec_lo, 0")
    for s in range(2):
        A(f"v_mov_b32 v{QF[s]+6}, v{T+8*s}")
    A("s_mov_b32 exec_lo, -1")
    A("s_nop 1")
    for s in range(2):
        A(mfma(S[s], KF[0], QF[s], None))
        A(mfma(S[s], KF[0] + 4, QF[s] + 4, S[s]))
    dma_block()
    CN = [None, None]

    PRIO = opt("prio", 1)

    def unit(I, s, q=None, do_qk=True, first=False):
        u = 2 * I + s
        sc = S[u % 4]
        sp = S[(u - 1) % 4]
        sn = S[(u + 2) % 4]
        E = lambda r: A(f"v_exp_f32 v{sc+r}, v{sc+r}")
        if s == 0:
            A("s_waitcnt lgkmcnt(0)")
        E(0); E(1)
        if s == 0:
            A(smfmac(O[1], VF[(I - 1) % 4] + 4, sp + 8, IDX))
        else:
            A(smfmac(O[0], VF[I % 4] + 4, sp + 8, IDX))
        if s == 0 and q is not None:
            A(f"ds_read_b128 {vr(KF[I%2],4)}, v{VB} offset:{q*4096}")
            A(f"ds_read_b128 {vr(KF[I%2]+4,4)}, v{VB} offset:{q*4096+1024}")
        E(2); E(3); E(4); E(5)
        if do_qk:
            A(mfma(sn, KF[(I + 1) % 2], QF[s], CN[s]))
        if s == 0 and q is not None:
            A(f"ds_read_b128 {vr(VF[(I+2)%4],4)}, v{VB} offset:{q*4096+2048}")
            A(f"ds_read_b128 {vr(VF[(I+2)%4]+4,4)}, v{VB} offset:{q*4096+3072}")
        E(6); E(7); E(8); E(9)
        if do_qk:
            A(mfma(sn, KF[(I + 1) % 2] + 4, QF[s] + 4, sn))
        E(10); E(11); E(12); E(13)
        A(smfmac(O[s], VF[I % 4], sc, IDX))
        E(14); E(15)

    def iteration(I, q, do_qk=True, prio=None, mid=None, mid2=None):
        if PRIO and prio is not None:
            A(f"s_setprio {prio}")
        unit(I, 0, q, do_qk)
        if mid:
            mid()
        unit(I, 1, q, do_qk)

    tab = sum(sl_ << (4 * j) for j, sl_ in enumerate(SLOT_OF_BLOCK))

    def next_vb():
        A(f"s_lshl_b32 s{S_T1}, s{S_JB}, 2")
        A(f"s_lshr_b32 s{S_T1}, 0x{tab >> 4:08x}, s{S_T1}")
        A(f"s_and_b32 s{S_T1}, s{S_T1}, 15")
        A(f"s_lshl_b32 s{S_T1}, s{S_T1}, 15")
        A(f"v_add_u32 v{VB}, s{S_T1}, v10")
        A(f"s_add_u32 s{S_JB}, s{S_JB}, 1")

    WO_REGION = [131072, 0, 65536, 32768]

    def wo_stage(kq, warm=False):
        srdn = "s[12:15]" if kq < 2 else "s[16:19]"
        A(f"s_min_u32 s{S_T0}, s{S_W}, 6")
        A(f"s_mul_i32 s{S_T1}, s{S_T0}, {2*14336}")
        A(f"s_lshl_b32 s{S_T2}, s{S_CB}, 7")
        A(f"s_add_u32 s{S_T1}, s{S_T1}, s{S_T2}")
        if kq & 1:
            A(f"s_add_u32 s{S_T1}, s{S_T1}, 200704")
        A(f"s_lshl_b32 s{S_T0}, s{S_T0}, 11")
        for i in range(4):
            if i == 2:
                A(f"s_add_u32 s{S_T1}, s{S_T1}, 14336")
            if warm:
                if i % 2 == 0:
                    A(f"buffer_load_dwordx4 v[228:231], v236, {srdn}, s{S_T1} offen")
            else:
                A(f"s_add_u32 m0, s{S_T0}, {WO_REGION[kq] + (i & 1)*14336 + (i >> 1)*1024}")
                A("s_nop 0")
                A(f"buffer_load_dwordx4 v{236 + (i & 1)}, {srdn}, s{S_T1} offen lds")

    def side_call(kh):
        def f():
            A(f"s_cmp_eq_u32 s{S_KH}, {kh}")
            A("s_cbranch_scc1 L_ka_sidein")
            A(f"L_ka_ret{kh}:")
        return f

    def side_blocks():
        A("L_ka_sidein:")
        A(f"s_cmp_eq_u32 s{S_JB}, 5")
        A("s_cbranch_scc1 L_ka_x4")
        A("L_ka_x4r:")
        A(f"s_cmp_ge_u32 s{S_JB}, 6")
        A("s_cbranch_scc1 L_ka_nodma")
        dma_block()
        A("L_ka_nodma:")
        A(f"s_bitcmp1_b32 0x7e, s{S_JB}")
        A("s_cbranch_scc1 L_ka_side")
        A("L_ka_nodma2:")
        A(f"s_cmp_eq_u32 s{S_KH}, 0")
        A("s_cbranch_scc1 L_ka_ret0")
        A("s_branch L_ka_ret1")
        A("L_ka_x4:")
        A(f"s_cmp_lg_u32 s{S_W}, s{S_POLL}")
        A("s_cbranch_scc1 L_ka_x4r")
        A("v_lshlrev_b32 v235, 2, v2")
        A("buffer_load_dword v235, v235, s[56:59], 0 offen sc1")
        A("s_branch L_ka_x4r")
        A("L_ka_side:")
        for jb in (3, 4, 5, 6):
            A(f"s_cmp_eq_u32 s{S_JB}, {jb}")
            A(f"s_cbranch_scc1 L_ka_s{jb}")
        A(f"s_cmp_lg_u32 s{S_W}, 1")
        A("s_cbranch_scc1 L_ka_nodma2")
        A(f"s_and_b32 s{S_T1}, s{S_TB}, 1")
        A(f"s_add_u32 s{S_T1}, s{S_T1}, 1")
        A(f"s_cmp_lg_u32 s{S_T1}, s{S_JB}")
        A("s_cbranch_scc1 L_ka_nodma2")
        A(f"s_lshl_b32 s{S_T1}, 0x101, s{S_TB}")
        A(f"v_mov_b32 v9, s{S_T1}")
        A("v_mov_b32 v11, 0")
        A("s_mov_b64 exec, 1")
        A("buffer_atomic_or v9, v11, s[56:59], s63 offen sc1")
        A("s_mov_b64 exec, -1")
        A("s_branch L_ka_nodma2")
        A("L_ka_s3:")
        wo_stage(0)
        A("s_branch L_ka_nodma2")
        A("L_ka_s4:")
        wo_stage(3, warm=True)
        A("s_branch L_ka_nodma2")
        A("L_ka_s5:")
        wo_stage(1)
        A("s_branch L_ka_nodma2")
        A("L_ka_s6:")
        wo_stage(2)
        A(f"s_cmp_lg_u32 s{S_W}, s{S_POLL}")
        A("s_cbranch_scc1 L_ka_nodma2")
        A("v_bfe_u32 v235, v235, 8, 8")
        A("v_mov_b32 v9, 0xff")
        A("v_cmp_eq_u32 vcc, v235, v9")
        A(f"v_mov_b32 v9, {CNT_ADDR}")
        A("v_mov_b32 v11, 1")
        A("s_nop 3")
        A(f"s_and_b32 s{S_T0}, vcc_lo, vcc_hi")
        A(f"s_and_b32 s{S_T0}, s{S_T0}, 0x55555555")
        A(f"s_cmp_lg_u32 s{S_T0}, 0x55555555")
        A("s_cbranch_scc1 L_ka_nodma2")
        A(f"ds_write_b32 v9, v11 offset:{REGOK_OFF}")
        A("s_branch L_ka_nodma2")

    A("s_load_dwordx2 s[4:5], s[0:1], 16")
    A("s_load_dwordx2 s[6:7], s[0:1], 40")
    A("s_load_dwordx2 s[28:29], s[0:1], 56")
    A("v_lshrrev_b32 v236, 2, v2")
    A("v_mul_u32_u24 v236, 896, v236")
    A("v_and_b32 v237, 3, v2")
    A("v_lshl_add_u32 v236, v237, 4, v236")
    A("v_add_u32 v237, 64, v236")
    A("s_waitcnt lgkmcnt(0)")
    srd(A, 12, 4, 401408)
    srd(A, 16, 6, 401408)
    srd(A, 52, 28, 1835008)

    A.stamp()
    if DT:
        A("s_memrealtime s[72:73]")
        A("s_waitcnt lgkmcnt(0)")
    A(f"s_mov_b32 s{S_JB}, 0")
    iteration(0, 2, prio=1)
    iteration(1, 3, prio=0, mid=next_vb)
    A(".p2align 6")
    A("L_ka_loop:")
    LST = STAMP and opt("lst", 0)
    if LST:
        A("s_memtime s[94:95]")
        A(f"s_mov_b32 m0, s{S_JB}")
        A("s_waitcnt lgkmcnt(0)")
        A(f"v_writelane_b32 v232, s94, m0")
    A(f"s_cmp_ge_u32 s{S_JB}, 7")
    A("s_cbranch_scc1 L_ka_w0")
    A("s_waitcnt vmcnt(4)")
    A("s_barrier")
    A("L_ka_w1:")
    if LST:
        A("s_memtime s[94:95]")
        A(f"s_add_u32 m0, s{S_JB}, 16")
        A("s_waitcnt lgkmcnt(0)")
        A(f"v_writelane_b32 v232, s94, m0")
    p0, p1 = opt("p0", 0), opt("p1", 1)
    mids = [None, None, None]
    if p0 == p1:
        mids[p0] = lambda: (side_call(0)(), side_call(1)())
    else:
        mids[p0] = side_call(0)
        mids[p1] = side_call(1)
    iteration(2, 0, prio=3, mid=mids[0])
    iteration(3, 1, prio=2, mid=mids[1])
    iteration(4, 2, prio=1, mid=mids[2])
    iteration(5, 3, prio=0, mid=next_vb)
    A(f"s_cmp_lt_u32 s{S_JB}, 8")
    A("s_cbranch_scc1 L_ka_loop")

    def tail_addr():
        A(f"s_add_u32 s{S_T0}, s{S_LW}, 98304")
        A(f"v_add_u32 v8, s{S_T0}, v1")
        A(f"s_xor_b32 s{S_T0}, s{S_T0}, 16384")
        A(f"v_add_u32 v9, s{S_T0}, v1")
        A("v_lshlrev_b32 v7, 2, v2")
        A(f"s_lshl_b32 s{S_T1}, s{S_W}, 8")
        A(f"s_add_u32 s{S_T0}, s{S_T1}, {MX_ADDR}")
        A(f"v_add_u32 v11, s{S_T0}, v7")
        A(f"s_xor_b32 s{S_T1}, s{S_T1}, 1024")
        A(f"s_add_u32 s{S_T1}, s{S_T1}, {MX_ADDR}")
        A(f"v_add_u32 v7, s{S_T1}, v7")
        A(f"ds_write_b32 v11, v{MREF[0]}")
        A(f"s_mov_b32 s66, 0")

    iteration(30, None, True, prio=1, mid=tail_addr)
    iteration(31, None, False, prio=0)
    for r4 in range(4):
        A(f"ds_write_b128 v8, {vr(O[0]+4*r4,4)} offset:{r4*1024}")
    A(smfmac(O[1], VF[31 % 4] + 4, S[3] + 8, IDX))
    A.stamp()
    if DT:
        A("s_memrealtime s[74:75]")
        A("s_waitcnt lgkmcnt(0)")
    A("s_waitcnt lgkmcnt(0)")
    A("s_barrier")
    A(f"ds_read_b32 v{MREF[0]}, v7")
    for r4 in (3, 0, 1, 2):
        A(f"ds_read_b128 {vr(O[0]+4*r4,4)}, v9 offset:{r4*1024}")
    A(f"v_mov_b32 v235, {CNT_ADDR}")
    A(f"ds_read_b32 v235, v235 offset:{REGOK_OFF}")
    wo_stage(3)
    A("s_waitcnt lgkmcnt(4)")
    OK_, OO = O[1], O[0]
    F1, F2 = T + 1, T + 2
    A(f"v_max_f32 v{T}, v{MREF[0]}, v{MREF[1]}")
    A(f"v_sub_f32 v{F1}, v{MREF[1]}, v{T}")
    A(f"v_sub_f32 v{F2}, v{MREF[0]}, v{T}")
    A(f"v_exp_f32 v{F1}, v{F1}")
    A(f"v_exp_f32 v{F2}, v{F2}")
    A("L_ka_fin:")
    A("s_nop 0")
    A(f"v_mul_f32 v{T+3}, v{OK_+12}, v{F1}")
    A(f"v_fmac_f32 v{T+3}, v{OO+12}, v{F2}")
    A(f"v_mov_b32 v{T+4}, v{T+3}")
    A("s_nop 1")
    A(f"v_permlane32_swap_b32 v{T+3}, v{T+4}")
    A("s_nop 1")
    A(f"v_rcp_f32 v{T+4}, v{T+4}")
    A("s_nop 0")
    A(f"v_mul_f32 v{T+4}, v{T+4}, v{GB[1]}")
    A(f"v_mul_f32 v{F1}, v{F1}, v{T+4}")
    A(f"v_mul_f32 v{F2}, v{F2}, v{T+4}")
    A("s_waitcnt lgkmcnt(0)")
    R = S[1]
    for r in range(16):
        A(f"v_mul_f32 v{R+r}, v{OK_+r}, v{F1}")
        A(f"v_fmac_f32 v{R+r}, v{OO+r}, v{F2}")
    for i in range(8):
        A(f"v_cvt_pk_bf16_f32 v{S[0]+i}, v{R+2*i}, v{R+2*i+1}")
    A(f"v_maximum3_f32 v{T+3}, abs(v{R}), abs(v{R+1}), abs(v{R+2})")
    for r in range(3, 15, 2):
        A(f"v_maximum3_f32 v{T+3}, v{T+3}, abs(v{R+r}), abs(v{R+r+1})")
    A(f"v_maximum3_f32 v{T+3}, v{T+3}, abs(v{R+15}), abs(v{R+15})")
    A("s_mov_b32 s65, 0x7f000000")
    A(f"v_cmp_nlt_f32 vcc, v{T+3}, s65")
    A("s_cmp_lg_u32 s66, 0")
    A("s_cbranch_scc1 L_ka_st")
    A("s_nop 2")
    A("s_cmp_lg_u64 vcc, 0")
    A("s_cbranch_scc1 L_ka_slow")
    A("L_ka_st:")
    A("s_mov_b32 exec_lo, 0")
    A(f"v_mov_b32 v{S[0]+6}, 0")
    A(f"v_mov_b32 v{S[0]+7}, 0")
    A("s_mov_b32 exec_lo, -1")
    A(f"buffer_store_dwordx4 {vr(S[0],4)}, v1, s[24:27], s64 offen sc1")
    A(f"buffer_store_dwordx4 {vr(S[0]+4,4)}, v1, s[24:27], s64 offen offset:1024 sc1")
    ACC = [16, 32]
    AB3 = 64
    WF3 = [136, 144]
    A(f"v_readfirstlane_b32 s{S_T0}, v235")
    A("v_add_u32 v238, 1, v233")
    A(f"s_lshl_b32 s{S_T1}, s{S_KQ}, 2")
    A(f"s_lshr_b32 s{S_T1}, 0x1204, s{S_T1}")
    A(f"s_and_b32 s{S_T1}, s{S_T1}, 15")
    A(f"s_lshl_b32 s{S_T1}, s{S_T1}, 15")
    A("v_bfe_u32 v9, v2, 2, 2")
    A("v_lshlrev_b32 v7, 6, v9")
    A("v_bfe_u32 v9, v2, 4, 1")
    A("v_lshl_add_u32 v7, v9, 5, v7")
    A("v_and_b32 v9, 3, v2")
    A("v_lshl_add_u32 v7, v9, 3, v7")
    A(f"v_add_u32 v7, s{S_T1}, v7")
    A("v_lshl_add_u32 v8, v4, 8, v7")
    for r in range(32):
        A(f"v_mov_b32 v{16+r}, 0")
    A(f"s_lshl_b32 s{S_T2}, s{S_QC}, 16")
    A(f"s_lshl_b32 s{S_T1}, s{S_KQ}, 14")
    A(f"s_add_u32 s{S_T2}, s{S_T2}, s{S_T1}")
    A(f"s_add_u32 s{S_T2}, s{S_T2}, {OF_OFF}")
    A(f"s_cmp_lg_u32 s{S_T0}, 0")
    A("s_cbranch_scc0 L_ka_regspin")
    A("L_ka_regok:")
    A("s_waitcnt vmcnt(0)")
    A.stamp()
    A("s_mov_b64 exec, 1")
    A("buffer_store_dword v238, v234, s[24:27], s11 offen sc1")
    A("s_mov_b64 exec, -1")
    A(f"s_cmp_ge_u32 s{S_TB}, 7")
    A("s_cbranch_scc1 L_ka_done")
    A("s_barrier")
    A(f"s_mov_b32 s{S_SPIN}, 0")
    A(f"v_mov_b32 v10, {CNT_ADDR}")
    A(f"s_and_b32 s{S_T3}, s{S_W}, 1")
    A(f"s_lshl_b32 s{S_T3}, s{S_T3}, 5")
    A(f"s_lshl_b32 s{S_T4}, s{S_KQ}, 3")
    A(f"s_add_u32 s{S_T3}, s{S_T3}, s{S_T4}")
    A(f"s_cmp_lg_u32 s{S_W}, 0")
    A("s_cbranch_scc1 L_ka_p3lds")
    A("L_ka_p3spin:")
    A("buffer_load_dword v9, v239, s[24:27], s11 offen sc1")
    A("s_waitcnt vmcnt(0)")
    A("v_cmp_ne_u32 vcc, v9, v240")
    A(f"s_add_u32 s{S_SPIN}, s{S_SPIN}, 1")
    A("s_nop 3")
    A("v_mov_b32 v12, vcc_lo")
    A("v_mov_b32 v13, vcc_hi")
    A("ds_write_b64 v10, v[12:13] offset:80")
    A("s_cmp_eq_u64 vcc, -1")
    A("s_cbranch_scc1 L_ka_p3go")
    A(f"s_cmp_ge_u32 s{S_SPIN}, 0x40000")
    A("s_cbranch_scc1 L_ka_p3go")
    A(f"s_sleep {opt('sleep3', 4)}")
    A("s_branch L_ka_p3spin")
    A("L_ka_p3lds:")
    A("ds_read_b64 v[12:13], v10 offset:80")
    A("s_waitcnt lgkmcnt(0)")
    A("v_readfirstlane_b32 s4, v12")
    A("v_readfirstlane_b32 s5, v13")
    A(f"s_add_u32 s{S_SPIN}, s{S_SPIN}, 1")
    A("s_nop 1")
    A(f"s_lshr_b64 s[4:5], s[4:5], s{S_T3}")
    A("s_and_b32 s4, s4, 0xff")
    A("s_cmp_eq_u32 s4, 0xff")
    A("s_cbranch_scc1 L_ka_p3go")
    A(f"s_cmp_ge_u32 s{S_SPIN}, 0x400000")
    A("s_cbranch_scc1 L_ka_p3go")
    A("s_sleep 1")
    A("s_branch L_ka_p3lds")
    A("L_ka_p3go:")
    A.stamp()
    for ks in range(16):
        if ks and ks % 4 == 0:
            A(f"s_add_u32 s{S_T2}, s{S_T2}, 4096")
        A(f"buffer_load_dwordx4 {vr(AB3+4*ks,4)}, v1, s[24:27], s{S_T2} offen offset:{(ks%4)*1024} sc1")

    def tr3(ks, st):
        for ct in range(2):
            for tp in range(2):
                hd, s_ = divmod(ks, 2)
                base = "v7" if (s_ == 1 and tp == 1) else "v8"
                A(f"ds_read_b64_tr_b16 {vr(WF3[st]+4*ct+2*tp,2)}, {base} offset:{ct*14336 + (28*hd + 16*s_ + 8*tp)*64}")

    tr3(0, 0)
    A(f"s_lshl_b32 s{S_T0}, s{S_W}, 13")
    A(f"s_and_b32 s{S_T1}, s{S_W}, 1")
    A(f"s_lshl_b32 s{S_T0}, s{S_T1}, 15")
    A(f"s_lshl_b32 s{S_T3}, s{S_KQ}, 13")
    A(f"s_add_u32 s{S_T3}, s{S_T3}, s{S_T0}")
    A(f"v_add_u32 v10, s{S_T3}, v1")
    A(f"s_and_b32 s{S_T3}, s{S_KQ}, 1")
    A(f"s_lshr_b32 s{S_T4}, s{S_KQ}, 1")
    A(f"s_lshl_b32 s{S_T1}, s{S_T3}, 12")
    A(f"s_add_u32 s{S_T0}, s{S_T0}, s{S_T1}")
    A(f"s_lshl_b32 s{S_T1}, s{S_T4}, 11")
    A(f"s_add_u32 s{S_T0}, s{S_T0}, s{S_T1}")
    A(f"v_add_u32 v11, s{S_T0}, v1")
    A("v_mul_u32_u24 v12, 896, v3")
    A("v_lshl_add_u32 v12, v4, 4, v12")
    A(f"s_mul_i32 s{S_T0}, s{S_QC}, 28672")
    A(f"s_lshl_b32 s{S_T1}, s{S_CB}, 7")
    A(f"s_add_u32 s{S_T0}, s{S_T0}, s{S_T1}")
    A(f"s_lshl_b32 s{S_T1}, s{S_T3}, 6")
    A(f"s_add_u32 s{S_T0}, s{S_T0}, s{S_T1}")
    A(f"s_lshl_b32 s{S_T1}, s{S_T4}, 5")
    A(f"s_add_u32 s{S_T0}, s{S_T0}, s{S_T1}")
    for ks in range(16):
        st = ks % 2
        if ks < 15:
            tr3(ks + 1, 1 - st)
            A(f"s_waitcnt vmcnt({15-ks}) lgkmcnt(4)")
        else:
            A("s_waitcnt vmcnt(0) lgkmcnt(0)")
        for ct in range(2):
            A(mfma(ACC[ct], WF3[st] + 4 * ct, AB3 + 4 * ks, ACC[ct]))
    A.stamp()
    A("s_barrier")
    A("s_nop 7")
    A("s_nop 3")
    for ct in range(2):
        for r4 in range(4):
            A(f"ds_write_b128 v10, {vr(ACC[ct]+4*r4,4)} offset:{ct*4096+r4*1024}")
    A("s_waitcnt lgkmcnt(0)")
    A("s_barrier")
    for k in range(4):
        for h2 in range(2):
            A(f"ds_read_b128 {vr(AB3+8*k+4*h2,4)}, v11 offset:{k*8192+h2*1024}")
    A("s_waitcnt lgkmcnt(4)")
    for r in range(8):
        A(f"v_add_f32 v{AB3+r}, v{AB3+r}, v{AB3+8+r}")
    A("s_waitcnt lgkmcnt(0)")
    for r in range(8):
        A(f"v_add_f32 v{AB3+16+r}, v{AB3+16+r}, v{AB3+24+r}")
    for r in range(8):
        A(f"v_add_f32 v{AB3+r}, v{AB3+r}, v{AB3+16+r}")
    for i in range(4):
        A(f"v_cvt_pk_bf16_f32 v{16+i}, v{AB3+2*i}, v{AB3+2*i+1}")
    A("s_nop 1")
    A("v_permlane32_swap_b32 v16, v18")
    A("v_permlane32_swap_b32 v17, v19")
    A("s_nop 1")
    A(f"buffer_store_dwordx4 v[16:19], v12, s[52:55], s{S_T0} offen")
    A("L_ka_done:")
    if DT:
        A("s_waitcnt vmcnt(0)")
        A("s_memrealtime s[76:77]")
        A(f"s_cmp_lg_u32 s{S_W}, 0")
        A("s_waitcnt lgkmcnt(0)")
        A("s_cbranch_scc1 L_ka_end")
        A("s_mov_b64 exec, 1")
        A("v_mov_b32 v0, 0")
        A("s_not_b32 s78, s70")
        for off, sr in ((4, 76), (12, 78), (20, 72), (28, 74), (36, 70)):
            A(f"v_mov_b32 v1, s{sr}")
            A(f"buffer_atomic_umax v1, v0, s[56:59], 0 offen offset:{off} sc1")
            A("s_nop 1")
    if STAMP:
        A("s_mov_b64 exec, -1")
        A(f"s_mul_i32 s67, s2, 8")
        A(f"s_add_u32 s67, s67, s{S_W}")
        A("s_lshl_b32 s67, s67, 8")
        A(f"s_add_u32 s67, s67, {STAMP_OFF + 2*(1<<20)}")
        A("v_lshlrev_b32 v0, 2, v2")
        A("v_mov_b32 v1, s68")
        A("v_sub_u32 v232, v232, v1")
        A("buffer_store_dword v232, v0, s[24:27], s67 offen")
    A.stamp_flush(0, S_W, 8)
    A("L_ka_end:")
    A("s_endpgm")
    A("L_ka_w0:")
    A("s_waitcnt vmcnt(0)")
    A("s_barrier")
    A("s_branch L_ka_w1")
    side_blocks()
    A("L_ka_regspin:")
    A(f"s_mov_b32 s{S_SPIN}, 0")
    A("L_ka_regspin2:")
    A("v_lshlrev_b32 v235, 2, v2")
    A("buffer_load_dword v235, v235, s[56:59], 0 offen sc1")
    A("v_mov_b32 v9, 0xff")
    A("s_waitcnt vmcnt(0)")
    A("v_bfe_u32 v235, v235, 8, 8")
    A("v_cmp_eq_u32 vcc, v235, v9")
    A(f"s_add_u32 s{S_SPIN}, s{S_SPIN}, 1")
    A("s_nop 3")
    A(f"s_and_b32 s{S_T0}, vcc_lo, vcc_hi")
    A(f"s_and_b32 s{S_T0}, s{S_T0}, 0x55555555")
    A(f"s_cmp_eq_u32 s{S_T0}, 0x55555555")
    A("s_cbranch_scc1 L_ka_regok")
    A(f"s_cmp_ge_u32 s{S_SPIN}, 0x40000")
    A("s_cbranch_scc1 L_ka_regok")
    A("s_sleep 8")
    A("s_branch L_ka_regspin2")
    A("L_ka_slow:")
    M = T + 5
    s0 = S[0]
    A("s_waitcnt vmcnt(0) lgkmcnt(0)")
    for r in range(16):
        A(f"v_mov_b32 v{OK_+r}, 0")
        A(f"v_mov_b32 v{OO+r}, 0")
    A(f"v_mov_b32 v{M}, 0xff7fffff")
    A("L_ka_slow_loop:")
    A(f"buffer_load_dwordx4 {vr(KF[0],4)}, v1, s[20:23], s66 offen sc1")
    A(f"buffer_load_dwordx4 {vr(KF[0]+4,4)}, v1, s[20:23], s66 offen offset:1024 sc1")
    A(f"buffer_load_dwordx4 {vr(VF[0],4)}, v1, s[20:23], s66 offen offset:2048 sc1")
    A(f"buffer_load_dwordx4 {vr(VF[0]+4,4)}, v1, s[20:23], s66 offen offset:3072 sc1")
    A("s_waitcnt vmcnt(0)")
    A(mfma(s0, KF[0], QF[1], None))
    A(mfma(s0, KF[0] + 4, QF[1] + 4, s0))
    A("s_nop 15")
    A("s_nop 3")
    A(f"v_max3_f32 v{T}, v{s0}, v{s0+1}, v{s0+2}")
    for r in range(3, 15, 2):
        A(f"v_max3_f32 v{T}, v{T}, v{s0+r}, v{s0+r+1}")
    A(f"v_max_f32 v{T}, v{T}, v{s0+15}")
    A(f"v_mov_b32 v{T+1}, v{T}")
    A("s_nop 1")
    A(f"v_permlane32_swap_b32 v{T}, v{T+1}")
    A("s_nop 1")
    A(f"v_max3_f32 v{T}, v{T}, v{T+1}, v{M}")
    A(f"v_sub_f32 v{T+1}, v{M}, v{T}")
    A(f"v_exp_f32 v{T+1}, v{T+1}")
    A(f"v_mov_b32 v{M}, v{T}")
    for r in range(16):
        A(f"v_sub_f32 v{s0+r}, v{s0+r}, v{T}")
    for r in range(16):
        A(f"v_exp_f32 v{s0+r}, v{s0+r}")
    for r in range(16):
        A(f"v_mul_f32 v{OK_+r}, v{OK_+r}, v{T+1}")
    A("s_nop 3")
    A(smfmac(OK_, VF[0], s0, IDX))
    A(smfmac(OK_, VF[0] + 4, s0 + 8, IDX))
    A("s_nop 15")
    A("s_nop 3")
    A("s_add_u32 s66, s66, 4096")
    A("s_cmp_lt_u32 s66, 262144")
    A("s_cbranch_scc1 L_ka_slow_loop")
    A(f"v_mov_b32 v{F1}, 1.0")
    A(f"v_mov_b32 v{F2}, 0")
    A("s_branch L_ka_fin")
    return A.text(), 248, 68


def gen_kb():
    A = Asm()
    ACC = [16, 32, 48, 64]
    WF = [80, 88]
    AB = 96
    A("s_cmp_ge_u32 s2, 224")
    A("s_cbranch_scc1 L_k3_end")
    A.stamp()
    A("s_load_dwordx2 s[4:5], s[0:1], 16")
    A("s_load_dwordx2 s[6:7], s[0:1], 40")
    A("s_load_dwordx2 s[8:9], s[0:1], 56")
    A("s_load_dwordx2 s[28:29], s[0:1], 72")
    A("s_and_b32 s30, s2, 7")
    A("s_lshr_b32 s31, s2, 3")
    A("s_and_b32 s32, s31, 3")
    A("s_lshl_b32 s30, s30, 2")
    A("s_add_u32 s32, s32, s30")
    A("s_lshr_b32 s33, s31, 2")
    A("v_lshrrev_b32 v1, 6, v0")
    A("v_and_b32 v2, 63, v0")
    A("v_readfirstlane_b32 s35, v1")
    A("v_lshlrev_b32 v1, 4, v2")
    A("v_lshrrev_b32 v3, 2, v2")
    A("v_and_b32 v4, 3, v2")
    A("v_mul_u32_u24 v5, 896, v3")
    A("v_lshl_add_u32 v5, v4, 4, v5")
    A("v_add_u32 v6, 64, v5")
    A("v_lshrrev_b32 v7, 5, v2")
    A("v_and_b32 v8, 31, v2")
    A("s_mul_i32 s41, s35, 28672")
    A("v_lshlrev_b32 v9, 9, v7")
    A("v_bfe_u32 v10, v2, 2, 2")
    A("v_lshl_add_u32 v9, v10, 6, v9")
    A("v_bfe_u32 v10, v2, 4, 1")
    A("v_lshl_add_u32 v9, v10, 5, v9")
    A("v_lshl_add_u32 v9, v4, 3, v9")
    A("v_add_u32 v9, s41, v9")
    A("s_and_b32 s36, s35, 1")
    A("s_mul_i32 s36, s36, 200704")
    A("s_lshl_b32 s37, s33, 7")
    A("s_add_u32 s36, s36, s37")
    A("s_mul_i32 s38, s32, 114688")
    A("s_mul_i32 s39, s35, 14336")
    A("s_add_u32 s38, s38, s39")
    A(f"s_add_u32 s38, s38, {OF_OFF}")
    A("s_and_b32 s48, s32, 3")
    A("s_lshl_b32 s48, s48, 2")
    A("s_lshr_b32 s48, 0xa730, s48")
    A("s_and_b32 s48, s48, 15")
    A("s_lshl_b32 s49, s33, 1")
    A("s_add_u32 s48, s48, s49")
    A("s_cmp_ge_u32 s48, 14")
    A("s_cselect_b32 s49, 14, 0")
    A("s_sub_u32 s48, s48, s49")
    if not opt("rotb", 1):
        A("s_mov_b32 s48, 0")
    A("s_add_u32 s50, s38, 14336")
    A("s_mul_i32 s49, s48, 14336")
    A("s_add_u32 s36, s36, s49")
    A("s_lshl_b32 s49, s48, 10")
    A("s_add_u32 s38, s38, s49")
    A("s_add_u32 s39, s38, 57344")
    A("s_cmp_ge_u32 s35, 2")
    A("s_waitcnt lgkmcnt(0)")
    A("s_cselect_b32 s4, s6, s4")
    A("s_cselect_b32 s5, s7, s5")
    A.stamp()
    srd(A, 12, 4, 401408)
    srd(A, 16, 8, 1835008)
    srd(A, 24, 28, WS_USED)
    A("s_mov_b32 s42, s41")

    def loads(ks):
        A("s_mov_b32 m0, s42")
        A("s_add_u32 s42, s42, 1024")
        A("buffer_load_dwordx4 v5, s[12:15], s36 offen lds")
        A("s_mov_b32 m0, s42")
        A("s_add_u32 s42, s42, 1024")
        A("buffer_load_dwordx4 v6, s[12:15], s36 offen lds")
        A(f"buffer_load_dwordx4 {vr(AB+8*ks,4)}, v1, s[24:27], s38 offen")
        A(f"buffer_load_dwordx4 {vr(AB+8*ks+4,4)}, v1, s[24:27], s39 offen")
        if ks < 13:
            A("s_add_u32 s36, s36, 14336")
            A("s_add_u32 s38, s38, 1024")
            A("s_cmp_ge_u32 s38, s50")
            A("s_cselect_b32 s49, 14336, 0")
            A("s_cselect_b32 s51, 200704, 0")
            A("s_sub_u32 s38, s38, s49")
            A("s_sub_u32 s36, s36, s51")
            A("s_add_u32 s39, s38, 57344")

    D = opt("bd", 6)
    for ks in range(D):
        loads(ks)
    A.stamp()
    for r in range(16, 80):
        A(f"v_mov_b32 v{r}, 0")

    def trreads(ks, st):
        for ct in range(2):
            for tp in range(2):
                A(f"ds_read_b64_tr_b16 {vr(WF[st]+4*ct+2*tp,2)}, v9 offset:{(ks*2+ct)*1024+tp*256}")

    A(f"s_waitcnt vmcnt({4*(D-1)})")
    A.stamp()
    trreads(0, 0)
    for ks in range(14):
        st = ks % 2
        if ks + D < 14:
            loads(ks + D)
        if ks < 13:
            A(f"s_waitcnt vmcnt({4*(min(13, ks+D)-(ks+1))})")
            trreads(ks + 1, 1 - st)
            A("s_waitcnt lgkmcnt(4)")
        else:
            A("s_waitcnt lgkmcnt(0)")
        for ti in range(2):
            for ct in range(2):
                A(mfma(ACC[ti * 2 + ct], WF[st] + 4 * ct, AB + 8 * ks + 4 * ti, ACC[ti * 2 + ct]))
    A.stamp()
    A("v_add_u32 v10, s41, v1")
    A("s_lshl_b32 s43, s35, 12")
    A("v_add_u32 v11, s43, v1")
    A("v_mul_u32_u24 v12, 896, v8")
    A("v_lshl_add_u32 v12, v7, 4, v12")
    A("s_lshr_b32 s44, s35, 1")
    A("s_and_b32 s45, s35, 1")
    A("s_lshl_b32 s46, s32, 1")
    A("s_add_u32 s46, s46, s44")
    A("s_mul_i32 s46, s46, 28672")
    A("s_lshl_b32 s47, s33, 7")
    A("s_add_u32 s46, s46, s47")
    A("s_lshl_b32 s45, s45, 6")
    A("s_add_u32 s46, s46, s45")
    A("s_nop 7")
    for tile in range(4):
        for r4 in range(4):
            A(f"ds_write_b128 v10, {vr(ACC[tile]+4*r4,4)} offset:{tile*4096+r4*1024}")
    A("s_waitcnt lgkmcnt(0)")
    A.stamp()
    A("s_barrier")
    A.stamp()
    for w in range(4):
        for r4 in range(4):
            off = w * 28672 + r4 * 1024
            if off < 65536:
                A(f"ds_read_b128 {vr(AB+16*w+4*r4,4)}, v11 offset:{off}")
            else:
                if r4 == 0:
                    A("v_add_u32 v13, 65536, v11")
                A(f"ds_read_b128 {vr(AB+16*w+4*r4,4)}, v13 offset:{off-65536}")
    A("s_waitcnt lgkmcnt(8)")
    for r in range(16):
        A(f"v_add_f32 v{AB+r}, v{AB+r}, v{AB+16+r}")
    A("s_waitcnt lgkmcnt(0)")
    for r in range(16):
        A(f"v_add_f32 v{AB+32+r}, v{AB+32+r}, v{AB+48+r}")
    for r in range(16):
        A(f"v_add_f32 v{AB+r}, v{AB+r}, v{AB+32+r}")
    for i in range(8):
        A(f"v_cvt_pk_bf16_f32 v{16+i}, v{AB+2*i}, v{AB+2*i+1}")
    A("s_nop 1")
    A("v_permlane32_swap_b32 v16, v18")
    A("v_permlane32_swap_b32 v17, v19")
    A("v_permlane32_swap_b32 v20, v22")
    A("v_permlane32_swap_b32 v21, v23")
    A("s_nop 1")
    A("buffer_store_dwordx4 v[16:19], v12, s[16:19], s46 offen")
    A("buffer_store_dwordx4 v[20:23], v12, s[16:19], s46 offen offset:32")
    A.stamp()
    A.stamp_flush(1, 35, 4)
    A("L_k3_end:")
    A("s_endpgm")
    return A.text(), 208, 56


HEADER = """; Kernarg layout for this problem (80 bytes, ptrs only, base s[0:1]):
"""


def main(outpath):
    name = NAME + "_kernel"
    body, nv, ns = gen_ka()
    out = HEADER
    out += "; @launch grid=(256,1,1) block=(512,1,1) lds=163840\n"
    out += '.amdgcn_target "amdgcn-amd-amdhsa--gfx950"\n.text\n'
    out += f".globl {name}\n.p2align 8\n.type {name},@function\n{name}:\n{body}"
    out += '.section .rodata,"a"\n'
    out += f""".p2align 6
.amdhsa_kernel {name}
  .amdhsa_next_free_vgpr {nv}
  .amdhsa_next_free_sgpr {102 if (STAMP or opt('dbgtime', 0)) else ns}
  .amdhsa_accum_offset {(nv+3)//4*4}
  .amdhsa_group_segment_fixed_size 0
  .amdhsa_kernarg_size 80
  .amdhsa_user_sgpr_count 2
  .amdhsa_user_sgpr_kernarg_segment_ptr 1
  .amdhsa_system_sgpr_workgroup_id_x 1
.end_amdhsa_kernel
"""
    open(outpath, "w").write(out)


if __name__ == "__main__":
    main(sys.argv[1] if len(sys.argv) > 1 else f"cdna_kernels/{NAME}.s")
```

```python
import struct, math, sys, os

NAME = "gated_mix__softmax_full_mha__softmax_full_mha__prompt"

KVF_OFF = 0
OF_OFF = 8 << 20
WI_OFF = 13 << 20
FL_OFF = 12 << 20
WS_USED = 24 << 20
STAMP_OFF = 20 << 20
STAMP = bool(os.environ.get("STAMP"))
OPT = dict(kv.split("=") for kv in os.environ.get("OPT", "").split(",") if kv)


def opt(name, default):
    return type(default)(OPT.get(name, default))


def f32bits(x):
    return struct.unpack("<I", struct.pack("<f", x))[0]


LOG2E = math.log2(math.e)
QSCALE = (28 ** -0.5) * LOG2E


class Asm:
    def __init__(self):
        self.lines = []
        self.nst = 0

    def __call__(self, s):
        for ln in s.strip("\n").split("\n"):
            self.lines.append("    " + ln.strip() if not ln.strip().endswith(":") else ln.strip())

    def text(self):
        return "\n".join(self.lines) + "\n"

    def stamp(self):
        if not STAMP:
            return
        k = self.nst
        self.nst += 1
        assert k < 14
        if k == 0:
            self("s_memrealtime s[96:97]")
        self(f"s_memtime s[{68+2*k}:{69+2*k}]")
        self("s_waitcnt lgkmcnt(0)")

    def stamp_flush(self, kidx, wave_sgpr, nwaves, srd="s[24:27]"):
        if not STAMP:
            return
        self("s_waitcnt vmcnt(0)")
        self("s_memtime s[98:99]")
        self("s_memrealtime s[100:101]")
        self("s_waitcnt lgkmcnt(0)")
        self("s_mov_b64 exec, 1")
        self(f"s_mul_i32 s67, s2, {nwaves}")
        self(f"s_add_u32 s67, s67, s{wave_sgpr}")
        self("s_lshl_b32 s67, s67, 7")
        self(f"s_add_u32 s67, s67, {STAMP_OFF + kidx*(1<<20)}")
        self("v_mov_b32 v0, 0")
        regs = [96, 100, 98] + [68 + 2 * k for k in range(self.nst)]
        for i, r in enumerate(regs):
            self(f"v_mov_b32 v1, s{r}")
            self(f"buffer_store_dword v1, v0, {srd}, s67 offen offset:{4*i}")
            self("s_nop 1")


def vr(a, n):
    return f"v[{a}:{a+n-1}]"


def srd(A, d, base, nbytes):
    A(f"s_mov_b32 s{d}, s{base}")
    A(f"s_mov_b32 s{d+1}, s{base+1}")
    A(f"s_mov_b32 s{d+2}, {nbytes}")
    A(f"s_mov_b32 s{d+3}, 0x00020000")


def mfma(d, a, b, c):
    cs = vr(c, 16) if c is not None else "0"
    return f"v_mfma_f32_32x32x16_bf16 {vr(d,16)}, {vr(a,4)}, {vr(b,4)}, {cs}"


def smfmac(d, a, b, idx):
    return f"v_smfmac_f32_32x32x32_bf16 {vr(d,16)}, {vr(a,4)}, {vr(b,8)}, v{idx}"


S_BH, S_TB, S_H, S_W, S_TT, S_ROT = 32, 33, 34, 35, 36, 37
S_WOFF, S_XOFF, S_T0, S_T1, S_T2 = 38, 39, 40, 41, 42
S_KH, S_QP, S_JB, S_FLAGS, S_GS, S_GO = 43, 44, 45, 46, 47, 48
S_LW, S_T3, S_T4 = 49, 50, 51
S_NEXT = 60
S_SPIN = 61
S_REM = 62
S_FL = 3
S_POLL = 65
S_A = 66

WIMG = 65536
CNT_ADDR = 159744
MX_ADDR = CNT_ADDR + 1024
REGOK_OFF = 68
FO_OFF = (12 << 20) + 65536
S_CB, S_QC, S_KQ = 8, 9, 10
FLAGW = CNT_ADDR + 64
WRDY = CNT_ADDR + 68
SNAPL = CNT_ADDR + 128
SLOT_OF_BLOCK = [0, 2, 3, 1, 0, 2, 3, 1]
VSNAP = 224


def gen_ka():
    A = Asm()
    A("s_cmp_ge_u32 s2, 256")
    A("s_cbranch_scc1 L_ka_end")
    A.stamp()
    DT = opt("dbgtime", 0)
    if DT:
        A("s_memrealtime s[70:71]")
    A("s_load_dwordx4 s[4:7], s[0:1], 0")
    A("s_load_dwordx2 s[8:9], s[0:1], 32")
    A("s_load_dwordx2 s[10:11], s[0:1], 48")
    A("s_load_dwordx4 s[28:31], s[0:1], 64")
    A("v_lshrrev_b32 v1, 6, v0")
    A("v_and_b32 v2, 63, v0")
    A(f"v_readfirstlane_b32 s{S_W}, v1")
    A(f"s_and_b32 s{S_T0}, s2, 7")
    A(f"s_lshr_b32 s{S_T1}, s2, 3")
    A(f"s_and_b32 s{S_A}, s{S_T1}, 3")
    A(f"s_lshl_b32 s{S_BH}, s{S_T0}, 2")
    A(f"s_add_u32 s{S_BH}, s{S_BH}, s{S_A}")
    A(f"s_lshr_b32 s{S_TB}, s{S_T1}, 2")
    A(f"s_and_b32 s{S_H}, s{S_BH}, 15")
    rm = opt("rot", 3)
    if rm == 3:
        A(f"s_add_u32 s{S_ROT}, s{S_TB}, s{S_T0}")
        A(f"s_cmp_ge_u32 s{S_ROT}, 7")
        A(f"s_cselect_b32 s{S_T1}, 7, 0")
        A(f"s_sub_u32 s{S_ROT}, s{S_ROT}, s{S_T1}")
    elif rm == 0:
        A(f"s_lshl_b32 s{S_ROT}, s{S_A}, 1")
        A(f"s_add_u32 s{S_ROT}, s{S_ROT}, s{S_T0}")
    elif rm == 1:
        A(f"s_mov_b32 s{S_ROT}, s{S_T0}")
    elif rm == 2:
        A(f"s_and_b32 s{S_ROT}, s{S_A}, 1")
        A(f"s_mul_i32 s{S_ROT}, s{S_ROT}, 3")
        A(f"s_add_u32 s{S_ROT}, s{S_ROT}, s{S_T0}")
    A(f"s_cmp_ge_u32 s{S_ROT}, 7")
    A(f"s_cselect_b32 s{S_T1}, 7, 0")
    A(f"s_sub_u32 s{S_ROT}, s{S_ROT}, s{S_T1}")
    A("v_lshlrev_b32 v1, 4, v2")
    A("v_and_b32 v3, 31, v2")
    A("v_lshrrev_b32 v4, 5, v2")
    A("v_lshrrev_b32 v5, 2, v3")
    A("v_and_b32 v6, 3, v2")
    A("v_mul_u32_u24 v7, 2688, v5")
    A("v_lshl_add_u32 v7, v6, 4, v7")
    A("v_mov_b32 v8, v7")
    A("v_mul_u32_u24 v9, 896, v4")
    A("v_add3_u32 v7, v7, v9, v9" if False else "v_add_u32 v7, v7, v9")
    A("v_add_u32 v7, 896, v7")
    A("v_lshrrev_b32 v5, 3, v2")
    A("v_mul_u32_u24 v9, 896, v5")
    A("v_and_b32 v5, 7, v2")
    A("v_lshrrev_b32 v11, 4, v2")
    A("v_xor_b32 v5, v5, v11")
    A("v_xor_b32 v11, 4, v5")
    A("v_lshl_add_u32 v10, v11, 4, v9")
    A("v_lshl_add_u32 v9, v5, 4, v9")
    A("v_lshlrev_b32 v225, 2, v3")
    A(f"s_lshl_b32 s{S_LW}, s{S_W}, 12")
    A(f"s_lshl_b32 s{S_TT}, s{S_TB}, 3")
    A(f"s_add_u32 s{S_TT}, s{S_TT}, s{S_W}")
    A(f"s_mul_i32 s{S_XOFF}, s{S_TT}, 28672")
    A(f"s_add_u32 s{S_T4}, s{S_XOFF}, 896")
    A(f"s_lshl_b32 s{S_T1}, s{S_ROT}, 7")
    A(f"s_add_u32 s{S_XOFF}, s{S_XOFF}, s{S_T1}")
    A(f"s_lshl_b32 s{S_FL}, s{S_BH}, 7")
    A(f"s_add_u32 s{S_FL}, s{S_FL}, {FL_OFF}")
    A(f"s_mov_b32 s{S_POLL}, 0")
    A(f"s_mul_i32 s{S_T0}, s{S_H}, 56")
    A(f"s_mul_i32 s{S_WOFF}, s{S_W}, 21504")
    A(f"s_add_u32 s{S_WOFF}, s{S_WOFF}, s{S_T0}")
    A(f"s_add_u32 s{S_T3}, s{S_WOFF}, {7*172032}")
    A(f"s_mul_i32 s{S_T1}, s{S_ROT}, 172032")
    A(f"s_add_u32 s{S_WOFF}, s{S_WOFF}, s{S_T1}")
    A(f"s_mul_i32 s{S_T2}, s{S_W}, 1536")
    A(f"s_add_u32 s{S_T2}, s{S_T2}, {WIMG}")
    A(f"s_cmp_ge_u32 s{S_BH}, 16")
    A("s_waitcnt lgkmcnt(0)")
    A("s_cselect_b32 s6, s8, s6")
    A("s_cselect_b32 s7, s9, s7")
    A.stamp()
    srd(A, 12, 4, 1835008)
    srd(A, 16, 6, 1204224)
    srd(A, 24, 30, WS_USED)

    XB = 88
    AK, AV, AQ = 16, 32, 48
    WF = [64, 76]

    def dma_x(c):
        for i in range(4):
            A(f"s_add_u32 m0, s{S_LW}, {(c%2)*32768 + i*1024}")
            if i == 0:
                A("s_nop 0")
                A(f"buffer_load_dwordx4 v9, s[12:15], s{S_XOFF} offen lds")
            else:
                A(f"s_add_u32 s{S_T1}, s{S_XOFF}, {i*7168}")
                A(f"buffer_load_dwordx4 v{9 + (i&1)}, s[12:15], s{S_T1} offen lds")
        A(f"s_add_u32 s{S_XOFF}, s{S_XOFF}, 128")
        A(f"s_cmp_ge_u32 s{S_XOFF}, s{S_T4}")
        A(f"s_cselect_b32 s{S_T1}, 896, 0")
        A(f"s_sub_u32 s{S_XOFF}, s{S_XOFF}, s{S_T1}")

    def read_x(c):
        for u in range(4):
            A(f"ds_read_b128 {vr(XB+16*c+4*u,4)}, v{200+u} offset:{(c%2)*32768}")

    def hx(c, vm):
        A(f"s_waitcnt vmcnt({vm})")
        read_x(c)
        if c + 2 < 7:
            A("s_waitcnt lgkmcnt(0)")
            dma_x(c + 2)

    def late_setup():
        srd(A, 56, 28, 256)
        A(f"s_lshl_b32 s{S_T1}, s{S_BH}, 18")
        A(f"s_add_u32 s20, s30, s{S_T1}")
        A("s_addc_u32 s21, s31, 0")
        A("s_mov_b32 s22, 262144")
        A("s_mov_b32 s23, 0x00020000")
        A(f"s_lshl_b32 s63, s{S_BH}, 3")
        A("v_bfe_u32 v5, v3, 1, 3")
        A("v_lshlrev_b32 v11, 2, v4")
        A("v_xor_b32 v5, v5, v11")
        A("v_lshlrev_b32 v11, 7, v3")
        A(f"v_add_u32 v11, s{S_LW}, v11")
        for u in range(4):
            A(f"v_xor_b32 v12, {u}, v5")
            A(f"v_lshl_add_u32 v{200+u}, v12, 4, v11")
        A("v_mul_u32_u24 v14, 6144, v4")
        A("v_bfe_u32 v15, v2, 2, 2")
        A("v_lshl_add_u32 v14, v15, 6, v14")
        A("v_bfe_u32 v15, v2, 4, 1")
        A("v_lshl_add_u32 v14, v15, 5, v14")
        A("v_lshl_add_u32 v14, v6, 3, v14")
        A(f"v_add_u32 v14, {WIMG}, v14")
        A("v_add_u32 v15, 49152, v14")
        A(f"s_lshr_b32 s{S_KH}, s{S_W}, 2")
        A(f"s_and_b32 s{S_QP}, s{S_W}, 3")
        A(f"s_cmp_ge_u32 s{S_BH}, 16")
        A(f"s_cselect_b32 s{S_GS}, -1.0, 1.0")
        A(f"s_cselect_b32 s{S_GO}, 1.0, 0")
        for r in range(16, 64):
            A(f"v_mov_b32 v{r}, 0")
        A("v_mov_b32 v207, 0")
        A(f"v_mov_b32 v5, {CNT_ADDR}")
        A("ds_write_b32 v5, v207")
        A("ds_write_b32 v5, v207 offset:64")
        srd(A, 52, 10, 896)
        A("v_lshrrev_b32 v12, 3, v2")
        A("v_min_u32 v12, 6, v12")
        A("v_and_b32 v204, 7, v2")
        A("v_mul_u32_u24 v13, 12288, v12")
        A("v_lshl_add_u32 v13, v204, 6, v13")
        A(f"s_add_u32 s{S_T1}, s{S_T2}, 56")
        A(f"v_add_u32 v13, s{S_T1}, v13")
        A(f"v_add_u32 v12, s{S_ROT}, v12")
        A("v_subrev_u32 v11, 7, v12")
        A("v_min_u32 v12, v12, v11")
        A("v_lshl_add_u32 v12, v12, 6, v204")
        A(f"s_lshl_b32 s{S_T1}, s{S_W}, 3")
        A(f"v_add_u32 v12, s{S_T1}, v12")
        A("v_lshlrev_b32 v12, 1, v12")
        A("buffer_load_ushort v206, v12, s[52:55], 0 offen")
        A("ds_write_b32 v5, v207 offset:68")
        A(f"s_min_u32 s{S_CB}, s{S_TB}, 6")
        A(f"s_lshl_b32 s{S_QC}, s{S_BH}, 1")
        A(f"s_and_b32 s{S_T1}, s{S_W}, 1")
        A(f"s_add_u32 s{S_QC}, s{S_QC}, s{S_T1}")
        A(f"s_lshr_b32 s{S_KQ}, s{S_W}, 1")
        A(f"s_lshl_b32 s{S_T1}, s{S_BH}, 8")
        A(f"v_lshl_add_u32 v239, v2, 2, s{S_T1}")
        A("ds_write_b64 v5, v[16:17] offset:80")
        A(f"s_lshl_b32 s{S_T1}, s{S_TB}, 3")
        A(f"s_lshl_b32 s11, s{S_QP}, 1")
        A(f"s_add_u32 s{S_T1}, s{S_T1}, s11")
        A(f"s_add_u32 s{S_T1}, s{S_T1}, s{S_KH}")
        A(f"s_lshl_b32 s64, s{S_T1}, 16")
        A(f"s_lshl_b32 s11, s{S_BH}, 11")
        A(f"s_add_u32 s64, s64, s11")
        A(f"s_add_u32 s64, s64, {OF_OFF}")
        A(f"s_lshl_b32 s{S_T1}, s{S_T1}, 7")
        A(f"s_lshl_b32 s11, s{S_BH}, 2")
        A(f"s_add_u32 s{S_T1}, s{S_T1}, s11")
        A(f"v_mov_b32 v234, s{S_T1}")
        A(f"s_mov_b32 s11, {FO_OFF}")
        A(f"s_cmp_lg_u32 s{S_W}, s{S_POLL}")
        A("s_cbranch_scc1 L_ka_nosnap3")
        A("buffer_load_dword v240, v239, s[24:27], s11 offen sc1")
        A("L_ka_nosnap3:")
        A("s_mov_b64 exec, 1")
        A("buffer_load_dword v233, v234, s[24:27], s11 offen sc1")
        if opt("pt", 1):
            A(f"s_cmp_lg_u32 s{S_W}, 2")
            A("s_cbranch_scc1 L_ka_nopt")
            A("s_load_dwordx2 s[4:5], s[0:1], 16")
            A("s_load_dwordx2 s[6:7], s[0:1], 40")
            A("s_load_dwordx2 s[60:61], s[0:1], 56")
            A("v_mov_b32 v228, 0")
            A(f"s_lshl_b32 s{S_T1}, s{S_TT}, 12")
            A(f"buffer_load_dword v229, v228, s[20:23], s{S_T1} offen sc1")
            A("buffer_load_dword v229, v228, s[24:27], s64 offen sc1")
            A(f"s_lshl_b32 s{S_T1}, s{S_QC}, 16")
            A(f"s_add_u32 s{S_T1}, s{S_T1}, {OF_OFF}")
            A(f"buffer_load_dword v229, v228, s[24:27], s{S_T1} offen sc1")
            A("buffer_load_dword v229, v228, s[56:59], 0 offen sc1")
            A("s_waitcnt lgkmcnt(0)")
            A("global_load_dword v229, v228, s[4:5]")
            A("global_load_dword v229, v228, s[6:7]")
            A("global_load_dword v229, v228, s[60:61]")
            A("L_ka_nopt:")
        A("s_mov_b64 exec, -1")

    def trreads(c, u, st, slices):
        base = "v14" if c < 4 else "v15"
        cc = c if c < 4 else c - 4
        n = 0
        for t in slices:
            for tp in range(2):
                off = (8 * cc + u) * 1536 + t * 512 + tp * 256
                A(f"ds_read_b64_tr_b16 {vr(WF[st]+4*t+2*tp,2)}, {base} offset:{off}")
                n += 1
        return n

    def mm(c, u, st, slices):
        xf = XB + 16 * c + 4 * u
        for t in slices:
            if t == 0:
                A(mfma(AQ, WF[st] + 0, xf, AQ))
            elif t == 1:
                A(mfma(AK, WF[st] + 4, xf, AK))
            else:
                A(mfma(AV, xf, WF[st] + 8, AV))

    def chunks_mfma(cs, slices=(1, 2)):
        steps = [(c, u) for c in cs for u in range(4)]
        trreads(*steps[0], 0, slices)
        for i, (c, u) in enumerate(steps):
            if i + 1 < len(steps):
                n = trreads(*steps[i + 1], (i + 1) % 2, slices)
                A(f"s_waitcnt lgkmcnt({n})")
            else:
                A("s_waitcnt lgkmcnt(0)")
            mm(c, u, i % 2, slices)

    def adv_w():
        A(f"s_add_u32 s{S_WOFF}, s{S_WOFF}, 172032")
        A(f"s_cmp_ge_u32 s{S_WOFF}, s{S_T3}")
        A(f"s_cselect_b32 s{S_T1}, {7*172032}, 0")
        A(f"s_sub_u32 s{S_WOFF}, s{S_WOFF}, s{S_T1}")

    q = []

    def dma_wkv(c):
        A(f"s_add_u32 m0, s{S_T2}, {c*12288 + 512}")
        A("s_nop 0")
        A(f"buffer_load_dwordx4 v7, s[16:19], s{S_WOFF} offen lds")
        adv_w()
        q.append(("W", c))

    def dma_wq(c):
        A(f"s_add_u32 m0, s{S_T2}, {c*12288}")
        A("s_mov_b32 exec_hi, 0")
        A(f"buffer_load_dwordx4 v8, s[16:19], s{S_WOFF} offen lds")
        A("s_mov_b32 exec_hi, -1")
        adv_w()
        q.append(("Q", c))

    def dma_xq(c):
        dma_x(c)
        q.extend([("X", c)] * 4)

    def younger(*tags):
        last = max(i for i, t in enumerate(q) if t in tags)
        return len(q) - 1 - last

    A(f"s_cmp_lg_u32 s{S_W}, s{S_POLL}")
    A("s_cbranch_scc1 L_ka_nosnap")
    A(f"buffer_load_dword v{VSNAP}, v225, s[24:27], s{S_FL} offen sc1")
    A("L_ka_nosnap:")
    WLA = opt("wla", 3)
    dma_wkv(0)
    dma_xq(0)
    dma_wkv(1)
    dma_xq(1)
    for c in range(2, WLA):
        dma_wkv(c)
    late_setup()
    q.append(("G", 0))
    q.append(("G", 1))
    A.stamp()
    QAT = opt("qat", 5)
    nq = 0
    for c in range(7):
        A(f"s_waitcnt vmcnt({younger(('X', c), ('W', c))})")
        read_x(c)
        if c == 0:
            A(f"s_cmp_lg_u32 s{S_W}, s{S_POLL}")
            A("s_cbranch_scc1 L_ka_nosnap2")
            A(f"v_add_u32 v11, {SNAPL}, v225")
            A(f"ds_write_b32 v11, v{VSNAP}")
            A("L_ka_nosnap2:")
        A("s_waitcnt lgkmcnt(0)")
        if c + WLA < 7:
            dma_wkv(c + WLA)
        if c + 2 < 7:
            dma_xq(c + 2)
        if c >= QAT and c + WLA >= 6:
            todo = (7 - nq + (6 - c)) // (7 - c)
            for _ in range(todo):
                dma_wq(nq)
                nq += 1
        if c in (0,):
            A.stamp()
        A("s_barrier")
        chunks_mfma([c])
    assert nq == 7
    A.stamp()
    qsteps = [(c, u) for c in range(7) for u in range(4)]
    A("v_and_b32 v6, 0x13, v3")
    A("v_bfe_u32 v7, v3, 2, 1")
    A("v_lshl_or_b32 v6, v7, 3, v6")
    A("v_bfe_u32 v7, v3, 3, 1")
    A("v_lshl_or_b32 v6, v7, 2, v6")
    A("v_lshl_add_u32 v6, v4, 5, v6")
    A("v_lshlrev_b32 v6, 4, v6")
    A(f"v_add_u32 v7, s{S_LW}, v6")
    A(f"v_add_u32 v8, s{S_LW}, v1")
    A(f"s_lshl_b32 s{S_T0}, s{S_TT}, 12")
    A("s_nop 5")
    A("s_mov_b32 exec_lo, 0")
    A(f"v_mov_b32 v{AK+12}, 1.0")
    for r in range(13, 16):
        A(f"v_mov_b32 v{AK+r}, 0")
    A("s_mov_b32 exec_lo, -1")
    PK, PV = 208, 216
    for i in range(8):
        A(f"v_cvt_pk_bf16_f32 v{PK+i}, v{AK+2*i}, v{AK+2*i+1}")
    A(f"buffer_store_dwordx4 {vr(PK,4)}, v6, s[20:23], s{S_T0} offen sc1")
    A(f"buffer_store_dwordx4 {vr(PK+4,4)}, v6, s[20:23], s{S_T0} offen offset:1024 sc1")
    for i in range(8):
        A(f"v_cvt_pk_bf16_f32 v{PV+i}, v{AV+2*i}, v{AV+2*i+1}")
    A("s_mov_b32 exec_lo, 0x10000000")
    A("s_mov_b32 exec_hi, 0x10000000")
    for i in range(8):
        A(f"v_mov_b32 v{PV+i}, 0x3f803f80")
    A("s_mov_b32 exec_lo, 0xe0000000")
    A("s_mov_b32 exec_hi, 0xe0000000")
    for i in range(8):
        A(f"v_mov_b32 v{PV+i}, 0")
    A("s_mov_b64 exec, -1")
    A(f"buffer_store_dwordx4 {vr(PV,4)}, v1, s[20:23], s{S_T0} offen offset:2048 sc1")
    A(f"buffer_store_dwordx4 {vr(PV+4,4)}, v1, s[20:23], s{S_T0} offen offset:3072 sc1")
    A(f"ds_write_b128 v7, {vr(PK,4)}")
    A(f"ds_write_b128 v7, {vr(PK+4,4)} offset:1024")
    A(f"ds_write_b128 v8, {vr(PV,4)} offset:2048")
    A(f"ds_write_b128 v8, {vr(PV+4,4)} offset:3072")
    A("s_waitcnt vmcnt(4)")
    A("s_mov_b32 exec_hi, 0x00ffffff")
    A("ds_write_b16 v13, v206")
    A("s_mov_b32 exec_hi, -1")
    A("s_waitcnt lgkmcnt(0)")
    A("s_barrier")
    A.stamp()
    trreads(0, 0, 0, [0])

    def publish():
        A("s_waitcnt vmcnt(0)")
        A("v_mov_b32 v9, 1")
        A(f"s_lshl_b32 s{S_T2}, s{S_TB}, 2")
        A(f"v_mov_b32 v11, s{S_T2}")
        A("s_mov_b64 exec, 1")
        A("ds_add_rtn_u32 v10, v5, v9")
        A(f"v_add_u32 v12, {SNAPL}, v11")
        A("ds_read_b32 v9, v12")
        A("s_waitcnt lgkmcnt(0)")
        A(f"v_readfirstlane_b32 s{S_T1}, v10")
        A("v_add_u32 v9, 1, v9")
        A("s_nop 0")
        A(f"s_cmp_lg_u32 s{S_T1}, 7")
        A("s_cbranch_scc1 L_ka_nopub")
        A(f"buffer_store_dword v9, v11, s[24:27], s{S_FL} offen sc1")
        A("L_ka_nopub:")
        A("s_mov_b64 exec, -1")

    IDX = 5
    QF = [64, 72]
    O = [16, 32]
    S = [112, 128, 144, 160]
    KF = [176, 184]
    VF = [192, 200, 208, 216]
    T = 48
    VB = 6
    GB = [12, 13]
    MREF = [14, 15]
    PUB_AT = opt("pubat", 4)
    POLL_AT = opt("pollat", 22)
    zero_list = [O[0] + r for r in range(16)] + [O[1] + r for r in range(16)]
    for i, (c, u) in enumerate(qsteps):
        if i == PUB_AT:
            publish()
        if i == POLL_AT:
            A(f"s_cmp_lg_u32 s{S_W}, s{S_POLL}")
            A("s_cbranch_scc1 L_ka_nopoll")
            A(f"buffer_load_dword v227, v225, s[24:27], s{S_FL} offen sc1")
            A("L_ka_nopoll:")
        if i + 1 < len(qsteps):
            trreads(qsteps[i + 1][0], qsteps[i + 1][1], (i + 1) % 2, [0])
            A("s_waitcnt lgkmcnt(2)")
        else:
            A("s_waitcnt lgkmcnt(0)")
        mm(c, u, i % 2, [0])
        for _ in range(2):
            if zero_list:
                A(f"v_mov_b32 v{zero_list.pop()}, 0")
    A.stamp()
    A(f"s_mov_b32 s{S_T0}, 0x{f32bits(QSCALE):08x}")
    A(f"s_mov_b32 s{S_T1}, 0x{f32bits(-LOG2E):08x}")
    A("v_lshlrev_b32 v9, 2, v3")
    A(f"v_add_u32 v9, s{S_LW}, v9")
    A(f"s_lshl_b32 s{S_T2}, s{S_QP}, 13")
    A(f"s_lshl_b32 s{S_T3}, s{S_KH}, 12")
    A(f"s_add_u32 s{S_T2}, s{S_T2}, s{S_T3}")
    A(f"s_xor_b32 s{S_T3}, s{S_T2}, 4096")
    A(f"v_add_u32 v7, s{S_T3}, v1")
    A(f"v_add_u32 v226, s{S_T2}, v1")
    A(f"v_add_u32 v11, s{S_T2}, v225")
    A(f"s_lshl_b32 s{S_T2}, s{S_KH}, 14")
    A(f"v_add_u32 v10, s{S_T2}, v1")
    A(f"v_mov_b32 v{VB}, v10")
    A(f"v_mov_b32 v{IDX}, 0xdddd")
    if STAMP:
        A("v_mov_b32 v232, 0")
    A("s_nop 2")
    A(f"v_mul_f32 v12, s{S_T1}, v{AQ+12}")
    A("v_exp_f32 v12, v12")
    for r in range(12):
        A(f"v_mul_f32 v{AQ+r}, s{S_T0}, v{AQ+r}")
    A("v_add_f32 v12, 1.0, v12")
    A("v_rcp_f32 v12, v12")
    for r in range(12, 16):
        A(f"v_mul_f32 v{AQ+r}, s{S_T0}, v{AQ+r}")
    A(f"v_mul_f32 v12, s{S_GS}, v12")
    A(f"v_add_f32 v12, s{S_GO}, v12")
    for i in range(8):
        A(f"v_cvt_pk_bf16_f32 v{PK+i}, v{AQ+2*i}, v{AQ+2*i+1}")
    A("s_mov_b32 exec_lo, 0")
    A(f"ds_write_b32 v9, v12 offset:{32768+2048}")
    A(f"v_mov_b32 v{PK+6}, 0")
    A(f"v_mov_b32 v{PK+7}, 0")
    A("s_mov_b32 exec_lo, -1")
    A(f"ds_write_b128 v8, {vr(PK,4)} offset:32768")
    A(f"ds_write_b128 v8, {vr(PK+4,4)} offset:{32768+1024}")
    for r in range(8, 16):
        A(f"v_mov_b32 v{S[3]+r}, 0")
    for r in range(4, 8):
        A(f"v_mov_b32 v{VF[3]+r}, 0")
    A(f"s_mov_b32 s{S_FLAGS}, 0")
    A(f"s_mov_b32 s{S_NEXT}, 1")
    A(f"s_mov_b32 s{S_REM}, 0xff")
    A(f"s_bitset0_b32 s{S_REM}, s{S_TB}")
    A(f"s_cmp_lg_u32 s{S_W}, s{S_POLL}")
    A("s_cbranch_scc1 L_ka_nofw")
    A("s_waitcnt vmcnt(0)")
    A(f"v_cmp_ne_u32 vcc, v227, v{VSNAP}")
    A(f"v_mov_b32 v8, {FLAGW}")
    A("s_nop 4")
    A(f"s_and_b32 s{S_FLAGS}, vcc_lo, 0xff")
    A(f"v_mov_b32 v9, s{S_FLAGS}")
    A("ds_write_b32 v8, v9")
    A("L_ka_nofw:")
    A("s_waitcnt lgkmcnt(0)")
    A("s_barrier")
    A.stamp()
    for s in range(2):
        qa = "v7" if s == 0 else "v226"
        A(f"ds_read_b128 {vr(QF[s],4)}, {qa} offset:{32768}")
        A(f"ds_read_b128 {vr(QF[s]+4,4)}, {qa} offset:{32768+1024}")

    def rtile(q_, I):
        A(f"ds_read_b128 {vr(KF[I%2],4)}, v{VB} offset:{q_*4096}")
        A(f"ds_read_b128 {vr(KF[I%2]+4,4)}, v{VB} offset:{q_*4096+1024}")
        A(f"ds_read_b128 {vr(VF[I%4],4)}, v{VB} offset:{q_*4096+2048}")
        A(f"ds_read_b128 {vr(VF[I%4]+4,4)}, v{VB} offset:{q_*4096+3072}")

    rtile(0, 0)
    rtile(1, 1)
    A(f"ds_read_b32 v{GB[1]}, v11 offset:{32768+2048}")
    A("s_waitcnt lgkmcnt(7)")
    for s in range(2):
        A(mfma(S[s], KF[0], QF[s], None))
        A(mfma(S[s], KF[0] + 4, QF[s] + 4, S[s]))

    def dma_block():
        lbl = f"L_ka_fl{len(A.lines)}"
        A(f"s_and_b32 s{S_T0}, s{S_FLAGS}, s{S_REM}")
        A(f"s_cbranch_scc1 {lbl}_ok")
        A(f"s_mov_b32 s{S_SPIN}, 0")
        A(f"v_mov_b32 v8, {FLAGW}")
        A(f"{lbl}_spin:")
        A(f"s_cmp_lg_u32 s{S_W}, s{S_POLL}")
        A(f"s_cbranch_scc1 {lbl}_lds")
        A(f"buffer_load_dword v11, v225, s[24:27], s{S_FL} offen sc1")
        A("v_mov_b32 v9, 0")
        A(f"s_and_b32 s{S_T1}, s{S_SPIN}, 7")
        A(f"s_cmp_lg_u32 s{S_T1}, 7")
        A(f"s_cbranch_scc1 {lbl}_nodbg")
        A("buffer_load_dword v9, v9, s[56:59], s63 offen sc1")
        A(f"{lbl}_nodbg:")
        A("s_waitcnt vmcnt(0)")
        A(f"v_cmp_ne_u32 vcc, v11, v{VSNAP}")
        A("s_nop 4")
        A(f"s_or_b32 s{S_T1}, vcc_lo, s{S_FLAGS}")
        A(f"v_or_b32 v11, s{S_T1}, v9")
        A("v_and_b32 v11, 0xff, v11")
        A("ds_write_b32 v8, v11")
        A(f"s_branch {lbl}_chk")
        A(f"{lbl}_lds:")
        A("ds_read_b32 v11, v8")
        A("s_waitcnt lgkmcnt(0)")
        A(f"{lbl}_chk:")
        A(f"v_readfirstlane_b32 s{S_FLAGS}, v11")
        A(f"s_add_u32 s{S_SPIN}, s{S_SPIN}, 1")
        A(f"s_mov_b32 s{S_T0}, s{S_REM}")
        A(f"s_cmp_ge_u32 s{S_SPIN}, 0x40000")
        A(f"s_cbranch_scc1 {lbl}_ok")
        A(f"s_and_b32 s{S_T0}, s{S_FLAGS}, s{S_REM}")
        A(f"s_cbranch_scc1 {lbl}_ok")
        A(f"s_sleep {opt('sleep', 1)}")
        A(f"s_branch {lbl}_spin")
        A(f"{lbl}_ok:")
        A(f"s_lshl_b32 s{S_T1}, s{S_T0}, 8")
        A(f"s_or_b32 s{S_T0}, s{S_T0}, s{S_T1}")
        A(f"s_lshr_b32 s{S_T0}, s{S_T0}, s{S_TB}")
        A(f"s_ff1_i32_b32 s{S_T0}, s{S_T0}")
        A(f"s_add_u32 s{S_T0}, s{S_T0}, s{S_TB}")
        A(f"s_and_b32 s{S_T0}, s{S_T0}, 7")
        A(f"s_bitset0_b32 s{S_REM}, s{S_T0}")
        A(f"s_lshl_b32 s{S_T0}, s{S_T0}, 15")
        A(f"s_add_u32 s{S_T0}, s{S_T0}, s{S_LW}")
        tab = sum(sl_ << (4 * j) for j, sl_ in enumerate(SLOT_OF_BLOCK))
        A(f"s_lshl_b32 s{S_T1}, s{S_NEXT}, 2")
        A(f"s_lshr_b32 s{S_T1}, 0x{tab:08x}, s{S_T1}")
        A(f"s_and_b32 s{S_T1}, s{S_T1}, 15")
        A(f"s_lshl_b32 s{S_T1}, s{S_T1}, 15")
        A(f"s_add_u32 m0, s{S_T1}, s{S_LW}")
        A(f"s_add_u32 s{S_NEXT}, s{S_NEXT}, 1")
        for i in range(4):
            A(f"buffer_load_dwordx4 v1, s[20:23], s{S_T0} offen offset:{i*1024} sc1 lds")

    dma_block()
    for s in range(2):
        s0 = S[s]
        t = T + 8 * s
        A(f"v_max3_f32 v{t}, v{s0}, v{s0+1}, v{s0+2}")
        A(f"v_max3_f32 v{t+1}, v{s0+3}, v{s0+4}, v{s0+5}")
        A(f"v_max3_f32 v{t+2}, v{s0+6}, v{s0+7}, v{s0+8}")
        A(f"v_max3_f32 v{t+3}, v{s0+9}, v{s0+10}, v{s0+11}")
        A(f"v_max3_f32 v{t+4}, v{s0+12}, v{s0+13}, v{s0+14}")
        A(f"v_max3_f32 v{t}, v{t}, v{t+1}, v{s0+15}")
        A(f"v_max3_f32 v{t+2}, v{t+2}, v{t+3}, v{t+4}")
        A(f"v_max_f32 v{t}, v{t}, v{t+2}")
        A(f"v_mov_b32 v{t+1}, v{t}")
    A("s_nop 1")
    for s in range(2):
        t = T + 8 * s
        A(f"v_permlane32_swap_b32 v{t}, v{t+1}")
    A("s_nop 1")
    for s in range(2):
        t = T + 8 * s
        A(f"v_max_f32 v{t}, v{t}, v{t+1}")
        A(f"v_ashrrev_i32 v{t+1}, 31, v{t}")
        A(f"v_and_b32 v{t+1}, 0xffff, v{t+1}")
        A(f"v_add_u32 v{t}, v{t}, v{t+1}")
        A(f"v_and_b32 v{MREF[s]}, 0xffff0000, v{t}")
        A(f"v_lshrrev_b32 v{t}, 16, v{MREF[s]}")
        A(f"v_xor_b32 v{t}, 0x8000, v{t}")
    A("s_mov_b32 exec_lo, 0")
    for s in range(2):
        A(f"v_mov_b32 v{QF[s]+6}, v{T+8*s}")
    A("s_mov_b32 exec_lo, -1")
    A("s_nop 1")
    for s in range(2):
        A(mfma(S[s], KF[0], QF[s], None))
        A(mfma(S[s], KF[0] + 4, QF[s] + 4, S[s]))
    dma_block()
    CN = [None, None]

    PRIO = opt("prio", 1)

    def unit(I, s, q=None, do_qk=True, first=False):
        u = 2 * I + s
        sc = S[u % 4]
        sp = S[(u - 1) % 4]
        sn = S[(u + 2) % 4]
        E = lambda r: A(f"v_exp_f32 v{sc+r}, v{sc+r}")
        if s == 0:
            A("s_waitcnt lgkmcnt(0)")
        E(0); E(1)
        if s == 0:
            A(smfmac(O[1], VF[(I - 1) % 4] + 4, sp + 8, IDX))
        else:
            A(smfmac(O[0], VF[I % 4] + 4, sp + 8, IDX))
        if s == 0 and q is not None:
            A(f"ds_read_b128 {vr(KF[I%2],4)}, v{VB} offset:{q*4096}")
            A(f"ds_read_b128 {vr(KF[I%2]+4,4)}, v{VB} offset:{q*4096+1024}")
        E(2); E(3); E(4); E(5)
        if do_qk:
            A(mfma(sn, KF[(I + 1) % 2], QF[s], CN[s]))
        if s == 0 and q is not None:
            A(f"ds_read_b128 {vr(VF[(I+2)%4],4)}, v{VB} offset:{q*4096+2048}")
            A(f"ds_read_b128 {vr(VF[(I+2)%4]+4,4)}, v{VB} offset:{q*4096+3072}")
        E(6); E(7); E(8); E(9)
        if do_qk:
            A(mfma(sn, KF[(I + 1) % 2] + 4, QF[s] + 4, sn))
        E(10); E(11); E(12); E(13)
        A(smfmac(O[s], VF[I % 4], sc, IDX))
        E(14); E(15)

    def iteration(I, q, do_qk=True, prio=None, mid=None, mid2=None):
        if PRIO and prio is not None:
            A(f"s_setprio {prio}")
        unit(I, 0, q, do_qk)
        if mid:
            mid()
        unit(I, 1, q, do_qk)

    tab = sum(sl_ << (4 * j) for j, sl_ in enumerate(SLOT_OF_BLOCK))

    def next_vb():
        A(f"s_lshl_b32 s{S_T1}, s{S_JB}, 2")
        A(f"s_lshr_b32 s{S_T1}, 0x{tab >> 4:08x}, s{S_T1}")
        A(f"s_and_b32 s{S_T1}, s{S_T1}, 15")
        A(f"s_lshl_b32 s{S_T1}, s{S_T1}, 15")
        A(f"v_add_u32 v{VB}, s{S_T1}, v10")
        A(f"s_add_u32 s{S_JB}, s{S_JB}, 1")

    WO_REGION = [131072, 0, 65536, 32768]

    def wo_stage(kq, warm=False):
        srdn = "s[12:15]" if kq < 2 else "s[16:19]"
        A(f"s_min_u32 s{S_T0}, s{S_W}, 6")
        A(f"s_mul_i32 s{S_T1}, s{S_T0}, {2*14336}")
        A(f"s_lshl_b32 s{S_T2}, s{S_CB}, 7")
        A(f"s_add_u32 s{S_T1}, s{S_T1}, s{S_T2}")
        if kq & 1:
            A(f"s_add_u32 s{S_T1}, s{S_T1}, 200704")
        A(f"s_lshl_b32 s{S_T0}, s{S_T0}, 11")
        for i in range(4):
            if i == 2:
                A(f"s_add_u32 s{S_T1}, s{S_T1}, 14336")
            if warm:
                if i % 2 == 0:
                    A(f"buffer_load_dwordx4 v[228:231], v236, {srdn}, s{S_T1} offen")
            else:
                A(f"s_add_u32 m0, s{S_T0}, {WO_REGION[kq] + (i & 1)*14336 + (i >> 1)*1024}")
                A("s_nop 0")
                A(f"buffer_load_dwordx4 v{236 + (i & 1)}, {srdn}, s{S_T1} offen lds")

    def side_call(kh):
        def f():
            A(f"s_cmp_eq_u32 s{S_KH}, {kh}")
            A("s_cbranch_scc1 L_ka_sidein")
            A(f"L_ka_ret{kh}:")
        return f

    def side_blocks():
        A("L_ka_sidein:")
        A(f"s_cmp_eq_u32 s{S_JB}, 5")
        A("s_cbranch_scc1 L_ka_x4")
        A("L_ka_x4r:")
        A(f"s_cmp_ge_u32 s{S_JB}, 6")
        A("s_cbranch_scc1 L_ka_nodma")
        dma_block()
        A("L_ka_nodma:")
        A(f"s_bitcmp1_b32 0x7e, s{S_JB}")
        A("s_cbranch_scc1 L_ka_side")
        A("L_ka_nodma2:")
        A(f"s_cmp_eq_u32 s{S_KH}, 0")
        A("s_cbranch_scc1 L_ka_ret0")
        A("s_branch L_ka_ret1")
        A("L_ka_x4:")
        A(f"s_cmp_lg_u32 s{S_W}, s{S_POLL}")
        A("s_cbranch_scc1 L_ka_x4r")
        A("v_lshlrev_b32 v235, 2, v2")
        A("buffer_load_dword v235, v235, s[56:59], 0 offen sc1")
        A("s_branch L_ka_x4r")
        A("L_ka_side:")
        for jb in (3, 4, 5, 6):
            A(f"s_cmp_eq_u32 s{S_JB}, {jb}")
            A(f"s_cbranch_scc1 L_ka_s{jb}")
        A(f"s_cmp_lg_u32 s{S_W}, 1")
        A("s_cbranch_scc1 L_ka_nodma2")
        A(f"s_and_b32 s{S_T1}, s{S_TB}, 1")
        A(f"s_add_u32 s{S_T1}, s{S_T1}, 1")
        A(f"s_cmp_lg_u32 s{S_T1}, s{S_JB}")
        A("s_cbranch_scc1 L_ka_nodma2")
        A(f"s_lshl_b32 s{S_T1}, 0x101, s{S_TB}")
        A(f"v_mov_b32 v9, s{S_T1}")
        A("v_mov_b32 v11, 0")
        A("s_mov_b64 exec, 1")
        A("buffer_atomic_or v9, v11, s[56:59], s63 offen sc1")
        A("s_mov_b64 exec, -1")
        A("s_branch L_ka_nodma2")
        A("L_ka_s3:")
        wo_stage(0)
        A("s_branch L_ka_nodma2")
        A("L_ka_s4:")
        wo_stage(3, warm=True)
        A("s_branch L_ka_nodma2")
        A("L_ka_s5:")
        wo_stage(1)
        A("s_branch L_ka_nodma2")
        A("L_ka_s6:")
        wo_stage(2)
        A(f"s_cmp_lg_u32 s{S_W}, s{S_POLL}")
        A("s_cbranch_scc1 L_ka_nodma2")
        A("v_bfe_u32 v235, v235, 8, 8")
        A("v_mov_b32 v9, 0xff")
        A("v_cmp_eq_u32 vcc, v235, v9")
        A(f"v_mov_b32 v9, {CNT_ADDR}")
        A("v_mov_b32 v11, 1")
        A("s_nop 3")
        A(f"s_and_b32 s{S_T0}, vcc_lo, vcc_hi")
        A(f"s_and_b32 s{S_T0}, s{S_T0}, 0x55555555")
        A(f"s_cmp_lg_u32 s{S_T0}, 0x55555555")
        A("s_cbranch_scc1 L_ka_nodma2")
        A(f"ds_write_b32 v9, v11 offset:{REGOK_OFF}")
        A("s_branch L_ka_nodma2")

    A("s_load_dwordx2 s[4:5], s[0:1], 16")
    A("s_load_dwordx2 s[6:7], s[0:1], 40")
    A("s_load_dwordx2 s[28:29], s[0:1], 56")
    A("v_lshrrev_b32 v236, 2, v2")
    A("v_mul_u32_u24 v236, 896, v236")
    A("v_and_b32 v237, 3, v2")
    A("v_lshl_add_u32 v236, v237, 4, v236")
    A("v_add_u32 v237, 64, v236")
    A("s_waitcnt lgkmcnt(0)")
    srd(A, 12, 4, 401408)
    srd(A, 16, 6, 401408)
    srd(A, 52, 28, 1835008)

    A.stamp()
    if DT:
        A("s_memrealtime s[72:73]")
        A("s_waitcnt lgkmcnt(0)")
    A(f"s_mov_b32 s{S_JB}, 0")
    iteration(0, 2, prio=1)
    iteration(1, 3, prio=0, mid=next_vb)
    A(".p2align 6")
    A("L_ka_loop:")
    LST = STAMP and opt("lst", 0)
    if LST:
        A("s_memtime s[94:95]")
        A(f"s_mov_b32 m0, s{S_JB}")
        A("s_waitcnt lgkmcnt(0)")
        A(f"v_writelane_b32 v232, s94, m0")
    A(f"s_cmp_ge_u32 s{S_JB}, 7")
    A("s_cbranch_scc1 L_ka_w0")
    A("s_waitcnt vmcnt(4)")
    A("s_barrier")
    A("L_ka_w1:")
    if LST:
        A("s_memtime s[94:95]")
        A(f"s_add_u32 m0, s{S_JB}, 16")
        A("s_waitcnt lgkmcnt(0)")
        A(f"v_writelane_b32 v232, s94, m0")
    p0, p1 = opt("p0", 0), opt("p1", 1)
    mids = [None, None, None]
    if p0 == p1:
        mids[p0] = lambda: (side_call(0)(), side_call(1)())
    else:
        mids[p0] = side_call(0)
        mids[p1] = side_call(1)
    iteration(2, 0, prio=3, mid=mids[0])
    iteration(3, 1, prio=2, mid=mids[1])
    iteration(4, 2, prio=1, mid=mids[2])
    iteration(5, 3, prio=0, mid=next_vb)
    A(f"s_cmp_lt_u32 s{S_JB}, 8")
    A("s_cbranch_scc1 L_ka_loop")

    def tail_addr():
        A(f"s_add_u32 s{S_T0}, s{S_LW}, 98304")
        A(f"v_add_u32 v8, s{S_T0}, v1")
        A(f"s_xor_b32 s{S_T0}, s{S_T0}, 16384")
        A(f"v_add_u32 v9, s{S_T0}, v1")
        A("v_lshlrev_b32 v7, 2, v2")
        A(f"s_lshl_b32 s{S_T1}, s{S_W}, 8")
        A(f"s_add_u32 s{S_T0}, s{S_T1}, {MX_ADDR}")
        A(f"v_add_u32 v11, s{S_T0}, v7")
        A(f"s_xor_b32 s{S_T1}, s{S_T1}, 1024")
        A(f"s_add_u32 s{S_T1}, s{S_T1}, {MX_ADDR}")
        A(f"v_add_u32 v7, s{S_T1}, v7")
        A(f"ds_write_b32 v11, v{MREF[0]}")
        A(f"s_mov_b32 s66, 0")

    iteration(30, None, True, prio=1, mid=tail_addr)
    iteration(31, None, False, prio=0)
    for r4 in range(4):
        A(f"ds_write_b128 v8, {vr(O[0]+4*r4,4)} offset:{r4*1024}")
    A(smfmac(O[1], VF[31 % 4] + 4, S[3] + 8, IDX))
    A.stamp()
    if DT:
        A("s_memrealtime s[74:75]")
        A("s_waitcnt lgkmcnt(0)")
    A("s_waitcnt lgkmcnt(0)")
    A("s_barrier")
    A(f"ds_read_b32 v{MREF[0]}, v7")
    for r4 in (3, 0, 1, 2):
        A(f"ds_read_b128 {vr(O[0]+4*r4,4)}, v9 offset:{r4*1024}")
    A(f"v_mov_b32 v235, {CNT_ADDR}")
    A(f"ds_read_b32 v235, v235 offset:{REGOK_OFF}")
    A("s_waitcnt lgkmcnt(4)")
    OK_, OO = O[1], O[0]
    F1, F2 = T + 1, T + 2
    A(f"v_max_f32 v{T}, v{MREF[0]}, v{MREF[1]}")
    A(f"v_sub_f32 v{F1}, v{MREF[1]}, v{T}")
    A(f"v_sub_f32 v{F2}, v{MREF[0]}, v{T}")
    A(f"v_exp_f32 v{F1}, v{F1}")
    A(f"v_exp_f32 v{F2}, v{F2}")
    A("L_ka_fin:")
    A("s_nop 0")
    A(f"v_mul_f32 v{T+3}, v{OK_+12}, v{F1}")
    A(f"v_fmac_f32 v{T+3}, v{OO+12}, v{F2}")
    A(f"v_mov_b32 v{T+4}, v{T+3}")
    A("s_nop 1")
    A(f"v_permlane32_swap_b32 v{T+3}, v{T+4}")
    A("s_nop 1")
    A(f"v_rcp_f32 v{T+4}, v{T+4}")
    A("s_nop 0")
    A(f"v_mul_f32 v{T+4}, v{T+4}, v{GB[1]}")
    A(f"v_mul_f32 v{F1}, v{F1}, v{T+4}")
    A(f"v_mul_f32 v{F2}, v{F2}, v{T+4}")
    A("s_waitcnt lgkmcnt(0)")
    R = S[1]
    for r in range(16):
        A(f"v_mul_f32 v{R+r}, v{OK_+r}, v{F1}")
        A(f"v_fmac_f32 v{R+r}, v{OO+r}, v{F2}")
    for i in range(8):
        A(f"v_cvt_pk_bf16_f32 v{S[0]+i}, v{R+2*i}, v{R+2*i+1}")
    A(f"v_maximum3_f32 v{T+3}, abs(v{R}), abs(v{R+1}), abs(v{R+2})")
    for r in range(3, 15, 2):
        A(f"v_maximum3_f32 v{T+3}, v{T+3}, abs(v{R+r}), abs(v{R+r+1})")
    A(f"v_maximum3_f32 v{T+3}, v{T+3}, abs(v{R+15}), abs(v{R+15})")
    A("s_mov_b32 s65, 0x7f000000")
    A(f"v_cmp_nlt_f32 vcc, v{T+3}, s65")
    A("s_cmp_lg_u32 s66, 0")
    A("s_cbranch_scc1 L_ka_st")
    A("s_nop 2")
    A("s_cmp_lg_u64 vcc, 0")
    A("s_cbranch_scc1 L_ka_slow")
    A("L_ka_st:")
    A("s_mov_b32 exec_lo, 0")
    A(f"v_mov_b32 v{S[0]+6}, 0")
    A(f"v_mov_b32 v{S[0]+7}, 0")
    A("s_mov_b32 exec_lo, -1")
    A(f"buffer_store_dwordx4 {vr(S[0],4)}, v1, s[24:27], s64 offen sc1")
    A(f"buffer_store_dwordx4 {vr(S[0]+4,4)}, v1, s[24:27], s64 offen offset:1024 sc1")
    wo_stage(3)
    ACC = [16, 32]
    AB3 = 64
    WF3 = [136, 144]
    A(f"v_readfirstlane_b32 s{S_T0}, v235")
    A("v_add_u32 v238, 1, v233")
    A(f"s_lshl_b32 s{S_T1}, s{S_KQ}, 2")
    A(f"s_lshr_b32 s{S_T1}, 0x1204, s{S_T1}")
    A(f"s_and_b32 s{S_T1}, s{S_T1}, 15")
    A(f"s_lshl_b32 s{S_T1}, s{S_T1}, 15")
    A("v_bfe_u32 v9, v2, 2, 2")
    A("v_lshlrev_b32 v7, 6, v9")
    A("v_bfe_u32 v9, v2, 4, 1")
    A("v_lshl_add_u32 v7, v9, 5, v7")
    A("v_and_b32 v9, 3, v2")
    A("v_lshl_add_u32 v7, v9, 3, v7")
    A(f"v_add_u32 v7, s{S_T1}, v7")
    A("v_lshl_add_u32 v8, v4, 8, v7")
    for r in range(32):
        A(f"v_mov_b32 v{16+r}, 0")
    A(f"s_lshl_b32 s{S_T2}, s{S_QC}, 16")
    A(f"s_lshl_b32 s{S_T1}, s{S_KQ}, 14")
    A(f"s_add_u32 s{S_T2}, s{S_T2}, s{S_T1}")
    A(f"s_add_u32 s{S_T2}, s{S_T2}, {OF_OFF}")
    A(f"s_cmp_lg_u32 s{S_T0}, 0")
    A("s_cbranch_scc0 L_ka_regspin")
    A("L_ka_regok:")
    A("s_waitcnt vmcnt(4)")
    A.stamp()
    A("s_mov_b64 exec, 1")
    A("buffer_store_dword v238, v234, s[24:27], s11 offen sc1")
    A("s_mov_b64 exec, -1")
    A(f"s_cmp_ge_u32 s{S_TB}, 7")
    A("s_cbranch_scc1 L_ka_done")
    A("s_waitcnt vmcnt(1)")
    A("s_barrier")
    A(f"s_mov_b32 s{S_SPIN}, 0")
    A(f"v_mov_b32 v10, {CNT_ADDR}")
    A(f"s_and_b32 s{S_T3}, s{S_W}, 1")
    A(f"s_lshl_b32 s{S_T3}, s{S_T3}, 5")
    A(f"s_lshl_b32 s{S_T4}, s{S_KQ}, 3")
    A(f"s_add_u32 s{S_T3}, s{S_T3}, s{S_T4}")
    A(f"s_cmp_lg_u32 s{S_W}, 0")
    A("s_cbranch_scc1 L_ka_p3lds")
    A("L_ka_p3spin:")
    A("buffer_load_dword v9, v239, s[24:27], s11 offen sc1")
    A("s_waitcnt vmcnt(0)")
    A("v_cmp_ne_u32 vcc, v9, v240")
    A(f"s_add_u32 s{S_SPIN}, s{S_SPIN}, 1")
    A("s_nop 3")
    A("v_mov_b32 v12, vcc_lo")
    A("v_mov_b32 v13, vcc_hi")
    A("ds_write_b64 v10, v[12:13] offset:80")
    A("s_cmp_eq_u64 vcc, -1")
    A("s_cbranch_scc1 L_ka_p3go")
    A(f"s_cmp_ge_u32 s{S_SPIN}, 0x40000")
    A("s_cbranch_scc1 L_ka_p3go")
    A(f"s_sleep {opt('sleep3', 4)}")
    A("s_branch L_ka_p3spin")
    A("L_ka_p3lds:")
    A("ds_read_b64 v[12:13], v10 offset:80")
    A("s_waitcnt lgkmcnt(0)")
    A("v_readfirstlane_b32 s4, v12")
    A("v_readfirstlane_b32 s5, v13")
    A(f"s_add_u32 s{S_SPIN}, s{S_SPIN}, 1")
    A("s_nop 1")
    A(f"s_lshr_b64 s[4:5], s[4:5], s{S_T3}")
    A("s_and_b32 s4, s4, 0xff")
    A("s_cmp_eq_u32 s4, 0xff")
    A("s_cbranch_scc1 L_ka_p3go")
    A(f"s_cmp_ge_u32 s{S_SPIN}, 0x400000")
    A("s_cbranch_scc1 L_ka_p3go")
    A("s_sleep 1")
    A("s_branch L_ka_p3lds")
    A("L_ka_p3go:")
    A.stamp()
    for ks in range(16):
        if ks and ks % 4 == 0:
            A(f"s_add_u32 s{S_T2}, s{S_T2}, 4096")
        A(f"buffer_load_dwordx4 {vr(AB3+4*ks,4)}, v1, s[24:27], s{S_T2} offen offset:{(ks%4)*1024} sc1")

    def tr3(ks, st):
        for ct in range(2):
            for tp in range(2):
                hd, s_ = divmod(ks, 2)
                base = "v7" if (s_ == 1 and tp == 1) else "v8"
                A(f"ds_read_b64_tr_b16 {vr(WF3[st]+4*ct+2*tp,2)}, {base} offset:{ct*14336 + (28*hd + 16*s_ + 8*tp)*64}")

    tr3(0, 0)
    A(f"s_lshl_b32 s{S_T0}, s{S_W}, 13")
    A(f"s_and_b32 s{S_T1}, s{S_W}, 1")
    A(f"s_lshl_b32 s{S_T0}, s{S_T1}, 15")
    A(f"s_lshl_b32 s{S_T3}, s{S_KQ}, 13")
    A(f"s_add_u32 s{S_T3}, s{S_T3}, s{S_T0}")
    A(f"v_add_u32 v10, s{S_T3}, v1")
    A(f"s_and_b32 s{S_T3}, s{S_KQ}, 1")
    A(f"s_lshr_b32 s{S_T4}, s{S_KQ}, 1")
    A(f"s_lshl_b32 s{S_T1}, s{S_T3}, 12")
    A(f"s_add_u32 s{S_T0}, s{S_T0}, s{S_T1}")
    A(f"s_lshl_b32 s{S_T1}, s{S_T4}, 11")
    A(f"s_add_u32 s{S_T0}, s{S_T0}, s{S_T1}")
    A(f"v_add_u32 v11, s{S_T0}, v1")
    A("v_mul_u32_u24 v12, 896, v3")
    A("v_lshl_add_u32 v12, v4, 4, v12")
    A(f"s_mul_i32 s{S_T0}, s{S_QC}, 28672")
    A(f"s_lshl_b32 s{S_T1}, s{S_CB}, 7")
    A(f"s_add_u32 s{S_T0}, s{S_T0}, s{S_T1}")
    A(f"s_lshl_b32 s{S_T1}, s{S_T3}, 6")
    A(f"s_add_u32 s{S_T0}, s{S_T0}, s{S_T1}")
    A(f"s_lshl_b32 s{S_T1}, s{S_T4}, 5")
    A(f"s_add_u32 s{S_T0}, s{S_T0}, s{S_T1}")
    for ks in range(16):
        st = ks % 2
        if ks < 15:
            tr3(ks + 1, 1 - st)
            A(f"s_waitcnt vmcnt({15-ks}) lgkmcnt(4)")
        else:
            A("s_waitcnt vmcnt(0) lgkmcnt(0)")
        for ct in range(2):
            A(mfma(ACC[ct], WF3[st] + 4 * ct, AB3 + 4 * ks, ACC[ct]))
    A.stamp()
    A("s_barrier")
    A("s_nop 7")
    A("s_nop 3")
    for ct in range(2):
        for r4 in range(4):
            A(f"ds_write_b128 v10, {vr(ACC[ct]+4*r4,4)} offset:{ct*4096+r4*1024}")
    A("s_waitcnt lgkmcnt(0)")
    A("s_barrier")
    for k in range(4):
        for h2 in range(2):
            A(f"ds_read_b128 {vr(AB3+8*k+4*h2,4)}, v11 offset:{k*8192+h2*1024}")
    A("s_waitcnt lgkmcnt(4)")
    for r in range(8):
        A(f"v_add_f32 v{AB3+r}, v{AB3+r}, v{AB3+8+r}")
    A("s_waitcnt lgkmcnt(0)")
    for r in range(8):
        A(f"v_add_f32 v{AB3+16+r}, v{AB3+16+r}, v{AB3+24+r}")
    for r in range(8):
        A(f"v_add_f32 v{AB3+r}, v{AB3+r}, v{AB3+16+r}")
    for i in range(4):
        A(f"v_cvt_pk_bf16_f32 v{16+i}, v{AB3+2*i}, v{AB3+2*i+1}")
    A("s_nop 1")
    A("v_permlane32_swap_b32 v16, v18")
    A("v_permlane32_swap_b32 v17, v19")
    A("s_nop 1")
    A(f"buffer_store_dwordx4 v[16:19], v12, s[52:55], s{S_T0} offen")
    A("L_ka_done:")
    if DT:
        A("s_waitcnt vmcnt(0)")
        A("s_memrealtime s[76:77]")
        A(f"s_cmp_lg_u32 s{S_W}, 0")
        A("s_waitcnt lgkmcnt(0)")
        A("s_cbranch_scc1 L_ka_end")
        A("s_mov_b64 exec, 1")
        A("v_mov_b32 v0, 0")
        A("s_not_b32 s78, s70")
        for off, sr in ((4, 76), (12, 78), (20, 72), (28, 74), (36, 70)):
            A(f"v_mov_b32 v1, s{sr}")
            A(f"buffer_atomic_umax v1, v0, s[56:59], 0 offen offset:{off} sc1")
            A("s_nop 1")
    if STAMP:
        A("s_mov_b64 exec, -1")
        A(f"s_mul_i32 s67, s2, 8")
        A(f"s_add_u32 s67, s67, s{S_W}")
        A("s_lshl_b32 s67, s67, 8")
        A(f"s_add_u32 s67, s67, {STAMP_OFF + 2*(1<<20)}")
        A("v_lshlrev_b32 v0, 2, v2")
        A("v_mov_b32 v1, s68")
        A("v_sub_u32 v232, v232, v1")
        A("buffer_store_dword v232, v0, s[24:27], s67 offen")
    A.stamp_flush(0, S_W, 8)
    A("L_ka_end:")
    A("s_endpgm")
    A("L_ka_w0:")
    A("s_waitcnt vmcnt(0)")
    A("s_barrier")
    A("s_branch L_ka_w1")
    side_blocks()
    A("L_ka_regspin:")
    A(f"s_mov_b32 s{S_SPIN}, 0")
    A("L_ka_regspin2:")
    A("v_lshlrev_b32 v235, 2, v2")
    A("buffer_load_dword v235, v235, s[56:59], 0 offen sc1")
    A("v_mov_b32 v9, 0xff")
    A("s_waitcnt vmcnt(0)")
    A("v_bfe_u32 v235, v235, 8, 8")
    A("v_cmp_eq_u32 vcc, v235, v9")
    A(f"s_add_u32 s{S_SPIN}, s{S_SPIN}, 1")
    A("s_nop 3")
    A(f"s_and_b32 s{S_T0}, vcc_lo, vcc_hi")
    A(f"s_and_b32 s{S_T0}, s{S_T0}, 0x55555555")
    A(f"s_cmp_eq_u32 s{S_T0}, 0x55555555")
    A("s_cbranch_scc1 L_ka_regok")
    A(f"s_cmp_ge_u32 s{S_SPIN}, 0x40000")
    A("s_cbranch_scc1 L_ka_regok")
    A("s_sleep 8")
    A("s_branch L_ka_regspin2")
    A("L_ka_slow:")
    M = T + 5
    s0 = S[0]
    A("s_waitcnt vmcnt(0) lgkmcnt(0)")
    for r in range(16):
        A(f"v_mov_b32 v{OK_+r}, 0")
        A(f"v_mov_b32 v{OO+r}, 0")
    A(f"v_mov_b32 v{M}, 0xff7fffff")
    A("L_ka_slow_loop:")
    A(f"buffer_load_dwordx4 {vr(KF[0],4)}, v1, s[20:23], s66 offen sc1")
    A(f"buffer_load_dwordx4 {vr(KF[0]+4,4)}, v1, s[20:23], s66 offen offset:1024 sc1")
    A(f"buffer_load_dwordx4 {vr(VF[0],4)}, v1, s[20:23], s66 offen offset:2048 sc1")
    A(f"buffer_load_dwordx4 {vr(VF[0]+4,4)}, v1, s[20:23], s66 offen offset:3072 sc1")
    A("s_waitcnt vmcnt(0)")
    A(mfma(s0, KF[0], QF[1], None))
    A(mfma(s0, KF[0] + 4, QF[1] + 4, s0))
    A("s_nop 15")
    A("s_nop 3")
    A(f"v_max3_f32 v{T}, v{s0}, v{s0+1}, v{s0+2}")
    for r in range(3, 15, 2):
        A(f"v_max3_f32 v{T}, v{T}, v{s0+r}, v{s0+r+1}")
    A(f"v_max_f32 v{T}, v{T}, v{s0+15}")
    A(f"v_mov_b32 v{T+1}, v{T}")
    A("s_nop 1")
    A(f"v_permlane32_swap_b32 v{T}, v{T+1}")
    A("s_nop 1")
    A(f"v_max3_f32 v{T}, v{T}, v{T+1}, v{M}")
    A(f"v_sub_f32 v{T+1}, v{M}, v{T}")
    A(f"v_exp_f32 v{T+1}, v{T+1}")
    A(f"v_mov_b32 v{M}, v{T}")
    for r in range(16):
        A(f"v_sub_f32 v{s0+r}, v{s0+r}, v{T}")
    for r in range(16):
        A(f"v_exp_f32 v{s0+r}, v{s0+r}")
    for r in range(16):
        A(f"v_mul_f32 v{OK_+r}, v{OK_+r}, v{T+1}")
    A("s_nop 3")
    A(smfmac(OK_, VF[0], s0, IDX))
    A(smfmac(OK_, VF[0] + 4, s0 + 8, IDX))
    A("s_nop 15")
    A("s_nop 3")
    A("s_add_u32 s66, s66, 4096")
    A("s_cmp_lt_u32 s66, 262144")
    A("s_cbranch_scc1 L_ka_slow_loop")
    A(f"v_mov_b32 v{F1}, 1.0")
    A(f"v_mov_b32 v{F2}, 0")
    A("s_branch L_ka_fin")
    return A.text(), 248, 68


def gen_kb():
    A = Asm()
    ACC = [16, 32, 48, 64]
    WF = [80, 88]
    AB = 96
    A("s_cmp_ge_u32 s2, 224")
    A("s_cbranch_scc1 L_k3_end")
    A.stamp()
    A("s_load_dwordx2 s[4:5], s[0:1], 16")
    A("s_load_dwordx2 s[6:7], s[0:1], 40")
    A("s_load_dwordx2 s[8:9], s[0:1], 56")
    A("s_load_dwordx2 s[28:29], s[0:1], 72")
    A("s_and_b32 s30, s2, 7")
    A("s_lshr_b32 s31, s2, 3")
    A("s_and_b32 s32, s31, 3")
    A("s_lshl_b32 s30, s30, 2")
    A("s_add_u32 s32, s32, s30")
    A("s_lshr_b32 s33, s31, 2")
    A("v_lshrrev_b32 v1, 6, v0")
    A("v_and_b32 v2, 63, v0")
    A("v_readfirstlane_b32 s35, v1")
    A("v_lshlrev_b32 v1, 4, v2")
    A("v_lshrrev_b32 v3, 2, v2")
    A("v_and_b32 v4, 3, v2")
    A("v_mul_u32_u24 v5, 896, v3")
    A("v_lshl_add_u32 v5, v4, 4, v5")
    A("v_add_u32 v6, 64, v5")
    A("v_lshrrev_b32 v7, 5, v2")
    A("v_and_b32 v8, 31, v2")
    A("s_mul_i32 s41, s35, 28672")
    A("v_lshlrev_b32 v9, 9, v7")
    A("v_bfe_u32 v10, v2, 2, 2")
    A("v_lshl_add_u32 v9, v10, 6, v9")
    A("v_bfe_u32 v10, v2, 4, 1")
    A("v_lshl_add_u32 v9, v10, 5, v9")
    A("v_lshl_add_u32 v9, v4, 3, v9")
    A("v_add_u32 v9, s41, v9")
    A("s_and_b32 s36, s35, 1")
    A("s_mul_i32 s36, s36, 200704")
    A("s_lshl_b32 s37, s33, 7")
    A("s_add_u32 s36, s36, s37")
    A("s_mul_i32 s38, s32, 114688")
    A("s_mul_i32 s39, s35, 14336")
    A("s_add_u32 s38, s38, s39")
    A(f"s_add_u32 s38, s38, {OF_OFF}")
    A("s_and_b32 s48, s32, 3")
    A("s_lshl_b32 s48, s48, 2")
    A("s_lshr_b32 s48, 0xa730, s48")
    A("s_and_b32 s48, s48, 15")
    A("s_lshl_b32 s49, s33, 1")
    A("s_add_u32 s48, s48, s49")
    A("s_cmp_ge_u32 s48, 14")
    A("s_cselect_b32 s49, 14, 0")
    A("s_sub_u32 s48, s48, s49")
    if not opt("rotb", 1):
        A("s_mov_b32 s48, 0")
    A("s_add_u32 s50, s38, 14336")
    A("s_mul_i32 s49, s48, 14336")
    A("s_add_u32 s36, s36, s49")
    A("s_lshl_b32 s49, s48, 10")
    A("s_add_u32 s38, s38, s49")
    A("s_add_u32 s39, s38, 57344")
    A("s_cmp_ge_u32 s35, 2")
    A("s_waitcnt lgkmcnt(0)")
    A("s_cselect_b32 s4, s6, s4")
    A("s_cselect_b32 s5, s7, s5")
    A.stamp()
    srd(A, 12, 4, 401408)
    srd(A, 16, 8, 1835008)
    srd(A, 24, 28, WS_USED)
    A("s_mov_b32 s42, s41")

    def loads(ks):
        A("s_mov_b32 m0, s42")
        A("s_add_u32 s42, s42, 1024")
        A("buffer_load_dwordx4 v5, s[12:15], s36 offen lds")
        A("s_mov_b32 m0, s42")
        A("s_add_u32 s42, s42, 1024")
        A("buffer_load_dwordx4 v6, s[12:15], s36 offen lds")
        A(f"buffer_load_dwordx4 {vr(AB+8*ks,4)}, v1, s[24:27], s38 offen")
        A(f"buffer_load_dwordx4 {vr(AB+8*ks+4,4)}, v1, s[24:27], s39 offen")
        if ks < 13:
            A("s_add_u32 s36, s36, 14336")
            A("s_add_u32 s38, s38, 1024")
            A("s_cmp_ge_u32 s38, s50")
            A("s_cselect_b32 s49, 14336, 0")
            A("s_cselect_b32 s51, 200704, 0")
            A("s_sub_u32 s38, s38, s49")
            A("s_sub_u32 s36, s36, s51")
            A("s_add_u32 s39, s38, 57344")

    D = opt("bd", 6)
    for ks in range(D):
        loads(ks)
    A.stamp()
    for r in range(16, 80):
        A(f"v_mov_b32 v{r}, 0")

    def trreads(ks, st):
        for ct in range(2):
            for tp in range(2):
                A(f"ds_read_b64_tr_b16 {vr(WF[st]+4*ct+2*tp,2)}, v9 offset:{(ks*2+ct)*1024+tp*256}")

    A(f"s_waitcnt vmcnt({4*(D-1)})")
    A.stamp()
    trreads(0, 0)
    for ks in range(14):
        st = ks % 2
        if ks + D < 14:
            loads(ks + D)
        if ks < 13:
            A(f"s_waitcnt vmcnt({4*(min(13, ks+D)-(ks+1))})")
            trreads(ks + 1, 1 - st)
            A("s_waitcnt lgkmcnt(4)")
        else:
            A("s_waitcnt lgkmcnt(0)")
        for ti in range(2):
            for ct in range(2):
                A(mfma(ACC[ti * 2 + ct], WF[st] + 4 * ct, AB + 8 * ks + 4 * ti, ACC[ti * 2 + ct]))
    A.stamp()
    A("v_add_u32 v10, s41, v1")
    A("s_lshl_b32 s43, s35, 12")
    A("v_add_u32 v11, s43, v1")
    A("v_mul_u32_u24 v12, 896, v8")
    A("v_lshl_add_u32 v12, v7, 4, v12")
    A("s_lshr_b32 s44, s35, 1")
    A("s_and_b32 s45, s35, 1")
    A("s_lshl_b32 s46, s32, 1")
    A("s_add_u32 s46, s46, s44")
    A("s_mul_i32 s46, s46, 28672")
    A("s_lshl_b32 s47, s33, 7")
    A("s_add_u32 s46, s46, s47")
    A("s_lshl_b32 s45, s45, 6")
    A("s_add_u32 s46, s46, s45")
    A("s_nop 7")
    for tile in range(4):
        for r4 in range(4):
            A(f"ds_write_b128 v10, {vr(ACC[tile]+4*r4,4)} offset:{tile*4096+r4*1024}")
    A("s_waitcnt lgkmcnt(0)")
    A.stamp()
    A("s_barrier")
    A.stamp()
    for w in range(4):
        for r4 in range(4):
            off = w * 28672 + r4 * 1024
            if off < 65536:
                A(f"ds_read_b128 {vr(AB+16*w+4*r4,4)}, v11 offset:{off}")
            else:
                if r4 == 0:
                    A("v_add_u32 v13, 65536, v11")
                A(f"ds_read_b128 {vr(AB+16*w+4*r4,4)}, v13 offset:{off-65536}")
    A("s_waitcnt lgkmcnt(8)")
    for r in range(16):
        A(f"v_add_f32 v{AB+r}, v{AB+r}, v{AB+16+r}")
    A("s_waitcnt lgkmcnt(0)")
    for r in range(16):
        A(f"v_add_f32 v{AB+32+r}, v{AB+32+r}, v{AB+48+r}")
    for r in range(16):
        A(f"v_add_f32 v{AB+r}, v{AB+r}, v{AB+32+r}")
    for i in range(8):
        A(f"v_cvt_pk_bf16_f32 v{16+i}, v{AB+2*i}, v{AB+2*i+1}")
    A("s_nop 1")
    A("v_permlane32_swap_b32 v16, v18")
    A("v_permlane32_swap_b32 v17, v19")
    A("v_permlane32_swap_b32 v20, v22")
    A("v_permlane32_swap_b32 v21, v23")
    A("s_nop 1")
    A("buffer_store_dwordx4 v[16:19], v12, s[16:19], s46 offen")
    A("buffer_store_dwordx4 v[20:23], v12, s[16:19], s46 offen offset:32")
    A.stamp()
    A.stamp_flush(1, 35, 4)
    A("L_k3_end:")
    A("s_endpgm")
    return A.text(), 208, 56


HEADER = """; Kernarg layout for this problem (80 bytes, ptrs only, base s[0:1]):
"""


def main(outpath):
    name = NAME + "_kernel"
    body, nv, ns = gen_ka()
    out = HEADER
    out += "; @launch grid=(256,1,1) block=(512,1,1) lds=163840\n"
    out += '.amdgcn_target "amdgcn-amd-amdhsa--gfx950"\n.text\n'
    out += f".globl {name}\n.p2align 8\n.type {name},@function\n{name}:\n{body}"
    out += '.section .rodata,"a"\n'
    out += f""".p2align 6
.amdhsa_kernel {name}
  .amdhsa_next_free_vgpr {nv}
  .amdhsa_next_free_sgpr {102 if (STAMP or opt('dbgtime', 0)) else ns}
  .amdhsa_accum_offset {(nv+3)//4*4}
  .amdhsa_group_segment_fixed_size 0
  .amdhsa_kernarg_size 80
  .amdhsa_user_sgpr_count 2
  .amdhsa_user_sgpr_kernarg_segment_ptr 1
  .amdhsa_system_sgpr_workgroup_id_x 1
.end_amdhsa_kernel
"""
    open(outpath, "w").write(out)


if __name__ == "__main__":
    main(sys.argv[1] if len(sys.argv) > 1 else f"cdna_kernels/{NAME}.s")
```

```python
import struct, math, sys, os

NAME = "gated_mix__softmax_full_mha__softmax_full_mha__prompt"

KVF_OFF = 0
OF_OFF = 8 << 20
WI_OFF = 13 << 20
FL_OFF = 12 << 20
WS_USED = 24 << 20
STAMP_OFF = 20 << 20
STAMP = bool(os.environ.get("STAMP"))
OPT = dict(kv.split("=") for kv in os.environ.get("OPT", "").split(",") if kv)


def opt(name, default):
    return type(default)(OPT.get(name, default))


def f32bits(x):
    return struct.unpack("<I", struct.pack("<f", x))[0]


LOG2E = math.log2(math.e)
QSCALE = (28 ** -0.5) * LOG2E


class Asm:
    def __init__(self):
        self.lines = []
        self.nst = 0

    def __call__(self, s):
        for ln in s.strip("\n").split("\n"):
            self.lines.append("    " + ln.strip() if not ln.strip().endswith(":") else ln.strip())

    def text(self):
        return "\n".join(self.lines) + "\n"

    def stamp(self):
        if not STAMP:
            return
        k = self.nst
        self.nst += 1
        assert k < 14
        if k == 0:
            self("s_memrealtime s[96:97]")
        self(f"{'s_memrealtime' if os.environ.get('RT') else 's_memtime'} s[{68+2*k}:{69+2*k}]")
        self("s_waitcnt lgkmcnt(0)")

    def stamp_flush(self, kidx, wave_sgpr, nwaves, srd="s[24:27]"):
        if not STAMP:
            return
        self("s_waitcnt vmcnt(0)")
        self(f"{'s_memrealtime' if os.environ.get('RT') else 's_memtime'} s[98:99]")
        self("s_memrealtime s[100:101]")
        self("s_waitcnt lgkmcnt(0)")
        self("s_mov_b64 exec, 1")
        self(f"s_mul_i32 s67, s2, {nwaves}")
        self(f"s_add_u32 s67, s67, s{wave_sgpr}")
        self("s_lshl_b32 s67, s67, 7")
        self(f"s_add_u32 s67, s67, {STAMP_OFF + kidx*(1<<20)}")
        self("v_mov_b32 v0, 0")
        regs = [96, 100, 98] + [68 + 2 * k for k in range(self.nst)]
        for i, r in enumerate(regs):
            self(f"v_mov_b32 v1, s{r}")
            self(f"buffer_store_dword v1, v0, {srd}, s67 offen offset:{4*i}")
            self("s_nop 1")


def vr(a, n):
    return f"v[{a}:{a+n-1}]"


def srd(A, d, base, nbytes):
    A(f"s_mov_b32 s{d}, s{base}")
    A(f"s_mov_b32 s{d+1}, s{base+1}")
    A(f"s_mov_b32 s{d+2}, {nbytes}")
    A(f"s_mov_b32 s{d+3}, 0x00020000")


def mfma(d, a, b, c):
    cs = vr(c, 16) if c is not None else "0"
    return f"v_mfma_f32_32x32x16_bf16 {vr(d,16)}, {vr(a,4)}, {vr(b,4)}, {cs}"


def smfmac(d, a, b, idx):
    return f"v_smfmac_f32_32x32x32_bf16 {vr(d,16)}, {vr(a,4)}, {vr(b,8)}, v{idx}"


S_BH, S_TB, S_H, S_W, S_TT, S_ROT = 32, 33, 34, 35, 36, 37
S_WOFF, S_XOFF, S_T0, S_T1, S_T2 = 38, 39, 40, 41, 42
S_KH, S_QP, S_JB, S_FLAGS, S_GS, S_GO = 43, 44, 45, 46, 47, 48
S_LW, S_T3, S_T4 = 49, 50, 51
S_NEXT = 60
S_SPIN = 61
S_REM = 62
S_FL = 3
S_POLL = 65
S_A = 66

KVR = 98304
QIMG = 131072
CNT_ADDR = 159744
MX_ADDR = CNT_ADDR + 1024
REGOK_OFF = 68
FO_OFF = (12 << 20) + 65536
S_CB, S_QC, S_KQ = 8, 9, 10
FLAGW = CNT_ADDR + 64
WRDY = CNT_ADDR + 68
SNAPL = CNT_ADDR + 128
SLOT_OF_BLOCK = [0, 2, 3, 1, 0, 2, 3, 1]
VSNAP = 224


def gen_ka():
    A = Asm()
    A("s_cmp_ge_u32 s2, 256")
    A("s_cbranch_scc1 L_ka_end")
    A.stamp()
    DT = opt("dbgtime", 0)
    if DT:
        A("s_memrealtime s[70:71]")
    A("s_load_dwordx4 s[4:7], s[0:1], 0")
    A("s_load_dwordx2 s[8:9], s[0:1], 32")
    A("s_load_dwordx2 s[10:11], s[0:1], 48")
    A("s_load_dwordx4 s[28:31], s[0:1], 64")
    A("v_lshrrev_b32 v1, 6, v0")
    A("v_and_b32 v2, 63, v0")
    A(f"v_readfirstlane_b32 s{S_W}, v1")
    A(f"s_and_b32 s{S_T0}, s2, 7")
    A(f"s_lshr_b32 s{S_T1}, s2, 3")
    MAP = opt("map", 0)
    if MAP == 0:
        A(f"s_and_b32 s{S_A}, s{S_T1}, 3")
        A(f"s_lshl_b32 s{S_BH}, s{S_T0}, 2")
        A(f"s_add_u32 s{S_BH}, s{S_BH}, s{S_A}")
        A(f"s_lshr_b32 s{S_TB}, s{S_T1}, 2")
    elif MAP == 1:
        A(f"s_and_b32 s{S_A}, s{S_T1}, 7")
        A(f"s_lshr_b32 s{S_BH}, s{S_T0}, 1")
        A(f"s_lshl_b32 s{S_BH}, s{S_BH}, 3")
        A(f"s_add_u32 s{S_BH}, s{S_BH}, s{S_A}")
        A(f"s_and_b32 s{S_TB}, s{S_T0}, 1")
        A(f"s_lshl_b32 s{S_TB}, s{S_TB}, 2")
        A(f"s_lshr_b32 s{S_T1}, s{S_T1}, 3")
        A(f"s_add_u32 s{S_TB}, s{S_TB}, s{S_T1}")
    else:
        A(f"s_and_b32 s{S_A}, s{S_T1}, 15")
        A(f"s_lshr_b32 s{S_BH}, s{S_T0}, 2")
        A(f"s_lshl_b32 s{S_BH}, s{S_BH}, 4")
        A(f"s_add_u32 s{S_BH}, s{S_BH}, s{S_A}")
        A(f"s_and_b32 s{S_TB}, s{S_T0}, 3")
        A(f"s_lshl_b32 s{S_TB}, s{S_TB}, 1")
        A(f"s_lshr_b32 s{S_T1}, s{S_T1}, 4")
        A(f"s_add_u32 s{S_TB}, s{S_TB}, s{S_T1}")
    A(f"s_and_b32 s{S_H}, s{S_BH}, 15")
    rm = opt("rot", 3)
    if rm == 3:
        A(f"s_add_u32 s{S_ROT}, s{S_TB}, s{S_T0}")
        A(f"s_cmp_ge_u32 s{S_ROT}, 7")
        A(f"s_cselect_b32 s{S_T1}, 7, 0")
        A(f"s_sub_u32 s{S_ROT}, s{S_ROT}, s{S_T1}")
    elif rm == 5:
        A(f"s_and_b32 s{S_ROT}, s{S_BH}, 3")
        A(f"s_and_b32 s{S_T1}, s{S_TB}, 3")
        A(f"s_lshl_b32 s{S_T1}, s{S_T1}, 1")
        A(f"s_add_u32 s{S_ROT}, s{S_ROT}, s{S_T1}")
        A(f"s_lshr_b32 s{S_T1}, s{S_T0}, 1")
        A(f"s_add_u32 s{S_ROT}, s{S_ROT}, s{S_T1}")
    elif rm == 0:
        A(f"s_lshl_b32 s{S_ROT}, s{S_A}, 1")
        A(f"s_add_u32 s{S_ROT}, s{S_ROT}, s{S_T0}")
    elif rm == 1:
        A(f"s_mov_b32 s{S_ROT}, s{S_T0}")
    elif rm == 2:
        A(f"s_and_b32 s{S_ROT}, s{S_A}, 1")
        A(f"s_mul_i32 s{S_ROT}, s{S_ROT}, 3")
        A(f"s_add_u32 s{S_ROT}, s{S_ROT}, s{S_T0}")
    A(f"s_cmp_ge_u32 s{S_ROT}, 7")
    A(f"s_cselect_b32 s{S_T1}, 7, 0")
    A(f"s_sub_u32 s{S_ROT}, s{S_ROT}, s{S_T1}")
    A("v_lshlrev_b32 v1, 4, v2")
    A("v_and_b32 v3, 31, v2")
    A("v_lshrrev_b32 v4, 5, v2")
    A("v_lshrrev_b32 v5, 2, v3")
    A("v_and_b32 v6, 3, v2")
    A("v_mul_u32_u24 v7, 2688, v5")
    A("v_lshl_add_u32 v7, v6, 4, v7")
    A("v_mov_b32 v8, v7")
    A("v_mul_u32_u24 v9, 896, v4")
    A("v_add3_u32 v7, v7, v9, v9" if False else "v_add_u32 v7, v7, v9")
    A("v_add_u32 v7, 896, v7")
    A("v_lshrrev_b32 v5, 3, v2")
    A("v_mul_u32_u24 v9, 896, v5")
    A("v_and_b32 v5, 7, v2")
    A("v_lshrrev_b32 v11, 4, v2")
    A("v_xor_b32 v5, v5, v11")
    A("v_xor_b32 v11, 4, v5")
    A("v_lshl_add_u32 v10, v11, 4, v9")
    A("v_lshl_add_u32 v9, v5, 4, v9")
    A("v_lshlrev_b32 v225, 2, v3")
    A(f"s_lshl_b32 s{S_LW}, s{S_W}, 12")
    A(f"s_lshl_b32 s{S_TT}, s{S_TB}, 3")
    A(f"s_add_u32 s{S_TT}, s{S_TT}, s{S_W}")
    A(f"s_mul_i32 s{S_XOFF}, s{S_TT}, 28672")
    A(f"s_add_u32 s{S_T4}, s{S_XOFF}, 896")
    A(f"s_lshl_b32 s{S_T1}, s{S_ROT}, 7")
    A(f"s_add_u32 s{S_XOFF}, s{S_XOFF}, s{S_T1}")
    A(f"s_lshl_b32 s{S_FL}, s{S_BH}, 7")
    A(f"s_add_u32 s{S_FL}, s{S_FL}, {FL_OFF}")
    A(f"s_mov_b32 s{S_POLL}, 0")
    A(f"s_mul_i32 s{S_T0}, s{S_H}, 56")
    A(f"s_mul_i32 s{S_WOFF}, s{S_W}, 21504")
    A(f"s_add_u32 s{S_WOFF}, s{S_WOFF}, s{S_T0}")
    A(f"s_add_u32 s{S_T3}, s{S_WOFF}, {7*172032}")
    A(f"s_mul_i32 s{S_T1}, s{S_ROT}, 172032")
    A(f"s_add_u32 s{S_WOFF}, s{S_WOFF}, s{S_T1}")
    A(f"s_lshl_b32 s{S_T2}, s{S_W}, 9")
    A(f"s_cmp_ge_u32 s{S_BH}, 16")
    A("s_waitcnt lgkmcnt(0)")
    A("s_cselect_b32 s6, s8, s6")
    A("s_cselect_b32 s7, s9, s7")
    A.stamp()
    srd(A, 12, 4, 1835008)
    srd(A, 16, 6, 1204224)
    srd(A, 24, 30, WS_USED)

    XB = 88
    AK, AV, AQ = 16, 32, 48
    WF = [64, 76]

    def dma_x(c):
        for i in range(4):
            A(f"s_add_u32 m0, s{S_LW}, {(c%3)*32768 + i*1024}")
            if i == 0:
                A("s_nop 0")
                A(f"buffer_load_dwordx4 v9, s[12:15], s{S_XOFF} offen lds")
            else:
                A(f"s_add_u32 s{S_T1}, s{S_XOFF}, {i*7168}")
                A(f"buffer_load_dwordx4 v{9 + (i&1)}, s[12:15], s{S_T1} offen lds")
        A(f"s_add_u32 s{S_XOFF}, s{S_XOFF}, 128")
        A(f"s_cmp_ge_u32 s{S_XOFF}, s{S_T4}")
        A(f"s_cselect_b32 s{S_T1}, 896, 0")
        A(f"s_sub_u32 s{S_XOFF}, s{S_XOFF}, s{S_T1}")

    def dma_x_piece(c, i):
        A(f"s_add_u32 m0, s{S_LW}, {(c%3)*32768 + i*1024}")
        if i == 0:
            A("s_nop 0")
            A(f"buffer_load_dwordx4 v9, s[12:15], s{S_XOFF} offen lds")
        else:
            A(f"s_add_u32 s{S_T1}, s{S_XOFF}, {i*7168}")
            A(f"buffer_load_dwordx4 v{9 + (i&1)}, s[12:15], s{S_T1} offen lds")
        if i == 3:
            A(f"s_add_u32 s{S_XOFF}, s{S_XOFF}, 128")
            A(f"s_cmp_ge_u32 s{S_XOFF}, s{S_T4}")
            A(f"s_cselect_b32 s{S_T1}, 896, 0")
            A(f"s_sub_u32 s{S_XOFF}, s{S_XOFF}, s{S_T1}")

    def read_x(c):
        for u in range(4):
            if c % 3 < 2:
                A(f"ds_read_b128 {vr(XB+16*c+4*u,4)}, v{200+u} offset:{(c%3)*32768}")
            else:
                A(f"ds_read_b128 {vr(XB+16*c+4*u,4)}, v{241+u} offset:32768")

    def hx(c, vm):
        A(f"s_waitcnt vmcnt({vm})")
        read_x(c)
        if c + 2 < 7:
            A("s_waitcnt lgkmcnt(0)")
            dma_x(c + 2)

    def late_setup():
        srd(A, 56, 28, 256)
        A(f"s_lshl_b32 s{S_T1}, s{S_BH}, 18")
        A(f"s_add_u32 s20, s30, s{S_T1}")
        A("s_addc_u32 s21, s31, 0")
        A("s_mov_b32 s22, 262144")
        A("s_mov_b32 s23, 0x00020000")
        A(f"s_lshl_b32 s63, s{S_BH}, 3")
        A("v_bfe_u32 v5, v3, 1, 3")
        A("v_lshlrev_b32 v11, 2, v4")
        A("v_xor_b32 v5, v5, v11")
        A("v_lshlrev_b32 v11, 7, v3")
        A(f"v_add_u32 v11, s{S_LW}, v11")
        for u in range(4):
            A(f"v_xor_b32 v12, {u}, v5")
            A(f"v_lshl_add_u32 v{200+u}, v12, 4, v11")
        for u in range(4):
            A(f"v_add_u32 v{241+u}, 32768, v{200+u}")
        A("v_bfe_u32 v15, v2, 2, 2")
        A("v_lshlrev_b32 v14, 6, v15")
        A("v_bfe_u32 v15, v2, 4, 1")
        A("v_lshl_add_u32 v14, v15, 5, v14")
        A("v_lshl_add_u32 v14, v6, 3, v14")
        A("v_lshl_add_u32 v15, v4, 11, v14")
        A(f"v_add_u32 v15, {QIMG}, v15")
        A("v_lshl_add_u32 v14, v4, 12, v14")
        A(f"v_add_u32 v14, {KVR}, v14")
        A(f"s_lshr_b32 s{S_KH}, s{S_W}, 2")
        A(f"s_and_b32 s{S_QP}, s{S_W}, 3")
        A(f"s_cmp_ge_u32 s{S_BH}, 16")
        A(f"s_cselect_b32 s{S_GS}, -1.0, 1.0")
        A(f"s_cselect_b32 s{S_GO}, 1.0, 0")
        for r in range(16, 64):
            A(f"v_mov_b32 v{r}, 0")
        A("v_mov_b32 v207, 0")
        A(f"v_mov_b32 v5, {CNT_ADDR}")
        A("ds_write_b32 v5, v207")
        A("ds_write_b32 v5, v207 offset:64")
        srd(A, 52, 10, 896)
        A("v_lshrrev_b32 v12, 3, v2")
        A("v_min_u32 v12, 6, v12")
        A("v_and_b32 v204, 7, v2")
        A("v_lshlrev_b32 v13, 12, v12")
        A("v_lshl_add_u32 v13, v204, 6, v13")
        A(f"s_add_u32 s{S_T1}, s{S_T2}, {QIMG + 56}")
        A(f"v_add_u32 v13, s{S_T1}, v13")
        A(f"v_add_u32 v12, s{S_ROT}, v12")
        A("v_subrev_u32 v11, 7, v12")
        A("v_min_u32 v12, v12, v11")
        A("v_lshl_add_u32 v12, v12, 6, v204")
        A(f"s_lshl_b32 s{S_T1}, s{S_W}, 3")
        A(f"v_add_u32 v12, s{S_T1}, v12")
        A("v_lshlrev_b32 v12, 1, v12")
        A("buffer_load_ushort v206, v12, s[52:55], 0 offen")
        A("ds_write_b32 v5, v207 offset:68")
        A(f"s_lshr_b32 s{S_CB}, s2, 5")
        A(f"s_min_u32 s{S_CB}, s{S_CB}, 6")
        A(f"s_and_b32 s{S_QP}, s2, 7")
        A(f"s_lshl_b32 s{S_QP}, s{S_QP}, 2")
        A(f"s_bfe_u32 s{S_T1}, s2, 0x20003")
        A(f"s_add_u32 s{S_QP}, s{S_QP}, s{S_T1}")
        A(f"s_lshl_b32 s{S_QC}, s{S_QP}, 1")
        A(f"s_and_b32 s{S_T1}, s{S_W}, 1")
        A(f"s_add_u32 s{S_QC}, s{S_QC}, s{S_T1}")
        A(f"s_lshr_b32 s{S_KQ}, s{S_W}, 1")
        A(f"s_lshl_b32 s{S_T1}, s{S_QP}, 8")
        A(f"v_lshl_add_u32 v239, v2, 2, s{S_T1}")
        A("ds_write_b64 v5, v[16:17] offset:80")
        A(f"s_mov_b32 s{S_T1}, s{S_TT}")
        A(f"s_lshl_b32 s64, s{S_T1}, 16")
        A(f"s_lshl_b32 s11, s{S_BH}, 11")
        A(f"s_add_u32 s64, s64, s11")
        A(f"s_add_u32 s64, s64, {OF_OFF}")
        A(f"s_lshl_b32 s{S_T1}, s{S_T1}, 7")
        A(f"s_lshl_b32 s11, s{S_BH}, 2")
        A(f"s_add_u32 s{S_T1}, s{S_T1}, s11")
        A(f"v_mov_b32 v234, s{S_T1}")
        A(f"s_mov_b32 s11, {FO_OFF}")
        A(f"s_cmp_lg_u32 s{S_W}, s{S_POLL}")
        A("s_cbranch_scc1 L_ka_nosnap3")
        A("buffer_load_dword v240, v239, s[24:27], s11 offen sc1")
        A("L_ka_nosnap3:")
        A("s_mov_b64 exec, 1")
        A("buffer_load_dword v233, v234, s[24:27], s11 offen sc1")
        if opt("pt", 0):
            A(f"s_cmp_lg_u32 s{S_W}, 2")
            A("s_cbranch_scc1 L_ka_nopt")
            A("s_load_dwordx2 s[4:5], s[0:1], 16")
            A("s_load_dwordx2 s[6:7], s[0:1], 40")
            A("s_load_dwordx2 s[60:61], s[0:1], 56")
            A("v_mov_b32 v228, 0")
            A(f"s_lshl_b32 s{S_T1}, s{S_TT}, 12")
            A(f"buffer_load_dword v229, v228, s[20:23], s{S_T1} offen sc1")
            A("buffer_load_dword v229, v228, s[24:27], s64 offen sc1")
            A(f"s_lshl_b32 s{S_T1}, s{S_QC}, 16")
            A(f"s_add_u32 s{S_T1}, s{S_T1}, {OF_OFF}")
            A(f"buffer_load_dword v229, v228, s[24:27], s{S_T1} offen sc1")
            A("buffer_load_dword v229, v228, s[56:59], 0 offen sc1")
            A("s_waitcnt lgkmcnt(0)")
            A("global_load_dword v229, v228, s[4:5]")
            A("global_load_dword v229, v228, s[6:7]")
            A("global_load_dword v229, v228, s[60:61]")
            A("L_ka_nopt:")
        A("s_mov_b64 exec, -1")

    def trreads(c, u, st, slices):
        base = "v14" if c < 4 else "v15"
        cc = c if c < 4 else c - 4
        n = 0
        for t in slices:
            for tp in range(2):
                off = (8 * cc + u) * 1536 + t * 512 + tp * 256
                A(f"ds_read_b64_tr_b16 {vr(WF[st]+4*t+2*tp,2)}, {base} offset:{off}")
                n += 1
        return n

    def mm(c, u, st, slices):
        xf = XB + 16 * c + 4 * u
        for t in slices:
            if t == 0:
                A(mfma(AQ, WF[st] + 0, xf, AQ))
            elif t == 1:
                A(mfma(AK, WF[st] + 4, xf, AK))
            else:
                A(mfma(AV, xf, WF[st] + 8, AV))

    def chunks_mfma(cs, slices=(1, 2)):
        steps = [(c, u) for c in cs for u in range(4)]
        trreads(*steps[0], 0, slices)
        for i, (c, u) in enumerate(steps):
            if i + 1 < len(steps):
                n = trreads(*steps[i + 1], (i + 1) % 2, slices)
                A(f"s_waitcnt lgkmcnt({n})")
            else:
                A("s_waitcnt lgkmcnt(0)")
            mm(c, u, i % 2, slices)

    def adv_w():
        A(f"s_add_u32 s{S_WOFF}, s{S_WOFF}, 172032")
        A(f"s_cmp_ge_u32 s{S_WOFF}, s{S_T3}")
        A(f"s_cselect_b32 s{S_T1}, {7*172032}, 0")
        A(f"s_sub_u32 s{S_WOFF}, s{S_WOFF}, s{S_T1}")

    q = []

    def dma_wkv(c):
        A(f"s_lshl_b32 s{S_T1}, s{S_T2}, 1")
        A(f"s_add_u32 m0, s{S_T1}, {KVR + (c%4)*8192}")
        A("s_nop 0" if not opt("exp_now", 0) else "s_mov_b64 exec, 1")
        A(f"buffer_load_dwordx4 v7, s[16:19], s{S_WOFF} offen lds")
        if opt("exp_now", 0):
            A("s_mov_b64 exec, -1")
        adv_w()
        q.append(("W", c))

    def dma_wq(c):
        A(f"s_add_u32 m0, s{S_T2}, {QIMG + c*4096}")
        A("s_mov_b32 exec_hi, 0")
        A(f"buffer_load_dwordx4 v8, s[16:19], s{S_WOFF} offen lds")
        A("s_mov_b32 exec_hi, -1")
        adv_w()
        q.append(("Q", c))

    def dma_xq(c):
        dma_x(c)
        q.extend([("X", c)] * 4)

    def younger(*tags):
        last = max(i for i, t in enumerate(q) if t in tags)
        return len(q) - 1 - last

    A(f"s_cmp_lg_u32 s{S_W}, s{S_POLL}")
    A("s_cbranch_scc1 L_ka_nosnap")
    A(f"buffer_load_dword v{VSNAP}, v225, s[24:27], s{S_FL} offen sc1")
    A("L_ka_nosnap:")
    WLA = opt("wla", 3)
    XD = 3
    WLA = XD
    IB = opt("ib", 2)
    XI = opt("xi", 3)
    for c in range(XI):
        dma_wkv(c)
        dma_xq(c)
        if IB == 1 and c < XI - 1:
            A("s_barrier")
        if IB == 2 and c == 0:
            late_setup()
            q.append(("G", 0))
            q.append(("G", 1))
            A("s_barrier")
        if IB == 3 and c == 0:
            A("s_barrier")
    if IB != 2:
        late_setup()
        q.append(("G", 0))
        q.append(("G", 1))
    A.stamp()
    IDX = 5
    QF = [64, 72]
    O = [16, 32]
    S = [112, 128, 144, 160]
    KF = [176, 184]
    VF = [192, 200, 208, 216]
    T = 48
    VB = 6
    GB = [12, 13]
    PK, PV = 208, 216
    lq = []

    def lwait(tag):
        last = max(i for i, t in enumerate(lq) if t == tag)
        A(f"s_waitcnt lgkmcnt({min(15, len(lq) - 1 - last)})")

    def kvread(i):
        c, u = divmod(i, 4)
        for t in (1, 2):
            for tp in range(2):
                A(f"ds_read_b64_tr_b16 {vr(64+8*(i%3)+4*(t-1)+2*tp,2)}, v14 offset:{(c%4)*8192 + u*1024 + (t-1)*512 + tp*256}")
                lq.append(("T", i))

    def rx(c):
        read_x(c)
        lq.extend([("X", c)] * 4)

    def arrive(c):
        tags = [("X", c), ("W", c)] + ([("Q", 3)] if c == 6 and QE else [])
        assert q.count(("X", c)) == 4 and q.count(("W", c)) == 1
        A(f"s_waitcnt vmcnt({younger(*tags)}) lgkmcnt(0)")
        lq.clear()
        if c == 6 and QE:
            A("s_mov_b32 exec_hi, 0")
            A("ds_write_b16 v13, v206")
            A("s_mov_b32 exec_hi, -1")
            A("s_waitcnt lgkmcnt(0)")
            lq.clear()
        A("s_barrier")
        rx(c)

    pend = []

    def xop(c, i):
        def f():
            dma_x_piece(c, i)
            q.append(("X", c))
        return f

    for c in range(XI, 7):
        e = -1 if c < 3 else (-1 if c == 3 else 4 * (c - 3))
        ew = -1 if c < 4 else 4 * (c - 3)
        pend.append((ew, (lambda cc: (lambda: dma_wkv(cc)))(c)))
        for i in range(4):
            pend.append((e, xop(c, i)))
    for j in range(7):
        pend.append((4 * opt("qat", 4), (lambda jj: (lambda: dma_wq(jj)))(j)))
    RATE = opt("rate", 2)

    def drain(step, n):
        while n > 0 and pend and pend[0][0] <= step:
            pend.pop(0)[1]()
            n -= 1

    QE = 0
    A(f"s_waitcnt vmcnt({younger(('X', 0), ('W', 0))})")
    A(f"s_cmp_lg_u32 s{S_W}, s{S_POLL}")
    A("s_cbranch_scc1 L_ka_nosnap2")
    A(f"v_add_u32 v11, {SNAPL}, v225")
    A(f"ds_write_b32 v11, v{VSNAP}")
    A("L_ka_nosnap2:")
    read_x(0)
    A("s_waitcnt lgkmcnt(0)")
    A.stamp()
    A("s_barrier")
    kvread(0)
    kvread(1)
    for i in range(28):
        c, u = divmod(i, 4)
        if u == 2 and c < 6:
            arrive(c + 1)
            if c == 3 and opt("st4", 0):
                A.stamp()
                lq.clear()
                lq.extend([("T", i)] * 1 + [("T", i + 1)] * 0)
        if i + 2 < 28:
            kvread(i + 2)
        if ("T", i) in lq:
            lwait(("T", i))
        xf = XB + 16 * c + 4 * u
        A(mfma(AK, 64 + 8 * (i % 3), xf, AK))
        A(mfma(AV, xf, 64 + 8 * (i % 3) + 4, AV))
        drain(i, RATE)
    assert not pend
    A("s_load_dwordx2 s[4:5], s[0:1], 16")
    A("s_load_dwordx2 s[6:7], s[0:1], 40")
    A("s_load_dwordx2 s[28:29], s[0:1], 56")
    A.stamp()

    def publish():
        A("s_waitcnt vmcnt(0)")
        A("v_mov_b32 v9, 1")
        A(f"s_lshl_b32 s{S_T2}, s{S_TB}, 2")
        A(f"v_mov_b32 v11, s{S_T2}")
        A("s_mov_b64 exec, 1")
        A("ds_add_rtn_u32 v10, v5, v9")
        A(f"v_add_u32 v12, {SNAPL}, v11")
        A("ds_read_b32 v9, v12")
        A("s_waitcnt lgkmcnt(0)")
        A(f"v_readfirstlane_b32 s{S_T1}, v10")
        A("v_add_u32 v9, 1, v9")
        A("s_nop 0")
        A(f"s_cmp_lg_u32 s{S_T1}, 7")
        A("s_cbranch_scc1 L_ka_nopub")
        A(f"buffer_store_dword v9, v11, s[24:27], s{S_FL} offen sc1")
        A("L_ka_nopub:")
        A("s_mov_b64 exec, -1")

    qsteps = [(c, u) for c in range(7) for u in range(4)]
    fill = {}
    fill[0] = ["v_and_b32 v6, 0x13, v3", "v_bfe_u32 v7, v3, 2, 1", "v_lshl_or_b32 v6, v7, 3, v6",
               "v_bfe_u32 v7, v3, 3, 1", "v_lshl_or_b32 v6, v7, 2, v6", "v_lshl_add_u32 v6, v4, 5, v6",
               "v_lshlrev_b32 v6, 4, v6", f"v_add_u32 v7, s{S_LW}, v6", f"v_add_u32 v8, s{S_LW}, v1",
               f"s_lshl_b32 s{S_T0}, s{S_TT}, 12"]
    ZP = opt("zp", 1)
    fill[1] = ["s_mov_b32 exec_lo, 0", f"v_mov_b32 v{AK+12}, 1.0"] + \
              ([f"v_mov_b32 v{AK+r}, 0" for r in (13, 14, 15)] if ZP else []) + ["s_mov_b32 exec_lo, -1"] + \
              [f"v_cvt_pk_bf16_f32 v{PK+i}, v{AK+2*i}, v{AK+2*i+1}" for i in range(8)] + \
              [f"buffer_store_dwordx4 {vr(PK,4)}, v6, s[20:23], s{S_T0} offen sc1",
               f"buffer_store_dwordx4 {vr(PK+4,4)}, v6, s[20:23], s{S_T0} offen offset:1024 sc1"]
    fill[2] = [f"v_cvt_pk_bf16_f32 v{PV+i}, v{AV+2*i}, v{AV+2*i+1}" for i in range(8)]
    fill[3] = ["s_mov_b32 exec_lo, 0x10000000", "s_mov_b32 exec_hi, 0x10000000"] + \
              [f"v_mov_b32 v{PV+i}, 0x3f803f80" for i in range(8)] + \
              ((["s_mov_b32 exec_lo, 0xe0000000", "s_mov_b32 exec_hi, 0xe0000000"] +
                [f"v_mov_b32 v{PV+i}, 0" for i in range(8)]) if ZP else []) + ["s_mov_b64 exec, -1"] + \
              [f"buffer_store_dwordx4 {vr(PV,4)}, v1, s[20:23], s{S_T0} offen offset:2048 sc1",
               f"buffer_store_dwordx4 {vr(PV+4,4)}, v1, s[20:23], s{S_T0} offen offset:3072 sc1"]
    fill[4] = [f"ds_write_b128 v7, {vr(PK,4)}", f"ds_write_b128 v7, {vr(PK+4,4)} offset:1024"]
    fill[5] = [f"ds_write_b128 v8, {vr(PV,4)} offset:2048", f"ds_write_b128 v8, {vr(PV+4,4)} offset:3072"]
    zl = [O[0] + r for r in range(16)] + [O[1] + r for r in range(16)]
    for k in range(8):
        fill[6 + k] = [f"v_mov_b32 v{r}, 0" for r in zl[4 * k:4 * k + 4]]
    fill[17] = ["v_lshrrev_b32 v236, 2, v2", "v_mul_u32_u24 v236, 896, v236", "v_and_b32 v237, 3, v2",
                "v_lshl_add_u32 v236, v237, 4, v236", "v_add_u32 v237, 64, v236"]
    fill[25] = [f"s_xor_b32 s{S_T3}, s{S_LW}, 16384", f"v_add_u32 v7, s{S_T3}, v1",
                f"s_lshl_b32 s{S_T3}, s{S_KH}, 14", f"v_add_u32 v10, s{S_T3}, v1", f"v_mov_b32 v{VB}, v10",
                f"v_mov_b32 v{IDX}, 0xdddd"] + (["v_mov_b32 v232, 0"] if STAMP else [])
    fill[26] = [f"v_mov_b32 v{VF[3]+r}, 0" for r in range(4, 8)] + \
               [f"s_mov_b32 s{S_FLAGS}, 0", f"s_mov_b32 s{S_NEXT}, 1", f"s_mov_b32 s{S_REM}, 0xff",
                f"s_bitset0_b32 s{S_REM}, s{S_TB}",
                f"s_mov_b32 s{S_T3}, 0x{f32bits(QSCALE):08x}", f"s_mov_b32 s{S_T4}, 0x{f32bits(-LOG2E):08x}"]
    PUB_AT = opt("pubat", 6)
    BAR_AT = opt("barat", 10)
    POLL_AT = opt("pollat", 27)
    BAR_AT = opt("barat", 20)
    QD = opt("qd", 4)

    def qread(i):
        c, u = qsteps[i]
        for tp in range(2):
            A(f"ds_read_b64_tr_b16 {vr(64+4*(i%6)+2*tp,2)}, v15 offset:{c*4096 + u*512 + tp*256}")

    A("s_nop 1")
    for k in range(6):
        for ins in fill.pop(k):
            A(ins)
    A("s_waitcnt vmcnt(4)")
    A("s_mov_b32 exec_hi, 0x00ffffff")
    A("ds_write_b16 v13, v206")
    A("s_mov_b32 exec_hi, -1")
    A("s_waitcnt lgkmcnt(0)")
    srd(A, 12, 4, 401408)
    srd(A, 16, 6, 401408)
    srd(A, 52, 28, 1835008)
    A("s_barrier")
    A.stamp()
    for i in range(QD):
        qread(i)
    for i, (c, u) in enumerate(qsteps):
        if i == PUB_AT:
            publish()
        if i == POLL_AT:
            A(f"s_cmp_lg_u32 s{S_W}, s{S_POLL}")
            A("s_cbranch_scc1 L_ka_nopoll")
            A(f"buffer_load_dword v227, v225, s[24:27], s{S_FL} offen sc1")
            A("L_ka_nopoll:")
        seg_end = len(qsteps) - 1
        if i + QD <= seg_end:
            qread(i + QD)
        A(f"s_waitcnt lgkmcnt({2*(min(seg_end, i+QD)-i)})")
        A(mfma(AQ, 64 + 4 * (i % 6), XB + 16 * c + 4 * u, AQ))
        for ins in fill.get(i, []):
            A(ins)
    A.stamp()

    def rtile(q_, I):
        A(f"ds_read_b128 {vr(KF[I%2],4)}, v{VB} offset:{q_*4096}")
        A(f"ds_read_b128 {vr(KF[I%2]+4,4)}, v{VB} offset:{q_*4096+1024}")
        A(f"ds_read_b128 {vr(VF[I%4],4)}, v{VB} offset:{q_*4096+2048}")
        A(f"ds_read_b128 {vr(VF[I%4]+4,4)}, v{VB} offset:{q_*4096+3072}")

    rtile(0, 0)
    rtile(1, 1)
    for r in range(8, 16):
        A(f"v_mov_b32 v{S[3]+r}, 0")
    A(f"v_mul_f32 v12, s{S_T4}, v{AQ+12}")
    A("v_exp_f32 v12, v12")
    for r in range(16):
        A(f"v_mul_f32 v{AQ+r}, s{S_T3}, v{AQ+r}")
    for i in range(8):
        A(f"v_cvt_pk_bf16_f32 v{QF[1]+i}, v{AQ+2*i}, v{AQ+2*i+1}")
    A("s_mov_b32 exec_lo, 0")
    A(f"v_mov_b32 v{QF[1]+6}, 0")
    A(f"v_mov_b32 v{QF[1]+7}, 0")
    A("s_mov_b32 exec_lo, -1")
    A("s_waitcnt lgkmcnt(6)")
    A(mfma(S[1], KF[0], QF[1], None))
    A(mfma(S[1], KF[0] + 4, QF[1] + 4, S[1]))
    A(f"ds_write_b128 v8, {vr(QF[1],4)} offset:32768")
    A("v_add_f32 v12, 1.0, v12")
    A("v_rcp_f32 v12, v12")
    A(f"s_cmp_lg_u32 s{S_W}, s{S_POLL}")
    A("s_cbranch_scc1 L_ka_nofw")
    A("s_waitcnt vmcnt(0)")
    A(f"v_cmp_ne_u32 vcc, v227, v{VSNAP}")
    A(f"v_mov_b32 v11, {FLAGW}")
    A("s_nop 4")
    A(f"s_and_b32 s{S_FLAGS}, vcc_lo, 0xff")
    A(f"v_mov_b32 v9, s{S_FLAGS}")
    A("ds_write_b32 v11, v9")
    A("L_ka_nofw:")
    A(f"v_mul_f32 v12, s{S_GS}, v12")
    A(f"v_add_f32 v12, s{S_GO}, v12")
    A(f"v_mov_b32 v{GB[1]}, v12")
    A("s_nop 1")
    A(f"v_permlane32_swap_b32 v12, v{GB[1]}")
    A("s_nop 3")
    s0 = S[1]
    t = T
    A(f"v_max3_f32 v{t}, v{s0}, v{s0+1}, v{s0+2}")
    A(f"v_max3_f32 v{t+1}, v{s0+3}, v{s0+4}, v{s0+5}")
    A(f"v_max3_f32 v{t+2}, v{s0+6}, v{s0+7}, v{s0+8}")
    A(f"v_max3_f32 v{t+3}, v{s0+9}, v{s0+10}, v{s0+11}")
    A(f"v_max3_f32 v{t+4}, v{s0+12}, v{s0+13}, v{s0+14}")
    A(f"v_max3_f32 v{t}, v{t}, v{t+1}, v{s0+15}")
    A(f"v_max3_f32 v{t+2}, v{t+2}, v{t+3}, v{t+4}")
    A(f"v_max_f32 v{t}, v{t}, v{t+2}")
    A(f"v_mov_b32 v{t+1}, v{t}")
    A("s_nop 1")
    A(f"v_permlane32_swap_b32 v{t}, v{t+1}")
    A("s_nop 1")
    A(f"v_max_f32 v{t}, v{t}, v{t+1}")
    A(f"v_ashrrev_i32 v{t+1}, 31, v{t}")
    A(f"v_and_b32 v{t+1}, 0xffff, v{t+1}")
    A(f"v_add_u32 v{t}, v{t}, v{t+1}")
    A(f"v_lshrrev_b32 v{t}, 16, v{t}")
    A("s_mov_b32 exec_lo, 0")
    A(f"v_xor_b32 v{QF[1]+6}, 0x8000, v{t}")
    A("s_mov_b32 exec_lo, -1")
    A(f"ds_write_b128 v8, {vr(QF[1]+4,4)} offset:{32768+1024}")
    A("s_nop 0")
    A(mfma(S[1], KF[0], QF[1], None))
    A(mfma(S[1], KF[0] + 4, QF[1] + 4, S[1]))
    A("s_waitcnt lgkmcnt(0)")
    A("s_barrier")
    A.stamp()
    A(f"ds_read_b128 {vr(QF[0],4)}, v7 offset:{32768}")
    A(f"ds_read_b128 {vr(QF[0]+4,4)}, v7 offset:{32768+1024}")

    def dma_block():
        lbl = f"L_ka_fl{len(A.lines)}"
        A(f"s_and_b32 s{S_T0}, s{S_FLAGS}, s{S_REM}")
        A(f"s_cbranch_scc1 {lbl}_ok")
        A(f"s_mov_b32 s{S_SPIN}, 0")
        A(f"v_mov_b32 v8, {FLAGW}")
        A(f"{lbl}_spin:")
        A(f"s_cmp_lg_u32 s{S_W}, s{S_POLL}")
        A(f"s_cbranch_scc1 {lbl}_lds")
        A(f"buffer_load_dword v11, v225, s[24:27], s{S_FL} offen sc1")
        A("v_mov_b32 v9, 0")
        A(f"s_and_b32 s{S_T1}, s{S_SPIN}, 7")
        A(f"s_cmp_lg_u32 s{S_T1}, 7")
        A(f"s_cbranch_scc1 {lbl}_nodbg")
        A("buffer_load_dword v9, v9, s[56:59], s63 offen sc1")
        A(f"{lbl}_nodbg:")
        A("s_waitcnt vmcnt(0)")
        A(f"v_cmp_ne_u32 vcc, v11, v{VSNAP}")
        A("s_nop 4")
        A(f"s_or_b32 s{S_T1}, vcc_lo, s{S_FLAGS}")
        A(f"v_or_b32 v11, s{S_T1}, v9")
        A("v_and_b32 v11, 0xff, v11")
        A("ds_write_b32 v8, v11")
        A(f"s_add_u32 s{S_SPIN}, s{S_SPIN}, 16")
        A(f"s_branch {lbl}_chk")
        A(f"{lbl}_lds:")
        A("ds_read_b32 v11, v8")
        A("s_waitcnt lgkmcnt(0)")
        A(f"{lbl}_chk:")
        A(f"v_readfirstlane_b32 s{S_FLAGS}, v11")
        A(f"s_add_u32 s{S_SPIN}, s{S_SPIN}, 1")
        A(f"s_mov_b32 s{S_T0}, s{S_REM}")
        A(f"s_cmp_ge_u32 s{S_SPIN}, 0x1000000")
        A(f"s_cbranch_scc1 {lbl}_ok")
        A(f"s_and_b32 s{S_T0}, s{S_FLAGS}, s{S_REM}")
        A(f"s_cbranch_scc1 {lbl}_ok")
        A(f"s_sleep {opt('sleep', 1)}")
        A(f"s_branch {lbl}_spin")
        A(f"{lbl}_ok:")
        A(f"s_lshl_b32 s{S_T1}, s{S_T0}, 8")
        A(f"s_or_b32 s{S_T0}, s{S_T0}, s{S_T1}")
        A(f"s_lshr_b32 s{S_T0}, s{S_T0}, s{S_TB}")
        A(f"s_ff1_i32_b32 s{S_T0}, s{S_T0}")
        A(f"s_add_u32 s{S_T0}, s{S_T0}, s{S_TB}")
        A(f"s_and_b32 s{S_T0}, s{S_T0}, 7")
        A(f"s_bitset0_b32 s{S_REM}, s{S_T0}")
        A(f"s_lshl_b32 s{S_T0}, s{S_T0}, 15")
        A(f"s_add_u32 s{S_T0}, s{S_T0}, s{S_LW}")
        tab = sum(sl_ << (4 * j) for j, sl_ in enumerate(SLOT_OF_BLOCK))
        A(f"s_lshl_b32 s{S_T1}, s{S_NEXT}, 2")
        A(f"s_lshr_b32 s{S_T1}, 0x{tab:08x}, s{S_T1}")
        A(f"s_and_b32 s{S_T1}, s{S_T1}, 15")
        A(f"s_lshl_b32 s{S_T1}, s{S_T1}, 15")
        A(f"s_add_u32 m0, s{S_T1}, s{S_LW}")
        A(f"s_add_u32 s{S_NEXT}, s{S_NEXT}, 1")
        for i in range(4):
            A(f"buffer_load_dwordx4 v1, s[20:23], s{S_T0} offen offset:{i*1024} sc1 lds")

    dma_block()
    A("s_waitcnt lgkmcnt(0)")
    A(mfma(S[0], KF[0], QF[0], None))
    A(mfma(S[0], KF[0] + 4, QF[0] + 4, S[0]))
    D2 = opt("d2", 1)
    if not D2:
        dma_block()
    else:
        A("s_nop 7")
        A("s_nop 1")
    CN = [None, None]

    PRIO = opt("prio", 1)

    def unit(I, s, q=None, do_qk=True, first=False):
        u = 2 * I + s
        sc = S[u % 4]
        sp = S[(u - 1) % 4]
        sn = S[(u + 2) % 4]
        E = lambda r: A(f"v_exp_f32 v{sc+r}, v{sc+r}")
        if s == 0:
            A("s_waitcnt lgkmcnt(0)")
        E(0); E(1)
        if s == 0:
            A(smfmac(O[1], VF[(I - 1) % 4] + 4, sp + 8, IDX))
        else:
            A(smfmac(O[0], VF[I % 4] + 4, sp + 8, IDX))
        if s == 0 and q is not None:
            A(f"ds_read_b128 {vr(KF[I%2],4)}, v{VB} offset:{q*4096}")
            A(f"ds_read_b128 {vr(KF[I%2]+4,4)}, v{VB} offset:{q*4096+1024}")
        E(2); E(3); E(4); E(5)
        if do_qk:
            A(mfma(sn, KF[(I + 1) % 2], QF[s], CN[s]))
        if s == 0 and q is not None:
            A(f"ds_read_b128 {vr(VF[(I+2)%4],4)}, v{VB} offset:{q*4096+2048}")
            A(f"ds_read_b128 {vr(VF[(I+2)%4]+4,4)}, v{VB} offset:{q*4096+3072}")
        E(6); E(7); E(8); E(9)
        if do_qk:
            A(mfma(sn, KF[(I + 1) % 2] + 4, QF[s] + 4, sn))
        E(10); E(11); E(12); E(13)
        A(smfmac(O[s], VF[I % 4], sc, IDX))
        E(14); E(15)

    def iteration(I, q, do_qk=True, prio=None, mid=None, mid2=None):
        if PRIO and prio is not None:
            A(f"s_setprio {prio}")
        unit(I, 0, q, do_qk)
        if mid:
            mid()
        unit(I, 1, q, do_qk)

    tab = sum(sl_ << (4 * j) for j, sl_ in enumerate(SLOT_OF_BLOCK))

    def next_vb():
        A(f"s_lshl_b32 s{S_T1}, s{S_JB}, 2")
        A(f"s_lshr_b32 s{S_T1}, 0x{tab >> 4:08x}, s{S_T1}")
        A(f"s_and_b32 s{S_T1}, s{S_T1}, 15")
        A(f"s_lshl_b32 s{S_T1}, s{S_T1}, 15")
        A(f"v_add_u32 v{VB}, s{S_T1}, v10")
        A(f"s_add_u32 s{S_JB}, s{S_JB}, 1")

    WO_REGION = [131072, 0, 65536, 32768]

    def wo_stage(kq, warm=False):
        srdn = "s[12:15]" if kq < 2 else "s[16:19]"
        A(f"s_min_u32 s{S_T0}, s{S_W}, 6")
        A(f"s_mul_i32 s{S_T1}, s{S_T0}, {2*14336}")
        A(f"s_lshl_b32 s{S_T2}, s{S_CB}, 7")
        A(f"s_add_u32 s{S_T1}, s{S_T1}, s{S_T2}")
        if kq & 1:
            A(f"s_add_u32 s{S_T1}, s{S_T1}, 200704")
        A(f"s_lshl_b32 s{S_T0}, s{S_T0}, 11")
        for i in range(4):
            if i == 2:
                A(f"s_add_u32 s{S_T1}, s{S_T1}, 14336")
            if warm:
                if i % 2 == 0:
                    A(f"buffer_load_dwordx4 v[228:231], v236, {srdn}, s{S_T1} offen")
            else:
                A(f"s_add_u32 m0, s{S_T0}, {WO_REGION[kq] + (i & 1)*14336 + (i >> 1)*1024}")
                A("s_nop 0")
                A(f"buffer_load_dwordx4 v{236 + (i & 1)}, {srdn}, s{S_T1} offen lds")

    def side_call(kh):
        def f():
            A(f"s_cmp_eq_u32 s{S_KH}, {kh}")
            A("s_cbranch_scc1 L_ka_sidein")
            A(f"L_ka_ret{kh}:")
        return f

    def side_blocks():
        A("L_ka_sidein:")
        A(f"s_cmp_eq_u32 s{S_JB}, 5")
        A("s_cbranch_scc1 L_ka_x4")
        A("L_ka_x4r:")
        A(f"s_cmp_ge_u32 s{S_JB}, 6")
        A("s_cbranch_scc1 L_ka_nodma")
        dma_block()
        A("L_ka_nodma:")
        A(f"s_bitcmp1_b32 0x7e, s{S_JB}")
        A("s_cbranch_scc1 L_ka_side")
        A("L_ka_nodma2:")
        A(f"s_cmp_eq_u32 s{S_KH}, 0")
        A("s_cbranch_scc1 L_ka_ret0")
        A("s_branch L_ka_ret1")
        A("L_ka_x4:")
        A(f"s_cmp_lg_u32 s{S_W}, s{S_POLL}")
        A("s_cbranch_scc1 L_ka_x4r")
        A("v_lshlrev_b32 v235, 2, v2")
        A("buffer_load_dword v235, v235, s[56:59], 0 offen sc1")
        A("s_branch L_ka_x4r")
        A("L_ka_side:")
        for jb in (3, 4, 5, 6):
            A(f"s_cmp_eq_u32 s{S_JB}, {jb}")
            A(f"s_cbranch_scc1 L_ka_s{jb}")
        A(f"s_cmp_lg_u32 s{S_W}, 1")
        A("s_cbranch_scc1 L_ka_nodma2")
        A(f"s_and_b32 s{S_T1}, s{S_TB}, 1")
        A(f"s_add_u32 s{S_T1}, s{S_T1}, 1")
        A(f"s_cmp_lg_u32 s{S_T1}, s{S_JB}")
        A("s_cbranch_scc1 L_ka_nodma2")
        A(f"s_lshl_b32 s{S_T1}, 0x101, s{S_TB}")
        A(f"v_mov_b32 v9, s{S_T1}")
        A("v_mov_b32 v11, 0")
        A("s_mov_b64 exec, 1")
        A("buffer_atomic_or v9, v11, s[56:59], s63 offen sc1")
        A("s_mov_b64 exec, -1")
        A("s_branch L_ka_nodma2")
        A("L_ka_s3:")
        wo_stage(0)
        A("s_branch L_ka_nodma2")
        A("L_ka_s4:")
        wo_stage(3, warm=True)
        A("s_branch L_ka_nodma2")
        A("L_ka_s5:")
        wo_stage(1)
        A("s_branch L_ka_nodma2")
        A("L_ka_s6:")
        wo_stage(2)
        A(f"s_cmp_lg_u32 s{S_W}, s{S_POLL}")
        A("s_cbranch_scc1 L_ka_nodma2")
        A("v_bfe_u32 v235, v235, 8, 8")
        A("v_mov_b32 v9, 0xff")
        A("v_cmp_eq_u32 vcc, v235, v9")
        A(f"v_mov_b32 v9, {CNT_ADDR}")
        A("v_mov_b32 v11, 1")
        A("s_nop 3")
        A(f"s_and_b32 s{S_T0}, vcc_lo, vcc_hi")
        A(f"s_and_b32 s{S_T0}, s{S_T0}, 0x55555555")
        A(f"s_cmp_lg_u32 s{S_T0}, 0x55555555")
        A("s_cbranch_scc1 L_ka_nodma2")
        A(f"ds_write_b32 v9, v11 offset:{REGOK_OFF}")
        A("s_branch L_ka_nodma2")

    A.stamp()
    if DT:
        A("s_memrealtime s[72:73]")
        A("s_waitcnt lgkmcnt(0)")
    A(f"s_mov_b32 s{S_JB}, 0")
    iteration(0, 2, prio=1, mid=dma_block if D2 else None)
    iteration(1, 3, prio=0, mid=next_vb)
    A(".p2align 6")
    A("L_ka_loop:")
    LST = STAMP and opt("lst", 0)
    if LST:
        A("s_memtime s[94:95]")
        A(f"s_mov_b32 m0, s{S_JB}")
        A("s_waitcnt lgkmcnt(0)")
        A(f"v_writelane_b32 v232, s94, m0")
    A(f"s_cmp_ge_u32 s{S_JB}, 7")
    A("s_cbranch_scc1 L_ka_w0")
    A("s_waitcnt vmcnt(4)")
    A("s_barrier")
    A("L_ka_w1:")
    if LST:
        A("s_memtime s[94:95]")
        A(f"s_add_u32 m0, s{S_JB}, 16")
        A("s_waitcnt lgkmcnt(0)")
        A(f"v_writelane_b32 v232, s94, m0")
    p0, p1 = opt("p0", 0), opt("p1", 1)
    mids = [None, None, None]
    if p0 == p1:
        mids[p0] = lambda: (side_call(0)(), side_call(1)())
    else:
        mids[p0] = side_call(0)
        mids[p1] = side_call(1)
    iteration(2, 0, prio=3, mid=mids[0])
    iteration(3, 1, prio=2, mid=mids[1])
    iteration(4, 2, prio=1, mid=mids[2])
    iteration(5, 3, prio=0, mid=next_vb)
    A(f"s_cmp_lt_u32 s{S_JB}, 8")
    A("s_cbranch_scc1 L_ka_loop")

    def tail_addr():
        A(f"s_add_u32 s{S_T0}, s{S_LW}, 98304")
        A(f"v_add_u32 v8, s{S_T0}, v1")
        A(f"s_xor_b32 s{S_T0}, s{S_T0}, 16384")
        A(f"v_add_u32 v9, s{S_T0}, v1")
        A(f"s_mov_b32 s66, 0")

    iteration(30, None, True, prio=1, mid=tail_addr)
    iteration(31, None, False, prio=0)
    for r4 in range(4):
        A(f"ds_write_b128 v8, {vr(O[0]+4*r4,4)} offset:{r4*1024}")
    A(smfmac(O[1], VF[31 % 4] + 4, S[3] + 8, IDX))
    A.stamp()
    if DT:
        A("s_memrealtime s[74:75]")
        A("s_waitcnt lgkmcnt(0)")
    A("s_waitcnt lgkmcnt(0)")
    A("s_barrier")
    for r4 in (3, 0, 1, 2):
        A(f"ds_read_b128 {vr(O[0]+4*r4,4)}, v9 offset:{r4*1024}")
    A(f"v_mov_b32 v235, {CNT_ADDR}")
    A(f"ds_read_b32 v235, v235 offset:{REGOK_OFF}")
    A("s_nop 4")
    A("s_waitcnt lgkmcnt(4)")
    OK_, OO = O[1], O[0]
    F1 = T + 4
    A("L_ka_fin:")
    A(f"v_add_f32 v{T+3}, v{OK_+12}, v{OO+12}")
    A(f"v_mov_b32 v{T+4}, v{T+3}")
    A("s_nop 1")
    A(f"v_permlane32_swap_b32 v{T+3}, v{T+4}")
    A("s_nop 1")
    A(f"v_rcp_f32 v{T+4}, v{T+4}")
    A("s_waitcnt lgkmcnt(0)")
    A(f"v_mul_f32 v{F1}, v{T+4}, v{GB[1]}")
    R = S[1]
    for r in range(16):
        A(f"v_add_f32 v{R+r}, v{OK_+r}, v{OO+r}")
    for r in range(16):
        A(f"v_mul_f32 v{R+r}, v{R+r}, v{F1}")
    for i in range(8):
        A(f"v_cvt_pk_bf16_f32 v{S[0]+i}, v{R+2*i}, v{R+2*i+1}")
    A(f"v_maximum3_f32 v{T+3}, abs(v{R}), abs(v{R+1}), abs(v{R+2})")
    for r in range(3, 15, 2):
        A(f"v_maximum3_f32 v{T+3}, v{T+3}, abs(v{R+r}), abs(v{R+r+1})")
    A(f"v_maximum3_f32 v{T+3}, v{T+3}, abs(v{R+15}), abs(v{R+15})")
    A("s_mov_b32 s65, 0x7f000000")
    A(f"v_cmp_nlt_f32 vcc, v{T+3}, s65")
    A("s_cmp_lg_u32 s66, 0")
    A("s_cbranch_scc1 L_ka_st")
    A("s_nop 2")
    A("s_cmp_lg_u64 vcc, 0")
    A("s_cbranch_scc1 L_ka_slow")
    A("L_ka_st:")
    A("s_mov_b32 exec_lo, 0")
    A(f"v_mov_b32 v{S[0]+6}, 0")
    A(f"v_mov_b32 v{S[0]+7}, 0")
    A("s_mov_b32 exec_lo, -1")
    A(f"buffer_store_dwordx4 {vr(S[0],4)}, v1, s[24:27], s64 offen sc1")
    A(f"buffer_store_dwordx4 {vr(S[0]+4,4)}, v1, s[24:27], s64 offen offset:1024 sc1")
    wo_stage(3)
    ACC = [16, 32]
    AB3 = 64
    WF3 = [136, 144]
    A(f"v_readfirstlane_b32 s{S_T0}, v235")
    A("v_add_u32 v238, 1, v233")
    A(f"s_lshl_b32 s{S_T1}, s{S_KQ}, 2")
    A(f"s_lshr_b32 s{S_T1}, 0x1204, s{S_T1}")
    A(f"s_and_b32 s{S_T1}, s{S_T1}, 15")
    A(f"s_lshl_b32 s{S_T1}, s{S_T1}, 15")
    A("v_bfe_u32 v9, v2, 2, 2")
    A("v_lshlrev_b32 v7, 6, v9")
    A("v_bfe_u32 v9, v2, 4, 1")
    A("v_lshl_add_u32 v7, v9, 5, v7")
    A("v_and_b32 v9, 3, v2")
    A("v_lshl_add_u32 v7, v9, 3, v7")
    A(f"v_add_u32 v7, s{S_T1}, v7")
    A("v_lshl_add_u32 v8, v4, 8, v7")
    for r in range(32):
        A(f"v_mov_b32 v{16+r}, 0")
    A(f"s_lshl_b32 s{S_T2}, s{S_QC}, 16")
    A(f"s_lshl_b32 s{S_T1}, s{S_KQ}, 14")
    A(f"s_add_u32 s{S_T2}, s{S_T2}, s{S_T1}")
    A(f"s_add_u32 s{S_T2}, s{S_T2}, {OF_OFF}")
    A(f"s_cmp_lg_u32 s{S_T0}, 0")
    A("s_cbranch_scc0 L_ka_regspin")
    A("L_ka_regok:")
    A("s_waitcnt vmcnt(4)")
    A.stamp()
    A("s_mov_b64 exec, 1")
    A("buffer_store_dword v238, v234, s[24:27], s11 offen sc1")
    A("s_mov_b64 exec, -1")
    A("s_cmp_ge_u32 s2, 224")
    A("s_cbranch_scc1 L_ka_done")
    A("s_waitcnt vmcnt(1)")
    A("s_barrier")
    A(f"s_mov_b32 s{S_SPIN}, 0")
    A(f"v_mov_b32 v10, {CNT_ADDR}")
    A(f"s_and_b32 s{S_T3}, s{S_W}, 1")
    A(f"s_lshl_b32 s{S_T3}, s{S_T3}, 5")
    A(f"s_lshl_b32 s{S_T4}, s{S_KQ}, 3")
    A(f"s_add_u32 s{S_T3}, s{S_T3}, s{S_T4}")
    A(f"s_cmp_lg_u32 s{S_W}, 0")
    A("s_cbranch_scc1 L_ka_p3lds")
    A("L_ka_p3spin:")
    A("buffer_load_dword v9, v239, s[24:27], s11 offen sc1")
    A("s_waitcnt vmcnt(0)")
    A("v_cmp_ne_u32 vcc, v9, v240")
    A(f"s_add_u32 s{S_SPIN}, s{S_SPIN}, 1")
    A("s_nop 3")
    A("v_mov_b32 v12, vcc_lo")
    A("v_mov_b32 v13, vcc_hi")
    A("ds_write_b64 v10, v[12:13] offset:80")
    A("s_cmp_eq_u64 vcc, -1")
    A("s_cbranch_scc1 L_ka_p3go")
    A(f"s_cmp_ge_u32 s{S_SPIN}, 0x100000")
    A("s_cbranch_scc1 L_ka_p3go")
    A(f"s_sleep {opt('sleep3', 4)}")
    A("s_branch L_ka_p3spin")
    A("L_ka_p3lds:")
    A("ds_read_b64 v[12:13], v10 offset:80")
    A("s_waitcnt lgkmcnt(0)")
    A("v_readfirstlane_b32 s4, v12")
    A("v_readfirstlane_b32 s5, v13")
    A(f"s_add_u32 s{S_SPIN}, s{S_SPIN}, 1")
    A("s_nop 1")
    A(f"s_lshr_b64 s[4:5], s[4:5], s{S_T3}")
    A("s_and_b32 s4, s4, 0xff")
    A("s_cmp_eq_u32 s4, 0xff")
    A("s_cbranch_scc1 L_ka_p3go")
    A(f"s_cmp_ge_u32 s{S_SPIN}, 0x1000000")
    A("s_cbranch_scc1 L_ka_p3go")
    A("s_sleep 1")
    A("s_branch L_ka_p3lds")
    A("L_ka_p3go:")
    A.stamp()
    for ks in range(16):
        if ks and ks % 4 == 0:
            A(f"s_add_u32 s{S_T2}, s{S_T2}, 4096")
        A(f"buffer_load_dwordx4 {vr(AB3+4*ks,4)}, v1, s[24:27], s{S_T2} offen offset:{(ks%4)*1024} sc1")

    def tr3(ks, st):
        for ct in range(2):
            for tp in range(2):
                hd, s_ = divmod(ks, 2)
                base = "v7" if (s_ == 1 and tp == 1) else "v8"
                A(f"ds_read_b64_tr_b16 {vr(WF3[st]+4*ct+2*tp,2)}, {base} offset:{ct*14336 + (28*hd + 16*s_ + 8*tp)*64}")

    tr3(0, 0)
    A(f"s_lshl_b32 s{S_T0}, s{S_W}, 13")
    A(f"s_and_b32 s{S_T1}, s{S_W}, 1")
    A(f"s_lshl_b32 s{S_T0}, s{S_T1}, 15")
    A(f"s_lshl_b32 s{S_T3}, s{S_KQ}, 13")
    A(f"s_add_u32 s{S_T3}, s{S_T3}, s{S_T0}")
    A(f"v_add_u32 v10, s{S_T3}, v1")
    A(f"s_and_b32 s{S_T3}, s{S_KQ}, 1")
    A(f"s_lshr_b32 s{S_T4}, s{S_KQ}, 1")
    A(f"s_lshl_b32 s{S_T1}, s{S_T3}, 12")
    A(f"s_add_u32 s{S_T0}, s{S_T0}, s{S_T1}")
    A(f"s_lshl_b32 s{S_T1}, s{S_T4}, 11")
    A(f"s_add_u32 s{S_T0}, s{S_T0}, s{S_T1}")
    A(f"v_add_u32 v11, s{S_T0}, v1")
    A("v_mul_u32_u24 v12, 896, v3")
    A("v_lshl_add_u32 v12, v4, 4, v12")
    A(f"s_mul_i32 s{S_T0}, s{S_QC}, 28672")
    A(f"s_lshl_b32 s{S_T1}, s{S_CB}, 7")
    A(f"s_add_u32 s{S_T0}, s{S_T0}, s{S_T1}")
    A(f"s_lshl_b32 s{S_T1}, s{S_T3}, 6")
    A(f"s_add_u32 s{S_T0}, s{S_T0}, s{S_T1}")
    A(f"s_lshl_b32 s{S_T1}, s{S_T4}, 5")
    A(f"s_add_u32 s{S_T0}, s{S_T0}, s{S_T1}")
    for ks in range(16):
        st = ks % 2
        if ks < 15:
            tr3(ks + 1, 1 - st)
            A(f"s_waitcnt vmcnt({15-ks}) lgkmcnt(4)")
        else:
            A("s_waitcnt vmcnt(0) lgkmcnt(0)")
        for ct in range(2):
            A(mfma(ACC[ct], WF3[st] + 4 * ct, AB3 + 4 * ks, ACC[ct]))
    A.stamp()
    A("s_barrier")
    A("s_nop 7")
    A("s_nop 3")
    for ct in range(2):
        for r4 in range(4):
            A(f"ds_write_b128 v10, {vr(ACC[ct]+4*r4,4)} offset:{ct*4096+r4*1024}")
    A("s_waitcnt lgkmcnt(0)")
    A("s_barrier")
    for k in range(4):
        for h2 in range(2):
            A(f"ds_read_b128 {vr(AB3+8*k+4*h2,4)}, v11 offset:{k*8192+h2*1024}")
    A("s_waitcnt lgkmcnt(4)")
    for r in range(8):
        A(f"v_add_f32 v{AB3+r}, v{AB3+r}, v{AB3+8+r}")
    A("s_waitcnt lgkmcnt(0)")
    for r in range(8):
        A(f"v_add_f32 v{AB3+16+r}, v{AB3+16+r}, v{AB3+24+r}")
    for r in range(8):
        A(f"v_add_f32 v{AB3+r}, v{AB3+r}, v{AB3+16+r}")
    for i in range(4):
        A(f"v_cvt_pk_bf16_f32 v{16+i}, v{AB3+2*i}, v{AB3+2*i+1}")
    A("s_nop 1")
    A("v_permlane32_swap_b32 v16, v18")
    A("v_permlane32_swap_b32 v17, v19")
    A("s_nop 1")
    A(f"buffer_store_dwordx4 v[16:19], v12, s[52:55], s{S_T0} offen")
    A("L_ka_done:")
    if DT:
        A("s_waitcnt vmcnt(0)")
        A("s_memrealtime s[76:77]")
        A(f"s_cmp_lg_u32 s{S_W}, 0")
        A("s_waitcnt lgkmcnt(0)")
        A("s_cbranch_scc1 L_ka_end")
        A("s_mov_b64 exec, 1")
        A("v_mov_b32 v0, 0")
        A("s_not_b32 s78, s70")
        for off, sr in ((4, 76), (12, 78), (20, 72), (28, 74), (36, 70)):
            A(f"v_mov_b32 v1, s{sr}")
            A(f"buffer_atomic_umax v1, v0, s[56:59], 0 offen offset:{off} sc1")
            A("s_nop 1")
    if STAMP:
        A("s_mov_b64 exec, -1")
        A(f"s_mul_i32 s67, s2, 8")
        A(f"s_add_u32 s67, s67, s{S_W}")
        A("s_lshl_b32 s67, s67, 8")
        A(f"s_add_u32 s67, s67, {STAMP_OFF + 2*(1<<20)}")
        A("v_lshlrev_b32 v0, 2, v2")
        A("v_mov_b32 v1, s68")
        A("v_sub_u32 v232, v232, v1")
        A("buffer_store_dword v232, v0, s[24:27], s67 offen")
    A.stamp_flush(0, S_W, 8)
    A("L_ka_end:")
    A("s_endpgm")
    A("L_ka_w0:")
    A("s_waitcnt vmcnt(0)")
    A("s_barrier")
    A("s_branch L_ka_w1")
    side_blocks()
    A("L_ka_regspin:")
    A(f"s_mov_b32 s{S_SPIN}, 0")
    A("L_ka_regspin2:")
    A("v_lshlrev_b32 v235, 2, v2")
    A("buffer_load_dword v235, v235, s[56:59], 0 offen sc1")
    A("v_mov_b32 v9, 0xff")
    A("s_waitcnt vmcnt(0)")
    A("v_bfe_u32 v235, v235, 8, 8")
    A("v_cmp_eq_u32 vcc, v235, v9")
    A(f"s_add_u32 s{S_SPIN}, s{S_SPIN}, 1")
    A("s_nop 3")
    A(f"s_and_b32 s{S_T0}, vcc_lo, vcc_hi")
    A(f"s_and_b32 s{S_T0}, s{S_T0}, 0x55555555")
    A(f"s_cmp_eq_u32 s{S_T0}, 0x55555555")
    A("s_cbranch_scc1 L_ka_regok")
    A(f"s_cmp_ge_u32 s{S_SPIN}, 0x100000")
    A("s_cbranch_scc1 L_ka_regok")
    A("s_sleep 8")
    A("s_branch L_ka_regspin2")
    A("L_ka_slow:")
    M = T + 5
    s0 = S[0]
    A("s_waitcnt vmcnt(0) lgkmcnt(0)")
    for r in range(16):
        A(f"v_mov_b32 v{OK_+r}, 0")
        A(f"v_mov_b32 v{OO+r}, 0")
    A(f"v_mov_b32 v{M}, 0xff7fffff")
    A("L_ka_slow_loop:")
    A(f"buffer_load_dwordx4 {vr(KF[0],4)}, v1, s[20:23], s66 offen sc1")
    A(f"buffer_load_dwordx4 {vr(KF[0]+4,4)}, v1, s[20:23], s66 offen offset:1024 sc1")
    A(f"buffer_load_dwordx4 {vr(VF[0],4)}, v1, s[20:23], s66 offen offset:2048 sc1")
    A(f"buffer_load_dwordx4 {vr(VF[0]+4,4)}, v1, s[20:23], s66 offen offset:3072 sc1")
    A("s_waitcnt vmcnt(0)")
    A(mfma(s0, KF[0], QF[1], None))
    A(mfma(s0, KF[0] + 4, QF[1] + 4, s0))
    A("s_nop 15")
    A("s_nop 3")
    A(f"v_max3_f32 v{T}, v{s0}, v{s0+1}, v{s0+2}")
    for r in range(3, 15, 2):
        A(f"v_max3_f32 v{T}, v{T}, v{s0+r}, v{s0+r+1}")
    A(f"v_max_f32 v{T}, v{T}, v{s0+15}")
    A(f"v_mov_b32 v{T+1}, v{T}")
    A("s_nop 1")
    A(f"v_permlane32_swap_b32 v{T}, v{T+1}")
    A("s_nop 1")
    A(f"v_max3_f32 v{T}, v{T}, v{T+1}, v{M}")
    A(f"v_sub_f32 v{T+1}, v{M}, v{T}")
    A(f"v_exp_f32 v{T+1}, v{T+1}")
    A(f"v_mov_b32 v{M}, v{T}")
    for r in range(16):
        A(f"v_sub_f32 v{s0+r}, v{s0+r}, v{T}")
    for r in range(16):
        A(f"v_exp_f32 v{s0+r}, v{s0+r}")
    for r in range(16):
        A(f"v_mul_f32 v{OK_+r}, v{OK_+r}, v{T+1}")
    A("s_nop 3")
    A(smfmac(OK_, VF[0], s0, IDX))
    A(smfmac(OK_, VF[0] + 4, s0 + 8, IDX))
    A("s_nop 15")
    A("s_nop 3")
    A("s_add_u32 s66, s66, 4096")
    A("s_cmp_lt_u32 s66, 262144")
    A("s_cbranch_scc1 L_ka_slow_loop")
    A("s_branch L_ka_fin")
    return A.text(), 248, 68


def gen_kb():
    A = Asm()
    ACC = [16, 32, 48, 64]
    WF = [80, 88]
    AB = 96
    A("s_cmp_ge_u32 s2, 224")
    A("s_cbranch_scc1 L_k3_end")
    A.stamp()
    A("s_load_dwordx2 s[4:5], s[0:1], 16")
    A("s_load_dwordx2 s[6:7], s[0:1], 40")
    A("s_load_dwordx2 s[8:9], s[0:1], 56")
    A("s_load_dwordx2 s[28:29], s[0:1], 72")
    A("s_and_b32 s30, s2, 7")
    A("s_lshr_b32 s31, s2, 3")
    A("s_and_b32 s32, s31, 3")
    A("s_lshl_b32 s30, s30, 2")
    A("s_add_u32 s32, s32, s30")
    A("s_lshr_b32 s33, s31, 2")
    A("v_lshrrev_b32 v1, 6, v0")
    A("v_and_b32 v2, 63, v0")
    A("v_readfirstlane_b32 s35, v1")
    A("v_lshlrev_b32 v1, 4, v2")
    A("v_lshrrev_b32 v3, 2, v2")
    A("v_and_b32 v4, 3, v2")
    A("v_mul_u32_u24 v5, 896, v3")
    A("v_lshl_add_u32 v5, v4, 4, v5")
    A("v_add_u32 v6, 64, v5")
    A("v_lshrrev_b32 v7, 5, v2")
    A("v_and_b32 v8, 31, v2")
    A("s_mul_i32 s41, s35, 28672")
    A("v_lshlrev_b32 v9, 9, v7")
    A("v_bfe_u32 v10, v2, 2, 2")
    A("v_lshl_add_u32 v9, v10, 6, v9")
    A("v_bfe_u32 v10, v2, 4, 1")
    A("v_lshl_add_u32 v9, v10, 5, v9")
    A("v_lshl_add_u32 v9, v4, 3, v9")
    A("v_add_u32 v9, s41, v9")
    A("s_and_b32 s36, s35, 1")
    A("s_mul_i32 s36, s36, 200704")
    A("s_lshl_b32 s37, s33, 7")
    A("s_add_u32 s36, s36, s37")
    A("s_mul_i32 s38, s32, 114688")
    A("s_mul_i32 s39, s35, 14336")
    A("s_add_u32 s38, s38, s39")
    A(f"s_add_u32 s38, s38, {OF_OFF}")
    A("s_and_b32 s48, s32, 3")
    A("s_lshl_b32 s48, s48, 2")
    A("s_lshr_b32 s48, 0xa730, s48")
    A("s_and_b32 s48, s48, 15")
    A("s_lshl_b32 s49, s33, 1")
    A("s_add_u32 s48, s48, s49")
    A("s_cmp_ge_u32 s48, 14")
    A("s_cselect_b32 s49, 14, 0")
    A("s_sub_u32 s48, s48, s49")
    if not opt("rotb", 1):
        A("s_mov_b32 s48, 0")
    A("s_add_u32 s50, s38, 14336")
    A("s_mul_i32 s49, s48, 14336")
    A("s_add_u32 s36, s36, s49")
    A("s_lshl_b32 s49, s48, 10")
    A("s_add_u32 s38, s38, s49")
    A("s_add_u32 s39, s38, 57344")
    A("s_cmp_ge_u32 s35, 2")
    A("s_waitcnt lgkmcnt(0)")
    A("s_cselect_b32 s4, s6, s4")
    A("s_cselect_b32 s5, s7, s5")
    A.stamp()
    srd(A, 12, 4, 401408)
    srd(A, 16, 8, 1835008)
    srd(A, 24, 28, WS_USED)
    A("s_mov_b32 s42, s41")

    def loads(ks):
        A("s_mov_b32 m0, s42")
        A("s_add_u32 s42, s42, 1024")
        A("buffer_load_dwordx4 v5, s[12:15], s36 offen lds")
        A("s_mov_b32 m0, s42")
        A("s_add_u32 s42, s42, 1024")
        A("buffer_load_dwordx4 v6, s[12:15], s36 offen lds")
        A(f"buffer_load_dwordx4 {vr(AB+8*ks,4)}, v1, s[24:27], s38 offen")
        A(f"buffer_load_dwordx4 {vr(AB+8*ks+4,4)}, v1, s[24:27], s39 offen")
        if ks < 13:
            A("s_add_u32 s36, s36, 14336")
            A("s_add_u32 s38, s38, 1024")
            A("s_cmp_ge_u32 s38, s50")
            A("s_cselect_b32 s49, 14336, 0")
            A("s_cselect_b32 s51, 200704, 0")
            A("s_sub_u32 s38, s38, s49")
            A("s_sub_u32 s36, s36, s51")
            A("s_add_u32 s39, s38, 57344")

    D = opt("bd", 6)
    for ks in range(D):
        loads(ks)
    A.stamp()
    for r in range(16, 80):
        A(f"v_mov_b32 v{r}, 0")

    def trreads(ks, st):
        for ct in range(2):
            for tp in range(2):
                A(f"ds_read_b64_tr_b16 {vr(WF[st]+4*ct+2*tp,2)}, v9 offset:{(ks*2+ct)*1024+tp*256}")

    A(f"s_waitcnt vmcnt({4*(D-1)})")
    A.stamp()
    trreads(0, 0)
    for ks in range(14):
        st = ks % 2
        if ks + D < 14:
            loads(ks + D)
        if ks < 13:
            A(f"s_waitcnt vmcnt({4*(min(13, ks+D)-(ks+1))})")
            trreads(ks + 1, 1 - st)
            A("s_waitcnt lgkmcnt(4)")
        else:
            A("s_waitcnt lgkmcnt(0)")
        for ti in range(2):
            for ct in range(2):
                A(mfma(ACC[ti * 2 + ct], WF[st] + 4 * ct, AB + 8 * ks + 4 * ti, ACC[ti * 2 + ct]))
    A.stamp()
    A("v_add_u32 v10, s41, v1")
    A("s_lshl_b32 s43, s35, 12")
    A("v_add_u32 v11, s43, v1")
    A("v_mul_u32_u24 v12, 896, v8")
    A("v_lshl_add_u32 v12, v7, 4, v12")
    A("s_lshr_b32 s44, s35, 1")
    A("s_and_b32 s45, s35, 1")
    A("s_lshl_b32 s46, s32, 1")
    A("s_add_u32 s46, s46, s44")
    A("s_mul_i32 s46, s46, 28672")
    A("s_lshl_b32 s47, s33, 7")
    A("s_add_u32 s46, s46, s47")
    A("s_lshl_b32 s45, s45, 6")
    A("s_add_u32 s46, s46, s45")
    A("s_nop 7")
    for tile in range(4):
        for r4 in range(4):
            A(f"ds_write_b128 v10, {vr(ACC[tile]+4*r4,4)} offset:{tile*4096+r4*1024}")
    A("s_waitcnt lgkmcnt(0)")
    A.stamp()
    A("s_barrier")
    A.stamp()
    for w in range(4):
        for r4 in range(4):
            off = w * 28672 + r4 * 1024
            if off < 65536:
                A(f"ds_read_b128 {vr(AB+16*w+4*r4,4)}, v11 offset:{off}")
            else:
                if r4 == 0:
                    A("v_add_u32 v13, 65536, v11")
                A(f"ds_read_b128 {vr(AB+16*w+4*r4,4)}, v13 offset:{off-65536}")
    A("s_waitcnt lgkmcnt(8)")
    for r in range(16):
        A(f"v_add_f32 v{AB+r}, v{AB+r}, v{AB+16+r}")
    A("s_waitcnt lgkmcnt(0)")
    for r in range(16):
        A(f"v_add_f32 v{AB+32+r}, v{AB+32+r}, v{AB+48+r}")
    for r in range(16):
        A(f"v_add_f32 v{AB+r}, v{AB+r}, v{AB+32+r}")
    for i in range(8):
        A(f"v_cvt_pk_bf16_f32 v{16+i}, v{AB+2*i}, v{AB+2*i+1}")
    A("s_nop 1")
    A("v_permlane32_swap_b32 v16, v18")
    A("v_permlane32_swap_b32 v17, v19")
    A("v_permlane32_swap_b32 v20, v22")
    A("v_permlane32_swap_b32 v21, v23")
    A("s_nop 1")
    A("buffer_store_dwordx4 v[16:19], v12, s[16:19], s46 offen")
    A("buffer_store_dwordx4 v[20:23], v12, s[16:19], s46 offen offset:32")
    A.stamp()
    A.stamp_flush(1, 35, 4)
    A("L_k3_end:")
    A("s_endpgm")
    return A.text(), 208, 56


HEADER = """; Kernarg layout for this problem (80 bytes, ptrs only, base s[0:1]):
"""


def main(outpath):
    name = NAME + "_kernel"
    body, nv, ns = gen_ka()
    out = HEADER
    out += "; @launch grid=(256,1,1) block=(512,1,1) lds=163840\n"
    out += '.amdgcn_target "amdgcn-amd-amdhsa--gfx950"\n.text\n'
    out += f".globl {name}\n.p2align 8\n.type {name},@function\n{name}:\n{body}"
    out += '.section .rodata,"a"\n'
    out += f""".p2align 6
.amdhsa_kernel {name}
  .amdhsa_next_free_vgpr {nv}
  .amdhsa_next_free_sgpr {102 if (STAMP or opt('dbgtime', 0)) else ns}
  .amdhsa_accum_offset {(nv+3)//4*4}
  .amdhsa_group_segment_fixed_size 0
  .amdhsa_kernarg_size 80
  .amdhsa_user_sgpr_count 2
  .amdhsa_user_sgpr_kernarg_segment_ptr 1
  .amdhsa_system_sgpr_workgroup_id_x 1
.end_amdhsa_kernel
"""
    open(outpath, "w").write(out)


if __name__ == "__main__":
    main(sys.argv[1] if len(sys.argv) > 1 else f"cdna_kernels/{NAME}.s")
```

```python
import struct, math, sys, os

NAME = "gated_mix__softmax_full_mha__softmax_full_mha__prompt"

KVF_OFF = 0
OF_OFF = 8 << 20
WI_OFF = 13 << 20
FL_OFF = 12 << 20
WS_USED = 24 << 20
STAMP_OFF = 20 << 20
STAMP = bool(os.environ.get("STAMP"))
OPT = dict(kv.split("=") for kv in os.environ.get("OPT", "").split(",") if kv)


def opt(name, default):
    return type(default)(OPT.get(name, default))


def f32bits(x):
    return struct.unpack("<I", struct.pack("<f", x))[0]


LOG2E = math.log2(math.e)
QSCALE = (28 ** -0.5) * LOG2E


class Asm:
    def __init__(self):
        self.lines = []
        self.nst = 0

    def __call__(self, s):
        for ln in s.strip("\n").split("\n"):
            self.lines.append("    " + ln.strip() if not ln.strip().endswith(":") else ln.strip())

    def text(self):
        return "\n".join(self.lines) + "\n"

    def stamp(self):
        if not STAMP:
            return
        k = self.nst
        self.nst += 1
        assert k < 14
        if k == 0:
            self("s_memrealtime s[96:97]")
        self(f"{'s_memrealtime' if os.environ.get('RT') else 's_memtime'} s[{68+2*k}:{69+2*k}]")
        self("s_waitcnt lgkmcnt(0)")

    def stamp_flush(self, kidx, wave_sgpr, nwaves, srd="s[24:27]"):
        if not STAMP:
            return
        self("s_waitcnt vmcnt(0)")
        self(f"{'s_memrealtime' if os.environ.get('RT') else 's_memtime'} s[98:99]")
        self("s_memrealtime s[100:101]")
        self("s_waitcnt lgkmcnt(0)")
        self("s_mov_b64 exec, 1")
        self(f"s_mul_i32 s67, s2, {nwaves}")
        self(f"s_add_u32 s67, s67, s{wave_sgpr}")
        self("s_lshl_b32 s67, s67, 7")
        self(f"s_add_u32 s67, s67, {STAMP_OFF + kidx*(1<<20)}")
        self("v_mov_b32 v0, 0")
        regs = [96, 100, 98] + [68 + 2 * k for k in range(self.nst)]
        for i, r in enumerate(regs):
            self(f"v_mov_b32 v1, s{r}")
            self(f"buffer_store_dword v1, v0, {srd}, s67 offen offset:{4*i}")
            self("s_nop 1")


def vr(a, n):
    return f"v[{a}:{a+n-1}]"


def srd(A, d, base, nbytes):
    A(f"s_mov_b32 s{d}, s{base}")
    A(f"s_mov_b32 s{d+1}, s{base+1}")
    A(f"s_mov_b32 s{d+2}, {nbytes}")
    A(f"s_mov_b32 s{d+3}, 0x00020000")


def mfma(d, a, b, c):
    cs = vr(c, 16) if c is not None else "0"
    return f"v_mfma_f32_32x32x16_bf16 {vr(d,16)}, {vr(a,4)}, {vr(b,4)}, {cs}"


def smfmac(d, a, b, idx):
    return f"v_smfmac_f32_32x32x32_bf16 {vr(d,16)}, {vr(a,4)}, {vr(b,8)}, v{idx}"


S_BH, S_TB, S_H, S_W, S_TT, S_ROT = 32, 33, 34, 35, 36, 37
S_WOFF, S_XOFF, S_T0, S_T1, S_T2 = 38, 39, 40, 41, 42
S_KH, S_QP, S_JB, S_FLAGS, S_GS, S_GO = 43, 44, 45, 46, 47, 48
S_LW, S_T3, S_T4 = 49, 50, 51
S_NEXT = 60
S_SPIN = 61
S_REM = 62
S_FL = 3
S_POLL = 65
S_A = 66

KVR = 98304
QIMG = 131072
CNT_ADDR = 159744
MX_ADDR = CNT_ADDR + 1024
REGOK_OFF = 68
FO_OFF = (12 << 20) + 65536
S_CB, S_QC, S_KQ = 8, 9, 10
FLAGW = CNT_ADDR + 64
WRDY = CNT_ADDR + 68
SNAPL = CNT_ADDR + 128
SLOT_OF_BLOCK = [0, 2, 3, 1, 0, 2, 3, 1]
VSNAP = 224


def gen_ka():
    A = Asm()
    A("s_cmp_ge_u32 s2, 256")
    A("s_cbranch_scc1 L_ka_end")
    A.stamp()
    DT = opt("dbgtime", 0)
    if DT:
        A("s_memrealtime s[70:71]")
    A("s_load_dwordx4 s[4:7], s[0:1], 0")
    A("s_load_dwordx2 s[8:9], s[0:1], 32")
    A("s_load_dwordx2 s[10:11], s[0:1], 48")
    A("s_load_dwordx4 s[28:31], s[0:1], 64")
    if opt("cpf", 0):
        A("s_getpc_b64 s[12:13]")
        A("L_ka_pc:")
        A("v_lshlrev_b32 v245, 6, v0")
        A("v_min_u32 v245, L_ka_last-L_ka_pc-4, v245")
        A("global_load_dword v246, v245, s[12:13]")
    A("v_lshrrev_b32 v1, 6, v0")
    A("v_and_b32 v2, 63, v0")
    A(f"v_readfirstlane_b32 s{S_W}, v1")
    A(f"s_and_b32 s{S_T0}, s2, 7")
    A(f"s_lshr_b32 s{S_T1}, s2, 3")
    MAP = opt("map", 0)
    if MAP == 0:
        A(f"s_and_b32 s{S_A}, s{S_T1}, 3")
        A(f"s_lshl_b32 s{S_BH}, s{S_T0}, 2")
        A(f"s_add_u32 s{S_BH}, s{S_BH}, s{S_A}")
        A(f"s_lshr_b32 s{S_TB}, s{S_T1}, 2")
    elif MAP == 1:
        A(f"s_and_b32 s{S_A}, s{S_T1}, 7")
        A(f"s_lshr_b32 s{S_BH}, s{S_T0}, 1")
        A(f"s_lshl_b32 s{S_BH}, s{S_BH}, 3")
        A(f"s_add_u32 s{S_BH}, s{S_BH}, s{S_A}")
        A(f"s_and_b32 s{S_TB}, s{S_T0}, 1")
        A(f"s_lshl_b32 s{S_TB}, s{S_TB}, 2")
        A(f"s_lshr_b32 s{S_T1}, s{S_T1}, 3")
        A(f"s_add_u32 s{S_TB}, s{S_TB}, s{S_T1}")
    else:
        A(f"s_and_b32 s{S_A}, s{S_T1}, 15")
        A(f"s_lshr_b32 s{S_BH}, s{S_T0}, 2")
        A(f"s_lshl_b32 s{S_BH}, s{S_BH}, 4")
        A(f"s_add_u32 s{S_BH}, s{S_BH}, s{S_A}")
        A(f"s_and_b32 s{S_TB}, s{S_T0}, 3")
        A(f"s_lshl_b32 s{S_TB}, s{S_TB}, 1")
        A(f"s_lshr_b32 s{S_T1}, s{S_T1}, 4")
        A(f"s_add_u32 s{S_TB}, s{S_TB}, s{S_T1}")
    A(f"s_and_b32 s{S_H}, s{S_BH}, 15")
    rm = opt("rot", 3)
    if rm == 3:
        A(f"s_add_u32 s{S_ROT}, s{S_TB}, s{S_T0}")
        A(f"s_cmp_ge_u32 s{S_ROT}, 7")
        A(f"s_cselect_b32 s{S_T1}, 7, 0")
        A(f"s_sub_u32 s{S_ROT}, s{S_ROT}, s{S_T1}")
    elif rm == 5:
        A(f"s_and_b32 s{S_ROT}, s{S_BH}, 3")
        A(f"s_and_b32 s{S_T1}, s{S_TB}, 3")
        A(f"s_lshl_b32 s{S_T1}, s{S_T1}, 1")
        A(f"s_add_u32 s{S_ROT}, s{S_ROT}, s{S_T1}")
        A(f"s_lshr_b32 s{S_T1}, s{S_T0}, 1")
        A(f"s_add_u32 s{S_ROT}, s{S_ROT}, s{S_T1}")
    elif rm == 0:
        A(f"s_lshl_b32 s{S_ROT}, s{S_A}, 1")
        A(f"s_add_u32 s{S_ROT}, s{S_ROT}, s{S_T0}")
    elif rm == 1:
        A(f"s_mov_b32 s{S_ROT}, s{S_T0}")
    elif rm == 2:
        A(f"s_and_b32 s{S_ROT}, s{S_A}, 1")
        A(f"s_mul_i32 s{S_ROT}, s{S_ROT}, 3")
        A(f"s_add_u32 s{S_ROT}, s{S_ROT}, s{S_T0}")
    A(f"s_cmp_ge_u32 s{S_ROT}, 7")
    A(f"s_cselect_b32 s{S_T1}, 7, 0")
    A(f"s_sub_u32 s{S_ROT}, s{S_ROT}, s{S_T1}")
    A("v_lshlrev_b32 v1, 4, v2")
    A("v_and_b32 v3, 31, v2")
    A("v_lshrrev_b32 v4, 5, v2")
    A("v_lshrrev_b32 v5, 2, v3")
    A("v_and_b32 v6, 3, v2")
    A("v_mul_u32_u24 v7, 2688, v5")
    A("v_lshl_add_u32 v7, v6, 4, v7")
    A("v_mov_b32 v8, v7")
    A("v_mul_u32_u24 v9, 896, v4")
    A("v_add3_u32 v7, v7, v9, v9" if False else "v_add_u32 v7, v7, v9")
    A("v_add_u32 v7, 896, v7")
    A("v_lshrrev_b32 v5, 3, v2")
    A("v_mul_u32_u24 v9, 896, v5")
    A("v_and_b32 v5, 7, v2")
    A("v_lshrrev_b32 v11, 4, v2")
    A("v_xor_b32 v5, v5, v11")
    A("v_xor_b32 v11, 4, v5")
    A("v_lshl_add_u32 v10, v11, 4, v9")
    A("v_lshl_add_u32 v9, v5, 4, v9")
    A("v_lshlrev_b32 v225, 2, v3")
    A(f"s_lshl_b32 s{S_LW}, s{S_W}, 12")
    A(f"s_lshl_b32 s{S_TT}, s{S_TB}, 3")
    A(f"s_add_u32 s{S_TT}, s{S_TT}, s{S_W}")
    A(f"s_mul_i32 s{S_XOFF}, s{S_TT}, 28672")
    A(f"s_add_u32 s{S_T4}, s{S_XOFF}, 896")
    A(f"s_lshl_b32 s{S_T1}, s{S_ROT}, 7")
    A(f"s_add_u32 s{S_XOFF}, s{S_XOFF}, s{S_T1}")
    A(f"s_lshl_b32 s{S_FL}, s{S_BH}, 7")
    A(f"s_add_u32 s{S_FL}, s{S_FL}, {FL_OFF}")
    A(f"s_mov_b32 s{S_POLL}, 0")
    A(f"s_mul_i32 s{S_T0}, s{S_H}, 56")
    A(f"s_mul_i32 s{S_WOFF}, s{S_W}, 21504")
    A(f"s_add_u32 s{S_WOFF}, s{S_WOFF}, s{S_T0}")
    A(f"s_add_u32 s{S_T3}, s{S_WOFF}, {7*172032}")
    A(f"s_mul_i32 s{S_T1}, s{S_ROT}, 172032")
    A(f"s_add_u32 s{S_WOFF}, s{S_WOFF}, s{S_T1}")
    A(f"s_lshl_b32 s{S_T2}, s{S_W}, 9")
    A(f"s_cmp_ge_u32 s{S_BH}, 16")
    A("s_waitcnt lgkmcnt(0)")
    A("s_cselect_b32 s6, s8, s6")
    A("s_cselect_b32 s7, s9, s7")
    A.stamp()
    srd(A, 12, 4, 1835008)
    srd(A, 16, 6, 1204224)
    srd(A, 24, 30, WS_USED)

    XB = 88
    AK, AV, AQ = 16, 32, 48
    WF = [64, 76]

    def dma_x(c):
        for i in range(4):
            A(f"s_add_u32 m0, s{S_LW}, {(c%3)*32768 + i*1024}")
            if i == 0:
                A("s_nop 0")
                A(f"buffer_load_dwordx4 v9, s[12:15], s{S_XOFF} offen lds")
            else:
                A(f"s_add_u32 s{S_T1}, s{S_XOFF}, {i*7168}")
                A(f"buffer_load_dwordx4 v{9 + (i&1)}, s[12:15], s{S_T1} offen lds")
        A(f"s_add_u32 s{S_XOFF}, s{S_XOFF}, 128")
        A(f"s_cmp_ge_u32 s{S_XOFF}, s{S_T4}")
        A(f"s_cselect_b32 s{S_T1}, 896, 0")
        A(f"s_sub_u32 s{S_XOFF}, s{S_XOFF}, s{S_T1}")

    def dma_x_piece(c, i):
        A(f"s_add_u32 m0, s{S_LW}, {(c%3)*32768 + i*1024}")
        if i == 0:
            A("s_nop 0")
            A(f"buffer_load_dwordx4 v9, s[12:15], s{S_XOFF} offen lds")
        else:
            A(f"s_add_u32 s{S_T1}, s{S_XOFF}, {i*7168}")
            A(f"buffer_load_dwordx4 v{9 + (i&1)}, s[12:15], s{S_T1} offen lds")
        if i == 3:
            A(f"s_add_u32 s{S_XOFF}, s{S_XOFF}, 128")
            A(f"s_cmp_ge_u32 s{S_XOFF}, s{S_T4}")
            A(f"s_cselect_b32 s{S_T1}, 896, 0")
            A(f"s_sub_u32 s{S_XOFF}, s{S_XOFF}, s{S_T1}")

    def read_x(c):
        for u in range(4):
            if c % 3 < 2:
                A(f"ds_read_b128 {vr(XB+16*c+4*u,4)}, v{200+u} offset:{(c%3)*32768}")
            else:
                A(f"ds_read_b128 {vr(XB+16*c+4*u,4)}, v{241+u} offset:32768")

    def hx(c, vm):
        A(f"s_waitcnt vmcnt({vm})")
        read_x(c)
        if c + 2 < 7:
            A("s_waitcnt lgkmcnt(0)")
            dma_x(c + 2)

    def late_setup():
        srd(A, 56, 28, 256)
        A(f"s_lshl_b32 s{S_T1}, s{S_BH}, 18")
        A(f"s_add_u32 s20, s30, s{S_T1}")
        A("s_addc_u32 s21, s31, 0")
        A("s_mov_b32 s22, 262144")
        A("s_mov_b32 s23, 0x00020000")
        A(f"s_lshl_b32 s63, s{S_BH}, 3")
        A("v_bfe_u32 v5, v3, 1, 3")
        A("v_lshlrev_b32 v11, 2, v4")
        A("v_xor_b32 v5, v5, v11")
        A("v_lshlrev_b32 v11, 7, v3")
        A(f"v_add_u32 v11, s{S_LW}, v11")
        for u in range(4):
            A(f"v_xor_b32 v12, {u}, v5")
            A(f"v_lshl_add_u32 v{200+u}, v12, 4, v11")
        for u in range(4):
            A(f"v_add_u32 v{241+u}, 32768, v{200+u}")
        A("v_bfe_u32 v15, v2, 2, 2")
        A("v_lshlrev_b32 v14, 6, v15")
        A("v_bfe_u32 v15, v2, 4, 1")
        A("v_lshl_add_u32 v14, v15, 5, v14")
        A("v_lshl_add_u32 v14, v6, 3, v14")
        A("v_lshl_add_u32 v15, v4, 11, v14")
        A(f"v_add_u32 v15, {QIMG}, v15")
        A("v_lshl_add_u32 v14, v4, 12, v14")
        A(f"v_add_u32 v14, {KVR}, v14")
        A(f"s_lshr_b32 s{S_KH}, s{S_W}, 2")
        A(f"s_and_b32 s{S_QP}, s{S_W}, 3")
        A(f"s_cmp_ge_u32 s{S_BH}, 16")
        A(f"s_cselect_b32 s{S_GS}, -1.0, 1.0")
        A(f"s_cselect_b32 s{S_GO}, 1.0, 0")
        for r in range(16, 64):
            A(f"v_mov_b32 v{r}, 0")
        A("v_mov_b32 v207, 0")
        A(f"v_mov_b32 v5, {CNT_ADDR}")
        A("ds_write_b32 v5, v207")
        A("ds_write_b32 v5, v207 offset:64")
        srd(A, 52, 10, 896)
        A("v_lshrrev_b32 v12, 3, v2")
        A("v_min_u32 v12, 6, v12")
        A("v_and_b32 v204, 7, v2")
        A("v_lshlrev_b32 v13, 12, v12")
        A("v_lshl_add_u32 v13, v204, 6, v13")
        A(f"s_add_u32 s{S_T1}, s{S_T2}, {QIMG + 56}")
        A(f"v_add_u32 v13, s{S_T1}, v13")
        A(f"v_add_u32 v12, s{S_ROT}, v12")
        A("v_subrev_u32 v11, 7, v12")
        A("v_min_u32 v12, v12, v11")
        A("v_lshl_add_u32 v12, v12, 6, v204")
        A(f"s_lshl_b32 s{S_T1}, s{S_W}, 3")
        A(f"v_add_u32 v12, s{S_T1}, v12")
        A("v_lshlrev_b32 v12, 1, v12")
        A("buffer_load_ushort v206, v12, s[52:55], 0 offen")
        A("ds_write_b32 v5, v207 offset:68")
        A(f"s_lshr_b32 s{S_CB}, s2, 5")
        A(f"s_min_u32 s{S_CB}, s{S_CB}, 6")
        A(f"s_and_b32 s{S_QP}, s2, 7")
        A(f"s_lshl_b32 s{S_QP}, s{S_QP}, 2")
        A(f"s_bfe_u32 s{S_T1}, s2, 0x20003")
        A(f"s_add_u32 s{S_QP}, s{S_QP}, s{S_T1}")
        A(f"s_lshl_b32 s{S_QC}, s{S_QP}, 1")
        A(f"s_and_b32 s{S_T1}, s{S_W}, 1")
        A(f"s_add_u32 s{S_QC}, s{S_QC}, s{S_T1}")
        A(f"s_lshr_b32 s{S_KQ}, s{S_W}, 1")
        A(f"s_lshl_b32 s{S_T1}, s{S_QP}, 8")
        A(f"v_lshl_add_u32 v239, v2, 2, s{S_T1}")
        A("ds_write_b64 v5, v[16:17] offset:80")
        A(f"s_mov_b32 s{S_T1}, s{S_TT}")
        A(f"s_lshl_b32 s64, s{S_T1}, 16")
        A(f"s_lshl_b32 s11, s{S_BH}, 11")
        A(f"s_add_u32 s64, s64, s11")
        A(f"s_add_u32 s64, s64, {OF_OFF}")
        A(f"s_lshl_b32 s{S_T1}, s{S_T1}, 7")
        A(f"s_lshl_b32 s11, s{S_BH}, 2")
        A(f"s_add_u32 s{S_T1}, s{S_T1}, s11")
        A(f"v_mov_b32 v234, s{S_T1}")
        A(f"s_mov_b32 s11, {FO_OFF}")
        A(f"s_cmp_lg_u32 s{S_W}, s{S_POLL}")
        A("s_cbranch_scc1 L_ka_nosnap3")
        A("buffer_load_dword v240, v239, s[24:27], s11 offen sc1")
        A("L_ka_nosnap3:")
        A("s_mov_b64 exec, 1")
        A("buffer_load_dword v233, v234, s[24:27], s11 offen sc1")
        if opt("pt", 0):
            A(f"s_cmp_lg_u32 s{S_W}, 2")
            A("s_cbranch_scc1 L_ka_nopt")
            A("s_load_dwordx2 s[4:5], s[0:1], 16")
            A("s_load_dwordx2 s[6:7], s[0:1], 40")
            A("s_load_dwordx2 s[60:61], s[0:1], 56")
            A("v_mov_b32 v228, 0")
            A(f"s_lshl_b32 s{S_T1}, s{S_TT}, 12")
            A(f"buffer_load_dword v229, v228, s[20:23], s{S_T1} offen sc1")
            A("buffer_load_dword v229, v228, s[24:27], s64 offen sc1")
            A(f"s_lshl_b32 s{S_T1}, s{S_QC}, 16")
            A(f"s_add_u32 s{S_T1}, s{S_T1}, {OF_OFF}")
            A(f"buffer_load_dword v229, v228, s[24:27], s{S_T1} offen sc1")
            A("buffer_load_dword v229, v228, s[56:59], 0 offen sc1")
            A("s_waitcnt lgkmcnt(0)")
            A("global_load_dword v229, v228, s[4:5]")
            A("global_load_dword v229, v228, s[6:7]")
            A("global_load_dword v229, v228, s[60:61]")
            A("L_ka_nopt:")
        A("s_mov_b64 exec, -1")

    def trreads(c, u, st, slices):
        base = "v14" if c < 4 else "v15"
        cc = c if c < 4 else c - 4
        n = 0
        for t in slices:
            for tp in range(2):
                off = (8 * cc + u) * 1536 + t * 512 + tp * 256
                A(f"ds_read_b64_tr_b16 {vr(WF[st]+4*t+2*tp,2)}, {base} offset:{off}")
                n += 1
        return n

    def mm(c, u, st, slices):
        xf = XB + 16 * c + 4 * u
        for t in slices:
            if t == 0:
                A(mfma(AQ, WF[st] + 0, xf, AQ))
            elif t == 1:
                A(mfma(AK, WF[st] + 4, xf, AK))
            else:
                A(mfma(AV, xf, WF[st] + 8, AV))

    def chunks_mfma(cs, slices=(1, 2)):
        steps = [(c, u) for c in cs for u in range(4)]
        trreads(*steps[0], 0, slices)
        for i, (c, u) in enumerate(steps):
            if i + 1 < len(steps):
                n = trreads(*steps[i + 1], (i + 1) % 2, slices)
                A(f"s_waitcnt lgkmcnt({n})")
            else:
                A("s_waitcnt lgkmcnt(0)")
            mm(c, u, i % 2, slices)

    def adv_w():
        A(f"s_add_u32 s{S_WOFF}, s{S_WOFF}, 172032")
        A(f"s_cmp_ge_u32 s{S_WOFF}, s{S_T3}")
        A(f"s_cselect_b32 s{S_T1}, {7*172032}, 0")
        A(f"s_sub_u32 s{S_WOFF}, s{S_WOFF}, s{S_T1}")

    q = []

    def dma_wkv(c):
        A(f"s_lshl_b32 s{S_T1}, s{S_T2}, 1")
        A(f"s_add_u32 m0, s{S_T1}, {KVR + (c%4)*8192}")
        A("s_nop 0" if not opt("exp_now", 0) else "s_mov_b64 exec, 1")
        A(f"buffer_load_dwordx4 v7, s[16:19], s{S_WOFF} offen lds")
        if opt("exp_now", 0):
            A("s_mov_b64 exec, -1")
        adv_w()
        q.append(("W", c))

    def dma_wq(c):
        A(f"s_add_u32 m0, s{S_T2}, {QIMG + c*4096}")
        A("s_mov_b32 exec_hi, 0")
        A(f"buffer_load_dwordx4 v8, s[16:19], s{S_WOFF} offen lds")
        A("s_mov_b32 exec_hi, -1")
        adv_w()
        q.append(("Q", c))

    def dma_xq(c):
        dma_x(c)
        q.extend([("X", c)] * 4)

    def younger(*tags):
        last = max(i for i, t in enumerate(q) if t in tags)
        return len(q) - 1 - last

    A(f"s_cmp_lg_u32 s{S_W}, s{S_POLL}")
    A("s_cbranch_scc1 L_ka_nosnap")
    A(f"buffer_load_dword v{VSNAP}, v225, s[24:27], s{S_FL} offen sc1")
    A("L_ka_nosnap:")
    WLA = opt("wla", 3)
    XD = 3
    WLA = XD
    IB = opt("ib", 2)
    XI = opt("xi", 3)
    for c in range(XI):
        dma_wkv(c)
        dma_xq(c)
        if IB == 1 and c < XI - 1:
            A("s_barrier")
        if IB == 2 and c == 0:
            late_setup()
            q.append(("G", 0))
            q.append(("G", 1))
            A("s_barrier")
        if IB == 3 and c == 0:
            A("s_barrier")
    if IB != 2:
        late_setup()
        q.append(("G", 0))
        q.append(("G", 1))
    A.stamp()
    IDX = 5
    QF = [64, 72]
    O = [16, 32]
    S = [112, 128, 144, 160]
    KF = [176, 184]
    VF = [192, 200, 208, 216]
    T = 48
    VB = 6
    GB = [12, 13]
    PK, PV = 208, 216
    lq = []

    def lwait(tag):
        last = max(i for i, t in enumerate(lq) if t == tag)
        A(f"s_waitcnt lgkmcnt({min(15, len(lq) - 1 - last)})")

    def kvread(i):
        c, u = divmod(i, 4)
        for t in (1, 2):
            for tp in range(2):
                A(f"ds_read_b64_tr_b16 {vr(64+8*(i%3)+4*(t-1)+2*tp,2)}, v14 offset:{(c%4)*8192 + u*1024 + (t-1)*512 + tp*256}")
                lq.append(("T", i))

    def rx(c):
        read_x(c)
        lq.extend([("X", c)] * 4)

    def arrive(c):
        tags = [("X", c), ("W", c)] + ([("Q", 3)] if c == 6 and QE else [])
        assert q.count(("X", c)) == 4 and q.count(("W", c)) == 1
        A(f"s_waitcnt vmcnt({younger(*tags)}) lgkmcnt(0)")
        lq.clear()
        if c == 6 and QE:
            A("s_mov_b32 exec_hi, 0")
            A("ds_write_b16 v13, v206")
            A("s_mov_b32 exec_hi, -1")
            A("s_waitcnt lgkmcnt(0)")
            lq.clear()
        A("s_barrier")
        rx(c)

    pend = []

    def xop(c, i):
        def f():
            dma_x_piece(c, i)
            q.append(("X", c))
        return f

    for c in range(XI, 7):
        e = -1 if c < 3 else (-1 if c == 3 else 4 * (c - 3))
        ew = -1 if c < 4 else 4 * (c - 3)
        pend.append((ew, (lambda cc: (lambda: dma_wkv(cc)))(c)))
        for i in range(4):
            pend.append((e, xop(c, i)))
    for j in range(7):
        pend.append((4 * opt("qat", 4), (lambda jj: (lambda: dma_wq(jj)))(j)))
    RATE = opt("rate", 2)

    def drain(step, n):
        while n > 0 and pend and pend[0][0] <= step:
            pend.pop(0)[1]()
            n -= 1

    QE = 0
    A(f"s_waitcnt vmcnt({younger(('X', 0), ('W', 0))})")
    A(f"s_cmp_lg_u32 s{S_W}, s{S_POLL}")
    A("s_cbranch_scc1 L_ka_nosnap2")
    A(f"v_add_u32 v11, {SNAPL}, v225")
    A(f"ds_write_b32 v11, v{VSNAP}")
    A("L_ka_nosnap2:")
    read_x(0)
    A("s_waitcnt lgkmcnt(0)")
    A.stamp()
    A("s_barrier")
    kvread(0)
    kvread(1)
    for i in range(28):
        c, u = divmod(i, 4)
        if u == 2 and c < 6:
            arrive(c + 1)
            if c == 3 and opt("st4", 0):
                A.stamp()
                lq.clear()
                lq.extend([("T", i)] * 1 + [("T", i + 1)] * 0)
        if i + 2 < 28:
            kvread(i + 2)
        if ("T", i) in lq:
            lwait(("T", i))
        xf = XB + 16 * c + 4 * u
        A(mfma(AK, 64 + 8 * (i % 3), xf, AK))
        A(mfma(AV, xf, 64 + 8 * (i % 3) + 4, AV))
        drain(i, RATE)
    assert not pend
    A("s_load_dwordx2 s[4:5], s[0:1], 16")
    A("s_load_dwordx2 s[6:7], s[0:1], 40")
    A("s_load_dwordx2 s[28:29], s[0:1], 56")
    A.stamp()

    def publish():
        A("s_waitcnt vmcnt(0)")
        A("v_mov_b32 v9, 1")
        A(f"s_lshl_b32 s{S_T2}, s{S_TB}, 2")
        A(f"v_mov_b32 v11, s{S_T2}")
        A("s_mov_b64 exec, 1")
        A("ds_add_rtn_u32 v10, v5, v9")
        A(f"v_add_u32 v12, {SNAPL}, v11")
        A("ds_read_b32 v9, v12")
        A("s_waitcnt lgkmcnt(0)")
        A(f"v_readfirstlane_b32 s{S_T1}, v10")
        A("v_add_u32 v9, 1, v9")
        A("s_nop 0")
        A(f"s_cmp_lg_u32 s{S_T1}, 7")
        A("s_cbranch_scc1 L_ka_nopub")
        A(f"buffer_store_dword v9, v11, s[24:27], s{S_FL} offen sc1")
        A("L_ka_nopub:")
        A("s_mov_b64 exec, -1")

    qsteps = [(c, u) for c in range(7) for u in range(4)]
    fill = {}
    fill[0] = ["v_and_b32 v6, 0x13, v3", "v_bfe_u32 v7, v3, 2, 1", "v_lshl_or_b32 v6, v7, 3, v6",
               "v_bfe_u32 v7, v3, 3, 1", "v_lshl_or_b32 v6, v7, 2, v6", "v_lshl_add_u32 v6, v4, 5, v6",
               "v_lshlrev_b32 v6, 4, v6", f"v_add_u32 v7, s{S_LW}, v6", f"v_add_u32 v8, s{S_LW}, v1",
               f"s_lshl_b32 s{S_T0}, s{S_TT}, 12"]
    ZP = opt("zp", 1)
    fill[1] = ["s_mov_b32 exec_lo, 0", f"v_mov_b32 v{AK+12}, 1.0"] + \
              ([f"v_mov_b32 v{AK+r}, 0" for r in (13, 14, 15)] if ZP else []) + ["s_mov_b32 exec_lo, -1"] + \
              [f"v_cvt_pk_bf16_f32 v{PK+i}, v{AK+2*i}, v{AK+2*i+1}" for i in range(8)] + \
              [f"buffer_store_dwordx4 {vr(PK,4)}, v6, s[20:23], s{S_T0} offen sc1",
               f"buffer_store_dwordx4 {vr(PK+4,4)}, v6, s[20:23], s{S_T0} offen offset:1024 sc1"]
    fill[2] = [f"v_cvt_pk_bf16_f32 v{PV+i}, v{AV+2*i}, v{AV+2*i+1}" for i in range(8)]
    fill[3] = ["s_mov_b32 exec_lo, 0x10000000", "s_mov_b32 exec_hi, 0x10000000"] + \
              [f"v_mov_b32 v{PV+i}, 0x3f803f80" for i in range(8)] + \
              ((["s_mov_b32 exec_lo, 0xe0000000", "s_mov_b32 exec_hi, 0xe0000000"] +
                [f"v_mov_b32 v{PV+i}, 0" for i in range(8)]) if ZP else []) + ["s_mov_b64 exec, -1"] + \
              [f"buffer_store_dwordx4 {vr(PV,4)}, v1, s[20:23], s{S_T0} offen offset:2048 sc1",
               f"buffer_store_dwordx4 {vr(PV+4,4)}, v1, s[20:23], s{S_T0} offen offset:3072 sc1"]
    fill[4] = [f"ds_write_b128 v7, {vr(PK,4)}", f"ds_write_b128 v7, {vr(PK+4,4)} offset:1024"]
    fill[5] = [f"ds_write_b128 v8, {vr(PV,4)} offset:2048", f"ds_write_b128 v8, {vr(PV+4,4)} offset:3072"]
    zl = [O[0] + r for r in range(16)] + [O[1] + r for r in range(16)]
    for k in range(8):
        fill[6 + k] = [f"v_mov_b32 v{r}, 0" for r in zl[4 * k:4 * k + 4]]
    fill[17] = ["v_lshrrev_b32 v236, 2, v2", "v_mul_u32_u24 v236, 896, v236", "v_and_b32 v237, 3, v2",
                "v_lshl_add_u32 v236, v237, 4, v236", "v_add_u32 v237, 64, v236"]
    fill[25] = [f"s_xor_b32 s{S_T3}, s{S_LW}, 16384", f"v_add_u32 v7, s{S_T3}, v1",
                f"s_lshl_b32 s{S_T3}, s{S_KH}, 14", f"v_add_u32 v10, s{S_T3}, v1", f"v_mov_b32 v{VB}, v10",
                f"v_mov_b32 v{IDX}, 0xdddd"] + (["v_mov_b32 v232, 0"] if STAMP else [])
    fill[26] = [f"v_mov_b32 v{VF[3]+r}, 0" for r in range(4, 8)] + \
               [f"s_mov_b32 s{S_FLAGS}, 0", f"s_mov_b32 s{S_NEXT}, 1", f"s_mov_b32 s{S_REM}, 0xff",
                f"s_bitset0_b32 s{S_REM}, s{S_TB}",
                f"s_mov_b32 s{S_T3}, 0x{f32bits(QSCALE):08x}", f"s_mov_b32 s{S_T4}, 0x{f32bits(-LOG2E):08x}"]
    PUB_AT = opt("pubat", 6)
    BAR_AT = opt("barat", 10)
    POLL_AT = opt("pollat", 27)
    BAR_AT = opt("barat", 20)
    QD = opt("qd", 4)

    def qread(i):
        c, u = qsteps[i]
        for tp in range(2):
            A(f"ds_read_b64_tr_b16 {vr(64+4*(i%6)+2*tp,2)}, v15 offset:{c*4096 + u*512 + tp*256}")

    A("s_nop 1")
    for k in range(6):
        for ins in fill.pop(k):
            A(ins)
    A("s_waitcnt vmcnt(4)")
    A("s_mov_b32 exec_hi, 0x00ffffff")
    A("ds_write_b16 v13, v206")
    A("s_mov_b32 exec_hi, -1")
    A("s_waitcnt lgkmcnt(0)")
    srd(A, 12, 4, 401408)
    srd(A, 16, 6, 401408)
    srd(A, 52, 28, 1835008)
    A("s_barrier")
    A.stamp()
    for i in range(QD):
        qread(i)
    for i, (c, u) in enumerate(qsteps):
        if i == PUB_AT:
            publish()
        if i == POLL_AT:
            A(f"s_cmp_lg_u32 s{S_W}, s{S_POLL}")
            A("s_cbranch_scc1 L_ka_nopoll")
            A(f"buffer_load_dword v227, v225, s[24:27], s{S_FL} offen sc1")
            A("L_ka_nopoll:")
        seg_end = len(qsteps) - 1
        if i + QD <= seg_end:
            qread(i + QD)
        A(f"s_waitcnt lgkmcnt({2*(min(seg_end, i+QD)-i)})")
        A(mfma(AQ, 64 + 4 * (i % 6), XB + 16 * c + 4 * u, AQ))
        for ins in fill.get(i, []):
            A(ins)
    A.stamp()

    def rtile(q_, I):
        A(f"ds_read_b128 {vr(KF[I%2],4)}, v{VB} offset:{q_*4096}")
        A(f"ds_read_b128 {vr(KF[I%2]+4,4)}, v{VB} offset:{q_*4096+1024}")
        A(f"ds_read_b128 {vr(VF[I%4],4)}, v{VB} offset:{q_*4096+2048}")
        A(f"ds_read_b128 {vr(VF[I%4]+4,4)}, v{VB} offset:{q_*4096+3072}")

    rtile(0, 0)
    rtile(1, 1)
    for r in range(8, 16):
        A(f"v_mov_b32 v{S[3]+r}, 0")
    A(f"v_mul_f32 v12, s{S_T4}, v{AQ+12}")
    A("v_exp_f32 v12, v12")
    for r in range(16):
        A(f"v_mul_f32 v{AQ+r}, s{S_T3}, v{AQ+r}")
    for i in range(8):
        A(f"v_cvt_pk_bf16_f32 v{QF[1]+i}, v{AQ+2*i}, v{AQ+2*i+1}")
    A("s_mov_b32 exec_lo, 0")
    A(f"v_mov_b32 v{QF[1]+6}, 0")
    A(f"v_mov_b32 v{QF[1]+7}, 0")
    A("s_mov_b32 exec_lo, -1")
    A("s_waitcnt lgkmcnt(6)")
    A(mfma(S[1], KF[0], QF[1], None))
    A(mfma(S[1], KF[0] + 4, QF[1] + 4, S[1]))
    A(f"ds_write_b128 v8, {vr(QF[1],4)} offset:32768")
    A("v_add_f32 v12, 1.0, v12")
    A("v_rcp_f32 v12, v12")
    A(f"s_cmp_lg_u32 s{S_W}, s{S_POLL}")
    A("s_cbranch_scc1 L_ka_nofw")
    A("s_waitcnt vmcnt(0)")
    A(f"v_cmp_ne_u32 vcc, v227, v{VSNAP}")
    A(f"v_mov_b32 v11, {FLAGW}")
    A("s_nop 4")
    A(f"s_and_b32 s{S_FLAGS}, vcc_lo, 0xff")
    A(f"v_mov_b32 v9, s{S_FLAGS}")
    A("ds_write_b32 v11, v9")
    A("L_ka_nofw:")
    A(f"v_mul_f32 v12, s{S_GS}, v12")
    A(f"v_add_f32 v12, s{S_GO}, v12")
    A(f"v_mov_b32 v{GB[1]}, v12")
    A("s_nop 1")
    A(f"v_permlane32_swap_b32 v12, v{GB[1]}")
    A("s_nop 3")
    s0 = S[1]
    t = T
    A(f"v_max3_f32 v{t}, v{s0}, v{s0+1}, v{s0+2}")
    A(f"v_max3_f32 v{t+1}, v{s0+3}, v{s0+4}, v{s0+5}")
    A(f"v_max3_f32 v{t+2}, v{s0+6}, v{s0+7}, v{s0+8}")
    A(f"v_max3_f32 v{t+3}, v{s0+9}, v{s0+10}, v{s0+11}")
    A(f"v_max3_f32 v{t+4}, v{s0+12}, v{s0+13}, v{s0+14}")
    A(f"v_max3_f32 v{t}, v{t}, v{t+1}, v{s0+15}")
    A(f"v_max3_f32 v{t+2}, v{t+2}, v{t+3}, v{t+4}")
    A(f"v_max_f32 v{t}, v{t}, v{t+2}")
    A(f"v_mov_b32 v{t+1}, v{t}")
    A("s_nop 1")
    A(f"v_permlane32_swap_b32 v{t}, v{t+1}")
    A("s_nop 1")
    A(f"v_max_f32 v{t}, v{t}, v{t+1}")
    A(f"v_ashrrev_i32 v{t+1}, 31, v{t}")
    A(f"v_and_b32 v{t+1}, 0xffff, v{t+1}")
    A(f"v_add_u32 v{t}, v{t}, v{t+1}")
    A(f"v_lshrrev_b32 v{t}, 16, v{t}")
    A("s_mov_b32 exec_lo, 0")
    A(f"v_xor_b32 v{QF[1]+6}, 0x8000, v{t}")
    A("s_mov_b32 exec_lo, -1")
    A(f"ds_write_b128 v8, {vr(QF[1]+4,4)} offset:{32768+1024}")
    A("s_nop 0")
    A(mfma(S[1], KF[0], QF[1], None))
    A(mfma(S[1], KF[0] + 4, QF[1] + 4, S[1]))
    A("s_waitcnt lgkmcnt(0)")
    A("s_barrier")
    A.stamp()
    A(f"ds_read_b128 {vr(QF[0],4)}, v7 offset:{32768}")
    A(f"ds_read_b128 {vr(QF[0]+4,4)}, v7 offset:{32768+1024}")

    def dma_block():
        lbl = f"L_ka_fl{len(A.lines)}"
        A(f"s_and_b32 s{S_T0}, s{S_FLAGS}, s{S_REM}")
        A(f"s_cbranch_scc1 {lbl}_ok")
        A(f"s_mov_b32 s{S_SPIN}, 0")
        A(f"v_mov_b32 v8, {FLAGW}")
        A(f"{lbl}_spin:")
        A(f"s_cmp_lg_u32 s{S_W}, s{S_POLL}")
        A(f"s_cbranch_scc1 {lbl}_lds")
        A(f"buffer_load_dword v11, v225, s[24:27], s{S_FL} offen sc1")
        A("v_mov_b32 v9, 0")
        A(f"s_and_b32 s{S_T1}, s{S_SPIN}, 7")
        A(f"s_cmp_lg_u32 s{S_T1}, 7")
        A(f"s_cbranch_scc1 {lbl}_nodbg")
        A("buffer_load_dword v9, v9, s[56:59], s63 offen sc1")
        A(f"{lbl}_nodbg:")
        A("s_waitcnt vmcnt(0)")
        A(f"v_cmp_ne_u32 vcc, v11, v{VSNAP}")
        A("s_nop 4")
        A(f"s_or_b32 s{S_T1}, vcc_lo, s{S_FLAGS}")
        A(f"v_or_b32 v11, s{S_T1}, v9")
        A("v_and_b32 v11, 0xff, v11")
        A("ds_write_b32 v8, v11")
        A(f"s_add_u32 s{S_SPIN}, s{S_SPIN}, 16")
        A(f"s_branch {lbl}_chk")
        A(f"{lbl}_lds:")
        A("ds_read_b32 v11, v8")
        A("s_waitcnt lgkmcnt(0)")
        A(f"{lbl}_chk:")
        A(f"v_readfirstlane_b32 s{S_FLAGS}, v11")
        A(f"s_add_u32 s{S_SPIN}, s{S_SPIN}, 1")
        A(f"s_mov_b32 s{S_T0}, s{S_REM}")
        A(f"s_cmp_ge_u32 s{S_SPIN}, 0x1000000")
        A(f"s_cbranch_scc1 {lbl}_ok")
        A(f"s_and_b32 s{S_T0}, s{S_FLAGS}, s{S_REM}")
        A(f"s_cbranch_scc1 {lbl}_ok")
        A(f"s_sleep {opt('sleep', 1)}")
        A(f"s_branch {lbl}_spin")
        A(f"{lbl}_ok:")
        A(f"s_lshl_b32 s{S_T1}, s{S_T0}, 8")
        A(f"s_or_b32 s{S_T0}, s{S_T0}, s{S_T1}")
        A(f"s_lshr_b32 s{S_T0}, s{S_T0}, s{S_TB}")
        A(f"s_ff1_i32_b32 s{S_T0}, s{S_T0}")
        A(f"s_add_u32 s{S_T0}, s{S_T0}, s{S_TB}")
        A(f"s_and_b32 s{S_T0}, s{S_T0}, 7")
        A(f"s_bitset0_b32 s{S_REM}, s{S_T0}")
        A(f"s_lshl_b32 s{S_T0}, s{S_T0}, 15")
        A(f"s_add_u32 s{S_T0}, s{S_T0}, s{S_LW}")
        tab = sum(sl_ << (4 * j) for j, sl_ in enumerate(SLOT_OF_BLOCK))
        A(f"s_lshl_b32 s{S_T1}, s{S_NEXT}, 2")
        A(f"s_lshr_b32 s{S_T1}, 0x{tab:08x}, s{S_T1}")
        A(f"s_and_b32 s{S_T1}, s{S_T1}, 15")
        A(f"s_lshl_b32 s{S_T1}, s{S_T1}, 15")
        A(f"s_add_u32 m0, s{S_T1}, s{S_LW}")
        A(f"s_add_u32 s{S_NEXT}, s{S_NEXT}, 1")
        for i in range(4):
            A(f"buffer_load_dwordx4 v1, s[20:23], s{S_T0} offen offset:{i*1024} sc1 lds")

    dma_block()
    A("s_waitcnt lgkmcnt(0)")
    A(mfma(S[0], KF[0], QF[0], None))
    A(mfma(S[0], KF[0] + 4, QF[0] + 4, S[0]))
    D2 = opt("d2", 1)
    if not D2:
        dma_block()
    else:
        A("s_nop 7")
        A("s_nop 1")
    CN = [None, None]

    PRIO = opt("prio", 1)

    def unit(I, s, q=None, do_qk=True, first=False):
        u = 2 * I + s
        sc = S[u % 4]
        sp = S[(u - 1) % 4]
        sn = S[(u + 2) % 4]
        E = lambda r: A(f"v_exp_f32 v{sc+r}, v{sc+r}")
        if s == 0:
            A("s_waitcnt lgkmcnt(0)")
        E(0); E(1)
        if s == 0:
            A(smfmac(O[1], VF[(I - 1) % 4] + 4, sp + 8, IDX))
        else:
            A(smfmac(O[0], VF[I % 4] + 4, sp + 8, IDX))
        if s == 0 and q is not None:
            A(f"ds_read_b128 {vr(KF[I%2],4)}, v{VB} offset:{q*4096}")
            A(f"ds_read_b128 {vr(KF[I%2]+4,4)}, v{VB} offset:{q*4096+1024}")
        E(2); E(3); E(4); E(5)
        if do_qk:
            A(mfma(sn, KF[(I + 1) % 2], QF[s], CN[s]))
        if s == 0 and q is not None:
            A(f"ds_read_b128 {vr(VF[(I+2)%4],4)}, v{VB} offset:{q*4096+2048}")
            A(f"ds_read_b128 {vr(VF[(I+2)%4]+4,4)}, v{VB} offset:{q*4096+3072}")
        E(6); E(7); E(8); E(9)
        if do_qk:
            A(mfma(sn, KF[(I + 1) % 2] + 4, QF[s] + 4, sn))
        E(10); E(11); E(12); E(13)
        A(smfmac(O[s], VF[I % 4], sc, IDX))
        E(14); E(15)

    def iteration(I, q, do_qk=True, prio=None, mid=None, mid2=None):
        if PRIO and prio is not None:
            A(f"s_setprio {prio}")
        unit(I, 0, q, do_qk)
        if mid:
            mid()
        unit(I, 1, q, do_qk)

    tab = sum(sl_ << (4 * j) for j, sl_ in enumerate(SLOT_OF_BLOCK))

    def next_vb():
        A(f"s_lshl_b32 s{S_T1}, s{S_JB}, 2")
        A(f"s_lshr_b32 s{S_T1}, 0x{tab >> 4:08x}, s{S_T1}")
        A(f"s_and_b32 s{S_T1}, s{S_T1}, 15")
        A(f"s_lshl_b32 s{S_T1}, s{S_T1}, 15")
        A(f"v_add_u32 v{VB}, s{S_T1}, v10")
        A(f"s_add_u32 s{S_JB}, s{S_JB}, 1")

    WO_REGION = [131072, 0, 65536, 32768]

    def wo_stage(kq, warm=False):
        srdn = "s[12:15]" if kq < 2 else "s[16:19]"
        A(f"s_min_u32 s{S_T0}, s{S_W}, 6")
        A(f"s_mul_i32 s{S_T1}, s{S_T0}, {2*14336}")
        A(f"s_lshl_b32 s{S_T2}, s{S_CB}, 7")
        A(f"s_add_u32 s{S_T1}, s{S_T1}, s{S_T2}")
        if kq & 1:
            A(f"s_add_u32 s{S_T1}, s{S_T1}, 200704")
        A(f"s_lshl_b32 s{S_T0}, s{S_T0}, 11")
        for i in range(4):
            if i == 2:
                A(f"s_add_u32 s{S_T1}, s{S_T1}, 14336")
            if warm:
                if i % 2 == 0:
                    A(f"buffer_load_dwordx4 v[228:231], v236, {srdn}, s{S_T1} offen")
            else:
                A(f"s_add_u32 m0, s{S_T0}, {WO_REGION[kq] + (i & 1)*14336 + (i >> 1)*1024}")
                A("s_nop 0")
                A(f"buffer_load_dwordx4 v{236 + (i & 1)}, {srdn}, s{S_T1} offen lds")

    def side_call(kh):
        def f():
            A(f"s_cmp_eq_u32 s{S_KH}, {kh}")
            A("s_cbranch_scc1 L_ka_sidein")
            A(f"L_ka_ret{kh}:")
        return f

    def side_blocks():
        A("L_ka_sidein:")
        A(f"s_cmp_eq_u32 s{S_JB}, 5")
        A("s_cbranch_scc1 L_ka_x4")
        A("L_ka_x4r:")
        A(f"s_cmp_ge_u32 s{S_JB}, 6")
        A("s_cbranch_scc1 L_ka_nodma")
        dma_block()
        A("L_ka_nodma:")
        A(f"s_bitcmp1_b32 0x7e, s{S_JB}")
        A("s_cbranch_scc1 L_ka_side")
        A("L_ka_nodma2:")
        A(f"s_cmp_eq_u32 s{S_KH}, 0")
        A("s_cbranch_scc1 L_ka_ret0")
        A("s_branch L_ka_ret1")
        A("L_ka_x4:")
        A(f"s_cmp_lg_u32 s{S_W}, s{S_POLL}")
        A("s_cbranch_scc1 L_ka_x4r")
        A("v_lshlrev_b32 v235, 2, v2")
        A("buffer_load_dword v235, v235, s[56:59], 0 offen sc1")
        A("s_branch L_ka_x4r")
        A("L_ka_side:")
        for jb in (3, 4, 5, 6):
            A(f"s_cmp_eq_u32 s{S_JB}, {jb}")
            A(f"s_cbranch_scc1 L_ka_s{jb}")
        A(f"s_cmp_lg_u32 s{S_W}, 1")
        A("s_cbranch_scc1 L_ka_nodma2")
        A(f"s_and_b32 s{S_T1}, s{S_TB}, 1")
        A(f"s_add_u32 s{S_T1}, s{S_T1}, 1")
        A(f"s_cmp_lg_u32 s{S_T1}, s{S_JB}")
        A("s_cbranch_scc1 L_ka_nodma2")
        A(f"s_lshl_b32 s{S_T1}, 0x101, s{S_TB}")
        A(f"v_mov_b32 v9, s{S_T1}")
        A("v_mov_b32 v11, 0")
        A("s_mov_b64 exec, 1")
        A("buffer_atomic_or v9, v11, s[56:59], s63 offen sc1")
        A("s_mov_b64 exec, -1")
        A("s_branch L_ka_nodma2")
        A("L_ka_s3:")
        wo_stage(0)
        A("s_branch L_ka_nodma2")
        A("L_ka_s4:")
        wo_stage(3, warm=True)
        A("s_branch L_ka_nodma2")
        A("L_ka_s5:")
        wo_stage(1)
        A("s_branch L_ka_nodma2")
        A("L_ka_s6:")
        wo_stage(2)
        A(f"s_cmp_lg_u32 s{S_W}, s{S_POLL}")
        A("s_cbranch_scc1 L_ka_nodma2")
        A("v_bfe_u32 v235, v235, 8, 8")
        A("v_mov_b32 v9, 0xff")
        A("v_cmp_eq_u32 vcc, v235, v9")
        A(f"v_mov_b32 v9, {CNT_ADDR}")
        A("v_mov_b32 v11, 1")
        A("s_nop 3")
        A(f"s_and_b32 s{S_T0}, vcc_lo, vcc_hi")
        A(f"s_and_b32 s{S_T0}, s{S_T0}, 0x55555555")
        A(f"s_cmp_lg_u32 s{S_T0}, 0x55555555")
        A("s_cbranch_scc1 L_ka_nodma2")
        A(f"ds_write_b32 v9, v11 offset:{REGOK_OFF}")
        A("s_branch L_ka_nodma2")

    A.stamp()
    if DT:
        A("s_memrealtime s[72:73]")
        A("s_waitcnt lgkmcnt(0)")
    A(f"s_mov_b32 s{S_JB}, 0")
    iteration(0, 2, prio=1, mid=dma_block if D2 else None)
    iteration(1, 3, prio=0, mid=next_vb)
    A(".p2align 6")
    A("L_ka_loop:")
    LST = STAMP and opt("lst", 0)
    if LST:
        A("s_memtime s[94:95]")
        A(f"s_mov_b32 m0, s{S_JB}")
        A("s_waitcnt lgkmcnt(0)")
        A(f"v_writelane_b32 v232, s94, m0")
    A(f"s_cmp_ge_u32 s{S_JB}, 7")
    A("s_cbranch_scc1 L_ka_w0")
    A("s_waitcnt vmcnt(4)")
    A("s_barrier")
    A("L_ka_w1:")
    if LST:
        A("s_memtime s[94:95]")
        A(f"s_add_u32 m0, s{S_JB}, 16")
        A("s_waitcnt lgkmcnt(0)")
        A(f"v_writelane_b32 v232, s94, m0")
    p0, p1 = opt("p0", 0), opt("p1", 1)
    mids = [None, None, None]
    if p0 == p1:
        mids[p0] = lambda: (side_call(0)(), side_call(1)())
    else:
        mids[p0] = side_call(0)
        mids[p1] = side_call(1)
    iteration(2, 0, prio=3, mid=mids[0])
    iteration(3, 1, prio=2, mid=mids[1])
    iteration(4, 2, prio=1, mid=mids[2])
    iteration(5, 3, prio=0, mid=next_vb)
    A(f"s_cmp_lt_u32 s{S_JB}, 8")
    A("s_cbranch_scc1 L_ka_loop")

    def tail_addr():
        A(f"s_add_u32 s{S_T0}, s{S_LW}, 98304")
        A(f"v_add_u32 v8, s{S_T0}, v1")
        A(f"s_xor_b32 s{S_T0}, s{S_T0}, 16384")
        A(f"v_add_u32 v9, s{S_T0}, v1")
        A(f"s_mov_b32 s66, 0")

    iteration(30, None, True, prio=1, mid=tail_addr)
    iteration(31, None, False, prio=0)
    for r4 in range(4):
        A(f"ds_write_b128 v8, {vr(O[0]+4*r4,4)} offset:{r4*1024}")
    A(smfmac(O[1], VF[31 % 4] + 4, S[3] + 8, IDX))
    A.stamp()
    if DT:
        A("s_memrealtime s[74:75]")
        A("s_waitcnt lgkmcnt(0)")
    A("s_waitcnt lgkmcnt(0)")
    A("s_barrier")
    for r4 in (3, 0, 1, 2):
        A(f"ds_read_b128 {vr(O[0]+4*r4,4)}, v9 offset:{r4*1024}")
    A(f"v_mov_b32 v235, {CNT_ADDR}")
    A(f"ds_read_b32 v235, v235 offset:{REGOK_OFF}")
    A("s_nop 4")
    A("s_waitcnt lgkmcnt(4)")
    OK_, OO = O[1], O[0]
    F1 = T + 4
    A("L_ka_fin:")
    A(f"v_add_f32 v{T+3}, v{OK_+12}, v{OO+12}")
    A(f"v_mov_b32 v{T+4}, v{T+3}")
    A("s_nop 1")
    A(f"v_permlane32_swap_b32 v{T+3}, v{T+4}")
    A("s_nop 1")
    A(f"v_rcp_f32 v{T+4}, v{T+4}")
    A("s_waitcnt lgkmcnt(0)")
    A(f"v_mul_f32 v{F1}, v{T+4}, v{GB[1]}")
    R = S[1]
    for r in range(16):
        A(f"v_add_f32 v{R+r}, v{OK_+r}, v{OO+r}")
    for r in range(16):
        A(f"v_mul_f32 v{R+r}, v{R+r}, v{F1}")
    for i in range(8):
        A(f"v_cvt_pk_bf16_f32 v{S[0]+i}, v{R+2*i}, v{R+2*i+1}")
    A(f"v_maximum3_f32 v{T+3}, abs(v{R}), abs(v{R+1}), abs(v{R+2})")
    for r in range(3, 15, 2):
        A(f"v_maximum3_f32 v{T+3}, v{T+3}, abs(v{R+r}), abs(v{R+r+1})")
    A(f"v_maximum3_f32 v{T+3}, v{T+3}, abs(v{R+15}), abs(v{R+15})")
    A("s_mov_b32 s65, 0x7f000000")
    A(f"v_cmp_nlt_f32 vcc, v{T+3}, s65")
    A("s_cmp_lg_u32 s66, 0")
    A("s_cbranch_scc1 L_ka_st")
    A("s_nop 2")
    A("s_cmp_lg_u64 vcc, 0")
    A("s_cbranch_scc1 L_ka_slow")
    A("L_ka_st:")
    A("s_mov_b32 exec_lo, 0")
    A(f"v_mov_b32 v{S[0]+6}, 0")
    A(f"v_mov_b32 v{S[0]+7}, 0")
    A("s_mov_b32 exec_lo, -1")
    A(f"buffer_store_dwordx4 {vr(S[0],4)}, v1, s[24:27], s64 offen sc1")
    A(f"buffer_store_dwordx4 {vr(S[0]+4,4)}, v1, s[24:27], s64 offen offset:1024 sc1")
    wo_stage(3)
    ACC = [16, 32]
    AB3 = 64
    WF3 = [136, 144]
    A(f"v_readfirstlane_b32 s{S_T0}, v235")
    A("v_add_u32 v238, 1, v233")
    A(f"s_lshl_b32 s{S_T1}, s{S_KQ}, 2")
    A(f"s_lshr_b32 s{S_T1}, 0x1204, s{S_T1}")
    A(f"s_and_b32 s{S_T1}, s{S_T1}, 15")
    A(f"s_lshl_b32 s{S_T1}, s{S_T1}, 15")
    A("v_bfe_u32 v9, v2, 2, 2")
    A("v_lshlrev_b32 v7, 6, v9")
    A("v_bfe_u32 v9, v2, 4, 1")
    A("v_lshl_add_u32 v7, v9, 5, v7")
    A("v_and_b32 v9, 3, v2")
    A("v_lshl_add_u32 v7, v9, 3, v7")
    A(f"v_add_u32 v7, s{S_T1}, v7")
    A("v_lshl_add_u32 v8, v4, 8, v7")
    for r in range(32):
        A(f"v_mov_b32 v{16+r}, 0")
    A(f"s_lshl_b32 s{S_T2}, s{S_QC}, 16")
    A(f"s_lshl_b32 s{S_T1}, s{S_KQ}, 14")
    A(f"s_add_u32 s{S_T2}, s{S_T2}, s{S_T1}")
    A(f"s_add_u32 s{S_T2}, s{S_T2}, {OF_OFF}")
    A(f"s_cmp_lg_u32 s{S_T0}, 0")
    A("s_cbranch_scc0 L_ka_regspin")
    A("L_ka_regok:")
    A("s_waitcnt vmcnt(4)")
    A.stamp()
    A("s_mov_b64 exec, 1")
    A("buffer_store_dword v238, v234, s[24:27], s11 offen sc1")
    A("s_mov_b64 exec, -1")
    A("s_cmp_ge_u32 s2, 224")
    A("s_cbranch_scc1 L_ka_done")
    A("s_waitcnt vmcnt(1)")
    A("s_barrier")
    A(f"s_mov_b32 s{S_SPIN}, 0")
    A(f"v_mov_b32 v10, {CNT_ADDR}")
    A(f"s_and_b32 s{S_T3}, s{S_W}, 1")
    A(f"s_lshl_b32 s{S_T3}, s{S_T3}, 5")
    A(f"s_lshl_b32 s{S_T4}, s{S_KQ}, 3")
    A(f"s_add_u32 s{S_T3}, s{S_T3}, s{S_T4}")
    A(f"s_cmp_lg_u32 s{S_W}, 0")
    A("s_cbranch_scc1 L_ka_p3lds")
    A("L_ka_p3spin:")
    A("buffer_load_dword v9, v239, s[24:27], s11 offen sc1")
    A("s_waitcnt vmcnt(0)")
    A("v_cmp_ne_u32 vcc, v9, v240")
    A(f"s_add_u32 s{S_SPIN}, s{S_SPIN}, 1")
    A("s_nop 3")
    A("v_mov_b32 v12, vcc_lo")
    A("v_mov_b32 v13, vcc_hi")
    A("ds_write_b64 v10, v[12:13] offset:80")
    A("s_cmp_eq_u64 vcc, -1")
    A("s_cbranch_scc1 L_ka_p3go")
    A(f"s_cmp_ge_u32 s{S_SPIN}, 0x100000")
    A("s_cbranch_scc1 L_ka_p3go")
    A(f"s_sleep {opt('sleep3', 4)}")
    A("s_branch L_ka_p3spin")
    A("L_ka_p3lds:")
    A("ds_read_b64 v[12:13], v10 offset:80")
    A("s_waitcnt lgkmcnt(0)")
    A("v_readfirstlane_b32 s4, v12")
    A("v_readfirstlane_b32 s5, v13")
    A(f"s_add_u32 s{S_SPIN}, s{S_SPIN}, 1")
    A("s_nop 1")
    A(f"s_lshr_b64 s[4:5], s[4:5], s{S_T3}")
    A("s_and_b32 s4, s4, 0xff")
    A("s_cmp_eq_u32 s4, 0xff")
    A("s_cbranch_scc1 L_ka_p3go")
    A(f"s_cmp_ge_u32 s{S_SPIN}, 0x1000000")
    A("s_cbranch_scc1 L_ka_p3go")
    A("s_sleep 1")
    A("s_branch L_ka_p3lds")
    A("L_ka_p3go:")
    A.stamp()
    for ks in range(16):
        if ks and ks % 4 == 0:
            A(f"s_add_u32 s{S_T2}, s{S_T2}, 4096")
        A(f"buffer_load_dwordx4 {vr(AB3+4*ks,4)}, v1, s[24:27], s{S_T2} offen offset:{(ks%4)*1024} sc1")

    def tr3(ks, st):
        for ct in range(2):
            for tp in range(2):
                hd, s_ = divmod(ks, 2)
                base = "v7" if (s_ == 1 and tp == 1) else "v8"
                A(f"ds_read_b64_tr_b16 {vr(WF3[st]+4*ct+2*tp,2)}, {base} offset:{ct*14336 + (28*hd + 16*s_ + 8*tp)*64}")

    tr3(0, 0)
    A(f"s_lshl_b32 s{S_T0}, s{S_W}, 13")
    A(f"s_and_b32 s{S_T1}, s{S_W}, 1")
    A(f"s_lshl_b32 s{S_T0}, s{S_T1}, 15")
    A(f"s_lshl_b32 s{S_T3}, s{S_KQ}, 13")
    A(f"s_add_u32 s{S_T3}, s{S_T3}, s{S_T0}")
    A(f"v_add_u32 v10, s{S_T3}, v1")
    A(f"s_and_b32 s{S_T3}, s{S_KQ}, 1")
    A(f"s_lshr_b32 s{S_T4}, s{S_KQ}, 1")
    A(f"s_lshl_b32 s{S_T1}, s{S_T3}, 12")
    A(f"s_add_u32 s{S_T0}, s{S_T0}, s{S_T1}")
    A(f"s_lshl_b32 s{S_T1}, s{S_T4}, 11")
    A(f"s_add_u32 s{S_T0}, s{S_T0}, s{S_T1}")
    A(f"v_add_u32 v11, s{S_T0}, v1")
    A("v_mul_u32_u24 v12, 896, v3")
    A("v_lshl_add_u32 v12, v4, 4, v12")
    A(f"s_mul_i32 s{S_T0}, s{S_QC}, 28672")
    A(f"s_lshl_b32 s{S_T1}, s{S_CB}, 7")
    A(f"s_add_u32 s{S_T0}, s{S_T0}, s{S_T1}")
    A(f"s_lshl_b32 s{S_T1}, s{S_T3}, 6")
    A(f"s_add_u32 s{S_T0}, s{S_T0}, s{S_T1}")
    A(f"s_lshl_b32 s{S_T1}, s{S_T4}, 5")
    A(f"s_add_u32 s{S_T0}, s{S_T0}, s{S_T1}")
    for ks in range(16):
        st = ks % 2
        if ks < 15:
            tr3(ks + 1, 1 - st)
            A(f"s_waitcnt vmcnt({15-ks}) lgkmcnt(4)")
        else:
            A("s_waitcnt vmcnt(0) lgkmcnt(0)")
        for ct in range(2):
            A(mfma(ACC[ct], WF3[st] + 4 * ct, AB3 + 4 * ks, ACC[ct]))
    A.stamp()
    A("s_barrier")
    A("s_nop 7")
    A("s_nop 3")
    for ct in range(2):
        for r4 in range(4):
            A(f"ds_write_b128 v10, {vr(ACC[ct]+4*r4,4)} offset:{ct*4096+r4*1024}")
    A("s_waitcnt lgkmcnt(0)")
    A("s_barrier")
    for k in range(4):
        for h2 in range(2):
            A(f"ds_read_b128 {vr(AB3+8*k+4*h2,4)}, v11 offset:{k*8192+h2*1024}")
    A("s_waitcnt lgkmcnt(4)")
    for r in range(8):
        A(f"v_add_f32 v{AB3+r}, v{AB3+r}, v{AB3+8+r}")
    A("s_waitcnt lgkmcnt(0)")
    for r in range(8):
        A(f"v_add_f32 v{AB3+16+r}, v{AB3+16+r}, v{AB3+24+r}")
    for r in range(8):
        A(f"v_add_f32 v{AB3+r}, v{AB3+r}, v{AB3+16+r}")
    for i in range(4):
        A(f"v_cvt_pk_bf16_f32 v{16+i}, v{AB3+2*i}, v{AB3+2*i+1}")
    A("s_nop 1")
    A("v_permlane32_swap_b32 v16, v18")
    A("v_permlane32_swap_b32 v17, v19")
    A("s_nop 1")
    A(f"buffer_store_dwordx4 v[16:19], v12, s[52:55], s{S_T0} offen {opt('outf', '').replace('+', ' ')}")
    A("L_ka_done:")
    if DT:
        A("s_waitcnt vmcnt(0)")
        A("s_memrealtime s[76:77]")
        A(f"s_cmp_lg_u32 s{S_W}, 0")
        A("s_waitcnt lgkmcnt(0)")
        A("s_cbranch_scc1 L_ka_end")
        A("s_mov_b64 exec, 1")
        A("v_mov_b32 v0, 0")
        A("s_not_b32 s78, s70")
        for off, sr in ((4, 76), (12, 78), (20, 72), (28, 74), (36, 70)):
            A(f"v_mov_b32 v1, s{sr}")
            A(f"buffer_atomic_umax v1, v0, s[56:59], 0 offen offset:{off} sc1")
            A("s_nop 1")
    if STAMP:
        A("s_mov_b64 exec, -1")
        A(f"s_mul_i32 s67, s2, 8")
        A(f"s_add_u32 s67, s67, s{S_W}")
        A("s_lshl_b32 s67, s67, 8")
        A(f"s_add_u32 s67, s67, {STAMP_OFF + 2*(1<<20)}")
        A("v_lshlrev_b32 v0, 2, v2")
        A("v_mov_b32 v1, s68")
        A("v_sub_u32 v232, v232, v1")
        A("buffer_store_dword v232, v0, s[24:27], s67 offen")
    A.stamp_flush(0, S_W, 8)
    A("L_ka_end:")
    A("s_endpgm")
    A("L_ka_w0:")
    A("s_waitcnt vmcnt(0)")
    A("s_barrier")
    A("s_branch L_ka_w1")
    side_blocks()
    A("L_ka_regspin:")
    A(f"s_mov_b32 s{S_SPIN}, 0")
    A("L_ka_regspin2:")
    A("v_lshlrev_b32 v235, 2, v2")
    A("buffer_load_dword v235, v235, s[56:59], 0 offen sc1")
    A("v_mov_b32 v9, 0xff")
    A("s_waitcnt vmcnt(0)")
    A("v_bfe_u32 v235, v235, 8, 8")
    A("v_cmp_eq_u32 vcc, v235, v9")
    A(f"s_add_u32 s{S_SPIN}, s{S_SPIN}, 1")
    A("s_nop 3")
    A(f"s_and_b32 s{S_T0}, vcc_lo, vcc_hi")
    A(f"s_and_b32 s{S_T0}, s{S_T0}, 0x55555555")
    A(f"s_cmp_eq_u32 s{S_T0}, 0x55555555")
    A("s_cbranch_scc1 L_ka_regok")
    A(f"s_cmp_ge_u32 s{S_SPIN}, 0x100000")
    A("s_cbranch_scc1 L_ka_regok")
    A("s_sleep 8")
    A("s_branch L_ka_regspin2")
    A("L_ka_slow:")
    M = T + 5
    s0 = S[0]
    A("s_waitcnt vmcnt(0) lgkmcnt(0)")
    for r in range(16):
        A(f"v_mov_b32 v{OK_+r}, 0")
        A(f"v_mov_b32 v{OO+r}, 0")
    A(f"v_mov_b32 v{M}, 0xff7fffff")
    A("L_ka_slow_loop:")
    A(f"buffer_load_dwordx4 {vr(KF[0],4)}, v1, s[20:23], s66 offen sc1")
    A(f"buffer_load_dwordx4 {vr(KF[0]+4,4)}, v1, s[20:23], s66 offen offset:1024 sc1")
    A(f"buffer_load_dwordx4 {vr(VF[0],4)}, v1, s[20:23], s66 offen offset:2048 sc1")
    A(f"buffer_load_dwordx4 {vr(VF[0]+4,4)}, v1, s[20:23], s66 offen offset:3072 sc1")
    A("s_waitcnt vmcnt(0)")
    A(mfma(s0, KF[0], QF[1], None))
    A(mfma(s0, KF[0] + 4, QF[1] + 4, s0))
    A("s_nop 15")
    A("s_nop 3")
    A(f"v_max3_f32 v{T}, v{s0}, v{s0+1}, v{s0+2}")
    for r in range(3, 15, 2):
        A(f"v_max3_f32 v{T}, v{T}, v{s0+r}, v{s0+r+1}")
    A(f"v_max_f32 v{T}, v{T}, v{s0+15}")
    A(f"v_mov_b32 v{T+1}, v{T}")
    A("s_nop 1")
    A(f"v_permlane32_swap_b32 v{T}, v{T+1}")
    A("s_nop 1")
    A(f"v_max3_f32 v{T}, v{T}, v{T+1}, v{M}")
    A(f"v_sub_f32 v{T+1}, v{M}, v{T}")
    A(f"v_exp_f32 v{T+1}, v{T+1}")
    A(f"v_mov_b32 v{M}, v{T}")
    for r in range(16):
        A(f"v_sub_f32 v{s0+r}, v{s0+r}, v{T}")
    for r in range(16):
        A(f"v_exp_f32 v{s0+r}, v{s0+r}")
    for r in range(16):
        A(f"v_mul_f32 v{OK_+r}, v{OK_+r}, v{T+1}")
    A("s_nop 3")
    A(smfmac(OK_, VF[0], s0, IDX))
    A(smfmac(OK_, VF[0] + 4, s0 + 8, IDX))
    A("s_nop 15")
    A("s_nop 3")
    A("s_add_u32 s66, s66, 4096")
    A("s_cmp_lt_u32 s66, 262144")
    A("s_cbranch_scc1 L_ka_slow_loop")
    A("s_branch L_ka_fin")
    A("L_ka_last:")
    return A.text(), 248, 68


def gen_kb():
    A = Asm()
    ACC = [16, 32, 48, 64]
    WF = [80, 88]
    AB = 96
    A("s_cmp_ge_u32 s2, 224")
    A("s_cbranch_scc1 L_k3_end")
    A.stamp()
    A("s_load_dwordx2 s[4:5], s[0:1], 16")
    A("s_load_dwordx2 s[6:7], s[0:1], 40")
    A("s_load_dwordx2 s[8:9], s[0:1], 56")
    A("s_load_dwordx2 s[28:29], s[0:1], 72")
    A("s_and_b32 s30, s2, 7")
    A("s_lshr_b32 s31, s2, 3")
    A("s_and_b32 s32, s31, 3")
    A("s_lshl_b32 s30, s30, 2")
    A("s_add_u32 s32, s32, s30")
    A("s_lshr_b32 s33, s31, 2")
    A("v_lshrrev_b32 v1, 6, v0")
    A("v_and_b32 v2, 63, v0")
    A("v_readfirstlane_b32 s35, v1")
    A("v_lshlrev_b32 v1, 4, v2")
    A("v_lshrrev_b32 v3, 2, v2")
    A("v_and_b32 v4, 3, v2")
    A("v_mul_u32_u24 v5, 896, v3")
    A("v_lshl_add_u32 v5, v4, 4, v5")
    A("v_add_u32 v6, 64, v5")
    A("v_lshrrev_b32 v7, 5, v2")
    A("v_and_b32 v8, 31, v2")
    A("s_mul_i32 s41, s35, 28672")
    A("v_lshlrev_b32 v9, 9, v7")
    A("v_bfe_u32 v10, v2, 2, 2")
    A("v_lshl_add_u32 v9, v10, 6, v9")
    A("v_bfe_u32 v10, v2, 4, 1")
    A("v_lshl_add_u32 v9, v10, 5, v9")
    A("v_lshl_add_u32 v9, v4, 3, v9")
    A("v_add_u32 v9, s41, v9")
    A("s_and_b32 s36, s35, 1")
    A("s_mul_i32 s36, s36, 200704")
    A("s_lshl_b32 s37, s33, 7")
    A("s_add_u32 s36, s36, s37")
    A("s_mul_i32 s38, s32, 114688")
    A("s_mul_i32 s39, s35, 14336")
    A("s_add_u32 s38, s38, s39")
    A(f"s_add_u32 s38, s38, {OF_OFF}")
    A("s_and_b32 s48, s32, 3")
    A("s_lshl_b32 s48, s48, 2")
    A("s_lshr_b32 s48, 0xa730, s48")
    A("s_and_b32 s48, s48, 15")
    A("s_lshl_b32 s49, s33, 1")
    A("s_add_u32 s48, s48, s49")
    A("s_cmp_ge_u32 s48, 14")
    A("s_cselect_b32 s49, 14, 0")
    A("s_sub_u32 s48, s48, s49")
    if not opt("rotb", 1):
        A("s_mov_b32 s48, 0")
    A("s_add_u32 s50, s38, 14336")
    A("s_mul_i32 s49, s48, 14336")
    A("s_add_u32 s36, s36, s49")
    A("s_lshl_b32 s49, s48, 10")
    A("s_add_u32 s38, s38, s49")
    A("s_add_u32 s39, s38, 57344")
    A("s_cmp_ge_u32 s35, 2")
    A("s_waitcnt lgkmcnt(0)")
    A("s_cselect_b32 s4, s6, s4")
    A("s_cselect_b32 s5, s7, s5")
    A.stamp()
    srd(A, 12, 4, 401408)
    srd(A, 16, 8, 1835008)
    srd(A, 24, 28, WS_USED)
    A("s_mov_b32 s42, s41")

    def loads(ks):
        A("s_mov_b32 m0, s42")
        A("s_add_u32 s42, s42, 1024")
        A("buffer_load_dwordx4 v5, s[12:15], s36 offen lds")
        A("s_mov_b32 m0, s42")
        A("s_add_u32 s42, s42, 1024")
        A("buffer_load_dwordx4 v6, s[12:15], s36 offen lds")
        A(f"buffer_load_dwordx4 {vr(AB+8*ks,4)}, v1, s[24:27], s38 offen")
        A(f"buffer_load_dwordx4 {vr(AB+8*ks+4,4)}, v1, s[24:27], s39 offen")
        if ks < 13:
            A("s_add_u32 s36, s36, 14336")
            A("s_add_u32 s38, s38, 1024")
            A("s_cmp_ge_u32 s38, s50")
            A("s_cselect_b32 s49, 14336, 0")
            A("s_cselect_b32 s51, 200704, 0")
            A("s_sub_u32 s38, s38, s49")
            A("s_sub_u32 s36, s36, s51")
            A("s_add_u32 s39, s38, 57344")

    D = opt("bd", 6)
    for ks in range(D):
        loads(ks)
    A.stamp()
    for r in range(16, 80):
        A(f"v_mov_b32 v{r}, 0")

    def trreads(ks, st):
        for ct in range(2):
            for tp in range(2):
                A(f"ds_read_b64_tr_b16 {vr(WF[st]+4*ct+2*tp,2)}, v9 offset:{(ks*2+ct)*1024+tp*256}")

    A(f"s_waitcnt vmcnt({4*(D-1)})")
    A.stamp()
    trreads(0, 0)
    for ks in range(14):
        st = ks % 2
        if ks + D < 14:
            loads(ks + D)
        if ks < 13:
            A(f"s_waitcnt vmcnt({4*(min(13, ks+D)-(ks+1))})")
            trreads(ks + 1, 1 - st)
            A("s_waitcnt lgkmcnt(4)")
        else:
            A("s_waitcnt lgkmcnt(0)")
        for ti in range(2):
            for ct in range(2):
                A(mfma(ACC[ti * 2 + ct], WF[st] + 4 * ct, AB + 8 * ks + 4 * ti, ACC[ti * 2 + ct]))
    A.stamp()
    A("v_add_u32 v10, s41, v1")
    A("s_lshl_b32 s43, s35, 12")
    A("v_add_u32 v11, s43, v1")
    A("v_mul_u32_u24 v12, 896, v8")
    A("v_lshl_add_u32 v12, v7, 4, v12")
    A("s_lshr_b32 s44, s35, 1")
    A("s_and_b32 s45, s35, 1")
    A("s_lshl_b32 s46, s32, 1")
    A("s_add_u32 s46, s46, s44")
    A("s_mul_i32 s46, s46, 28672")
    A("s_lshl_b32 s47, s33, 7")
    A("s_add_u32 s46, s46, s47")
    A("s_lshl_b32 s45, s45, 6")
    A("s_add_u32 s46, s46, s45")
    A("s_nop 7")
    for tile in range(4):
        for r4 in range(4):
            A(f"ds_write_b128 v10, {vr(ACC[tile]+4*r4,4)} offset:{tile*4096+r4*1024}")
    A("s_waitcnt lgkmcnt(0)")
    A.stamp()
    A("s_barrier")
    A.stamp()
    for w in range(4):
        for r4 in range(4):
            off = w * 28672 + r4 * 1024
            if off < 65536:
                A(f"ds_read_b128 {vr(AB+16*w+4*r4,4)}, v11 offset:{off}")
            else:
                if r4 == 0:
                    A("v_add_u32 v13, 65536, v11")
                A(f"ds_read_b128 {vr(AB+16*w+4*r4,4)}, v13 offset:{off-65536}")
    A("s_waitcnt lgkmcnt(8)")
    for r in range(16):
        A(f"v_add_f32 v{AB+r}, v{AB+r}, v{AB+16+r}")
    A("s_waitcnt lgkmcnt(0)")
    for r in range(16):
        A(f"v_add_f32 v{AB+32+r}, v{AB+32+r}, v{AB+48+r}")
    for r in range(16):
        A(f"v_add_f32 v{AB+r}, v{AB+r}, v{AB+32+r}")
    for i in range(8):
        A(f"v_cvt_pk_bf16_f32 v{16+i}, v{AB+2*i}, v{AB+2*i+1}")
    A("s_nop 1")
    A("v_permlane32_swap_b32 v16, v18")
    A("v_permlane32_swap_b32 v17, v19")
    A("v_permlane32_swap_b32 v20, v22")
    A("v_permlane32_swap_b32 v21, v23")
    A("s_nop 1")
    A("buffer_store_dwordx4 v[16:19], v12, s[16:19], s46 offen")
    A("buffer_store_dwordx4 v[20:23], v12, s[16:19], s46 offen offset:32")
    A.stamp()
    A.stamp_flush(1, 35, 4)
    A("L_k3_end:")
    A("s_endpgm")
    return A.text(), 208, 56


HEADER = """; Kernarg layout for this problem (80 bytes, ptrs only, base s[0:1]):
"""


def main(outpath):
    name = NAME + "_kernel"
    body, nv, ns = gen_ka()
    out = HEADER
    out += "; @launch grid=(256,1,1) block=(512,1,1) lds=163840\n"
    out += '.amdgcn_target "amdgcn-amd-amdhsa--gfx950"\n.text\n'
    out += f".globl {name}\n.p2align 8\n.type {name},@function\n{name}:\n{body}"
    out += '.section .rodata,"a"\n'
    out += f""".p2align 6
.amdhsa_kernel {name}
  .amdhsa_next_free_vgpr {nv}
  .amdhsa_next_free_sgpr {102 if (STAMP or opt('dbgtime', 0)) else ns}
  .amdhsa_accum_offset {(nv+3)//4*4}
  .amdhsa_group_segment_fixed_size 0
  .amdhsa_kernarg_size 80
  .amdhsa_user_sgpr_count 2
  .amdhsa_user_sgpr_kernarg_segment_ptr 1
  .amdhsa_system_sgpr_workgroup_id_x 1
.end_amdhsa_kernel
"""
    open(outpath, "w").write(out)


if __name__ == "__main__":
    main(sys.argv[1] if len(sys.argv) > 1 else f"cdna_kernels/{NAME}.s")
```

```python
import struct, math, sys, os

NAME = "gated_mix__softmax_full_mha__softmax_full_mha__prompt"

KVF_OFF = 0
OF_OFF = 8 << 20
WI_OFF = 13 << 20
FL_OFF = 12 << 20
WS_USED = 24 << 20
STAMP_OFF = 20 << 20
STAMP = bool(os.environ.get("STAMP"))
OPT = dict(kv.split("=") for kv in os.environ.get("OPT", "").split(",") if kv)


def opt(name, default):
    return type(default)(OPT.get(name, default))


def f32bits(x):
    return struct.unpack("<I", struct.pack("<f", x))[0]


LOG2E = math.log2(math.e)
QSCALE = (28 ** -0.5) * LOG2E


class Asm:
    def __init__(self):
        self.lines = []
        self.nst = 0

    def __call__(self, s):
        for ln in s.strip("\n").split("\n"):
            self.lines.append("    " + ln.strip() if not ln.strip().endswith(":") else ln.strip())

    def text(self):
        return "\n".join(self.lines) + "\n"

    def stamp(self):
        if not STAMP:
            return
        k = self.nst
        self.nst += 1
        assert k < 14
        if k == 0:
            self("s_memrealtime s[96:97]")
        self(f"{'s_memrealtime' if os.environ.get('RT') else 's_memtime'} s[{68+2*k}:{69+2*k}]")
        self("s_waitcnt lgkmcnt(0)")

    def stamp_flush(self, kidx, wave_sgpr, nwaves, srd="s[24:27]"):
        if not STAMP:
            return
        self("s_waitcnt vmcnt(0)")
        self(f"{'s_memrealtime' if os.environ.get('RT') else 's_memtime'} s[98:99]")
        self("s_memrealtime s[100:101]")
        self("s_waitcnt lgkmcnt(0)")
        self("s_mov_b64 exec, 1")
        self(f"s_mul_i32 s67, s2, {nwaves}")
        self(f"s_add_u32 s67, s67, s{wave_sgpr}")
        self("s_lshl_b32 s67, s67, 7")
        self(f"s_add_u32 s67, s67, {STAMP_OFF + kidx*(1<<20)}")
        self("v_mov_b32 v0, 0")
        regs = [96, 100, 98] + [68 + 2 * k for k in range(self.nst)]
        for i, r in enumerate(regs):
            self(f"v_mov_b32 v1, s{r}")
            self(f"buffer_store_dword v1, v0, {srd}, s67 offen offset:{4*i}")
            self("s_nop 1")


def vr(a, n):
    return f"v[{a}:{a+n-1}]"


def srd(A, d, base, nbytes):
    A(f"s_mov_b32 s{d}, s{base}")
    A(f"s_mov_b32 s{d+1}, s{base+1}")
    A(f"s_mov_b32 s{d+2}, {nbytes}")
    A(f"s_mov_b32 s{d+3}, 0x00020000")


def mfma(d, a, b, c):
    cs = vr(c, 16) if c is not None else "0"
    return f"v_mfma_f32_32x32x16_bf16 {vr(d,16)}, {vr(a,4)}, {vr(b,4)}, {cs}"


def smfmac(d, a, b, idx):
    return f"v_smfmac_f32_32x32x32_bf16 {vr(d,16)}, {vr(a,4)}, {vr(b,8)}, v{idx}"


S_BH, S_TB, S_H, S_W, S_TT, S_ROT = 32, 33, 34, 35, 36, 37
S_WOFF, S_XOFF, S_T0, S_T1, S_T2 = 38, 39, 40, 41, 42
S_KH, S_QP, S_JB, S_FLAGS, S_GS, S_GO = 43, 44, 45, 46, 47, 48
S_LW, S_T3, S_T4 = 49, 50, 51
S_NEXT = 60
S_SPIN = 61
S_REM = 62
S_FL = 3
S_POLL = 65
S_A = 66

KVR = 98304
QIMG = 131072
CNT_ADDR = 159744
MX_ADDR = CNT_ADDR + 1024
REGOK_OFF = 68
FO_OFF = (12 << 20) + 65536
S_CB, S_QC, S_KQ = 8, 9, 10
FLAGW = CNT_ADDR + 64
WRDY = CNT_ADDR + 68
SNAPL = CNT_ADDR + 128
SLOT_OF_BLOCK = [0, 2, 3, 1, 0, 2, 3, 1]
VSNAP = 224


def gen_ka():
    A = Asm()
    A("s_cmp_ge_u32 s2, 256")
    A("s_cbranch_scc1 L_ka_end")
    A.stamp()
    DT = opt("dbgtime", 0)
    if DT:
        A("s_memrealtime s[70:71]")
    A("s_load_dwordx4 s[4:7], s[0:1], 0")
    A("s_load_dwordx2 s[8:9], s[0:1], 32")
    A("s_load_dwordx2 s[10:11], s[0:1], 48")
    A("s_load_dwordx4 s[28:31], s[0:1], 64")
    if opt("cpf", 0):
        A("s_getpc_b64 s[12:13]")
        A("L_ka_pc:")
        A("v_lshlrev_b32 v245, 6, v0")
        A("v_min_u32 v245, L_ka_last-L_ka_pc-4, v245")
        A("global_load_dword v246, v245, s[12:13]")
    A("v_lshrrev_b32 v1, 6, v0")
    A("v_and_b32 v2, 63, v0")
    A(f"v_readfirstlane_b32 s{S_W}, v1")
    A(f"s_and_b32 s{S_T0}, s2, 7")
    A(f"s_lshr_b32 s{S_T1}, s2, 3")
    MAP = opt("map", 0)
    if MAP == 0:
        A(f"s_and_b32 s{S_A}, s{S_T1}, 3")
        A(f"s_lshl_b32 s{S_BH}, s{S_T0}, 2")
        A(f"s_add_u32 s{S_BH}, s{S_BH}, s{S_A}")
        A(f"s_lshr_b32 s{S_TB}, s{S_T1}, 2")
    elif MAP == 1:
        A(f"s_and_b32 s{S_A}, s{S_T1}, 7")
        A(f"s_lshr_b32 s{S_BH}, s{S_T0}, 1")
        A(f"s_lshl_b32 s{S_BH}, s{S_BH}, 3")
        A(f"s_add_u32 s{S_BH}, s{S_BH}, s{S_A}")
        A(f"s_and_b32 s{S_TB}, s{S_T0}, 1")
        A(f"s_lshl_b32 s{S_TB}, s{S_TB}, 2")
        A(f"s_lshr_b32 s{S_T1}, s{S_T1}, 3")
        A(f"s_add_u32 s{S_TB}, s{S_TB}, s{S_T1}")
    else:
        A(f"s_and_b32 s{S_A}, s{S_T1}, 15")
        A(f"s_lshr_b32 s{S_BH}, s{S_T0}, 2")
        A(f"s_lshl_b32 s{S_BH}, s{S_BH}, 4")
        A(f"s_add_u32 s{S_BH}, s{S_BH}, s{S_A}")
        A(f"s_and_b32 s{S_TB}, s{S_T0}, 3")
        A(f"s_lshl_b32 s{S_TB}, s{S_TB}, 1")
        A(f"s_lshr_b32 s{S_T1}, s{S_T1}, 4")
        A(f"s_add_u32 s{S_TB}, s{S_TB}, s{S_T1}")
    A(f"s_and_b32 s{S_H}, s{S_BH}, 15")
    rm = opt("rot", 3)
    if rm == 3:
        A(f"s_add_u32 s{S_ROT}, s{S_TB}, s{S_T0}")
        A(f"s_cmp_ge_u32 s{S_ROT}, 7")
        A(f"s_cselect_b32 s{S_T1}, 7, 0")
        A(f"s_sub_u32 s{S_ROT}, s{S_ROT}, s{S_T1}")
    elif rm == 5:
        A(f"s_and_b32 s{S_ROT}, s{S_BH}, 3")
        A(f"s_and_b32 s{S_T1}, s{S_TB}, 3")
        A(f"s_lshl_b32 s{S_T1}, s{S_T1}, 1")
        A(f"s_add_u32 s{S_ROT}, s{S_ROT}, s{S_T1}")
        A(f"s_lshr_b32 s{S_T1}, s{S_T0}, 1")
        A(f"s_add_u32 s{S_ROT}, s{S_ROT}, s{S_T1}")
    elif rm == 0:
        A(f"s_lshl_b32 s{S_ROT}, s{S_A}, 1")
        A(f"s_add_u32 s{S_ROT}, s{S_ROT}, s{S_T0}")
    elif rm == 1:
        A(f"s_mov_b32 s{S_ROT}, s{S_T0}")
    elif rm == 2:
        A(f"s_and_b32 s{S_ROT}, s{S_A}, 1")
        A(f"s_mul_i32 s{S_ROT}, s{S_ROT}, 3")
        A(f"s_add_u32 s{S_ROT}, s{S_ROT}, s{S_T0}")
    A(f"s_cmp_ge_u32 s{S_ROT}, 7")
    A(f"s_cselect_b32 s{S_T1}, 7, 0")
    A(f"s_sub_u32 s{S_ROT}, s{S_ROT}, s{S_T1}")
    A("v_lshlrev_b32 v1, 4, v2")
    A("v_and_b32 v3, 31, v2")
    A("v_lshrrev_b32 v4, 5, v2")
    A("v_lshrrev_b32 v5, 2, v3")
    A("v_and_b32 v6, 3, v2")
    A("v_mul_u32_u24 v7, 2688, v5")
    A("v_lshl_add_u32 v7, v6, 4, v7")
    A("v_mov_b32 v8, v7")
    A("v_mul_u32_u24 v9, 896, v4")
    A("v_add3_u32 v7, v7, v9, v9" if False else "v_add_u32 v7, v7, v9")
    A("v_add_u32 v7, 896, v7")
    A("v_lshrrev_b32 v5, 3, v2")
    A("v_mul_u32_u24 v9, 896, v5")
    A("v_and_b32 v5, 7, v2")
    A("v_lshrrev_b32 v11, 4, v2")
    A("v_xor_b32 v5, v5, v11")
    A("v_xor_b32 v11, 4, v5")
    A("v_lshl_add_u32 v10, v11, 4, v9")
    A("v_lshl_add_u32 v9, v5, 4, v9")
    A("v_lshlrev_b32 v225, 2, v3")
    A(f"s_lshl_b32 s{S_LW}, s{S_W}, 12")
    A(f"s_lshl_b32 s{S_TT}, s{S_TB}, 3")
    A(f"s_add_u32 s{S_TT}, s{S_TT}, s{S_W}")
    A(f"s_mul_i32 s{S_XOFF}, s{S_TT}, 28672")
    A(f"s_add_u32 s{S_T4}, s{S_XOFF}, 896")
    A(f"s_lshl_b32 s{S_T1}, s{S_ROT}, 7")
    A(f"s_add_u32 s{S_XOFF}, s{S_XOFF}, s{S_T1}")
    A(f"s_lshl_b32 s{S_FL}, s{S_BH}, 7")
    A(f"s_add_u32 s{S_FL}, s{S_FL}, {FL_OFF}")
    A(f"s_mov_b32 s{S_POLL}, 0")
    A(f"s_mul_i32 s{S_T0}, s{S_H}, 56")
    A(f"s_mul_i32 s{S_WOFF}, s{S_W}, 21504")
    A(f"s_add_u32 s{S_WOFF}, s{S_WOFF}, s{S_T0}")
    A(f"s_add_u32 s{S_T3}, s{S_WOFF}, {7*172032}")
    A(f"s_mul_i32 s{S_T1}, s{S_ROT}, 172032")
    A(f"s_add_u32 s{S_WOFF}, s{S_WOFF}, s{S_T1}")
    A(f"s_lshl_b32 s{S_T2}, s{S_W}, 9")
    A(f"s_cmp_ge_u32 s{S_BH}, 16")
    A("s_waitcnt lgkmcnt(0)")
    A("s_cselect_b32 s6, s8, s6")
    A("s_cselect_b32 s7, s9, s7")
    A.stamp()
    srd(A, 12, 4, 1835008)
    srd(A, 16, 6, 1204224)
    srd(A, 24, 30, WS_USED)

    XB = 88
    AK, AV, AQ = 16, 32, 48
    WF = [64, 76]

    def dma_x(c):
        for i in range(4):
            A(f"s_add_u32 m0, s{S_LW}, {(c%3)*32768 + i*1024}")
            if i == 0:
                A("s_nop 0")
                A(f"buffer_load_dwordx4 v9, s[12:15], s{S_XOFF} offen lds")
            else:
                A(f"s_add_u32 s{S_T1}, s{S_XOFF}, {i*7168}")
                A(f"buffer_load_dwordx4 v{9 + (i&1)}, s[12:15], s{S_T1} offen lds")
        A(f"s_add_u32 s{S_XOFF}, s{S_XOFF}, 128")
        A(f"s_cmp_ge_u32 s{S_XOFF}, s{S_T4}")
        A(f"s_cselect_b32 s{S_T1}, 896, 0")
        A(f"s_sub_u32 s{S_XOFF}, s{S_XOFF}, s{S_T1}")

    def dma_x_piece(c, i):
        A(f"s_add_u32 m0, s{S_LW}, {(c%3)*32768 + i*1024}")
        if i == 0:
            A("s_nop 0")
            A(f"buffer_load_dwordx4 v9, s[12:15], s{S_XOFF} offen lds")
        else:
            A(f"s_add_u32 s{S_T1}, s{S_XOFF}, {i*7168}")
            A(f"buffer_load_dwordx4 v{9 + (i&1)}, s[12:15], s{S_T1} offen lds")
        if i == 3:
            A(f"s_add_u32 s{S_XOFF}, s{S_XOFF}, 128")
            A(f"s_cmp_ge_u32 s{S_XOFF}, s{S_T4}")
            A(f"s_cselect_b32 s{S_T1}, 896, 0")
            A(f"s_sub_u32 s{S_XOFF}, s{S_XOFF}, s{S_T1}")

    def read_x(c):
        for u in range(4):
            if c % 3 < 2:
                A(f"ds_read_b128 {vr(XB+16*c+4*u,4)}, v{200+u} offset:{(c%3)*32768}")
            else:
                A(f"ds_read_b128 {vr(XB+16*c+4*u,4)}, v{241+u} offset:32768")

    def hx(c, vm):
        A(f"s_waitcnt vmcnt({vm})")
        read_x(c)
        if c + 2 < 7:
            A("s_waitcnt lgkmcnt(0)")
            dma_x(c + 2)

    def late_setup():
        srd(A, 56, 28, 256)
        A(f"s_lshl_b32 s{S_T1}, s{S_BH}, 18")
        A(f"s_add_u32 s20, s30, s{S_T1}")
        A("s_addc_u32 s21, s31, 0")
        A("s_mov_b32 s22, 262144")
        A("s_mov_b32 s23, 0x00020000")
        A(f"s_lshl_b32 s63, s{S_BH}, 3")
        A("v_bfe_u32 v5, v3, 1, 3")
        A("v_lshlrev_b32 v11, 2, v4")
        A("v_xor_b32 v5, v5, v11")
        A("v_lshlrev_b32 v11, 7, v3")
        A(f"v_add_u32 v11, s{S_LW}, v11")
        for u in range(4):
            A(f"v_xor_b32 v12, {u}, v5")
            A(f"v_lshl_add_u32 v{200+u}, v12, 4, v11")
        for u in range(4):
            A(f"v_add_u32 v{241+u}, 32768, v{200+u}")
        A("v_bfe_u32 v15, v2, 2, 2")
        A("v_lshlrev_b32 v14, 6, v15")
        A("v_bfe_u32 v15, v2, 4, 1")
        A("v_lshl_add_u32 v14, v15, 5, v14")
        A("v_lshl_add_u32 v14, v6, 3, v14")
        A("v_lshl_add_u32 v15, v4, 11, v14")
        A(f"v_add_u32 v15, {QIMG}, v15")
        A("v_lshl_add_u32 v14, v4, 12, v14")
        A(f"v_add_u32 v14, {KVR}, v14")
        A(f"s_lshr_b32 s{S_KH}, s{S_W}, 2")
        A(f"s_and_b32 s{S_QP}, s{S_W}, 3")
        A(f"s_cmp_ge_u32 s{S_BH}, 16")
        A(f"s_cselect_b32 s{S_GS}, -1.0, 1.0")
        A(f"s_cselect_b32 s{S_GO}, 1.0, 0")
        for r in range(16, 64):
            A(f"v_mov_b32 v{r}, 0")
        A("v_mov_b32 v207, 0")
        A(f"v_mov_b32 v5, {CNT_ADDR}")
        A("ds_write_b32 v5, v207")
        A("ds_write_b32 v5, v207 offset:64")
        srd(A, 52, 10, 896)
        A("v_lshrrev_b32 v12, 3, v2")
        A("v_min_u32 v12, 6, v12")
        A("v_and_b32 v204, 7, v2")
        A("v_lshlrev_b32 v13, 12, v12")
        A("v_lshl_add_u32 v13, v204, 6, v13")
        A(f"s_add_u32 s{S_T1}, s{S_T2}, {QIMG + 56}")
        A(f"v_add_u32 v13, s{S_T1}, v13")
        A(f"v_add_u32 v12, s{S_ROT}, v12")
        A("v_subrev_u32 v11, 7, v12")
        A("v_min_u32 v12, v12, v11")
        A("v_lshl_add_u32 v12, v12, 6, v204")
        A(f"s_lshl_b32 s{S_T1}, s{S_W}, 3")
        A(f"v_add_u32 v12, s{S_T1}, v12")
        A("v_lshlrev_b32 v12, 1, v12")
        A("buffer_load_ushort v206, v12, s[52:55], 0 offen")
        A("ds_write_b32 v5, v207 offset:68")
        A(f"s_lshr_b32 s{S_CB}, s2, 5")
        A(f"s_min_u32 s{S_CB}, s{S_CB}, 6")
        A(f"s_and_b32 s{S_QP}, s2, 7")
        A(f"s_lshl_b32 s{S_QP}, s{S_QP}, 2")
        A(f"s_bfe_u32 s{S_T1}, s2, 0x20003")
        A(f"s_add_u32 s{S_QP}, s{S_QP}, s{S_T1}")
        A(f"s_lshl_b32 s{S_QC}, s{S_QP}, 1")
        A(f"s_and_b32 s{S_T1}, s{S_W}, 1")
        A(f"s_add_u32 s{S_QC}, s{S_QC}, s{S_T1}")
        A(f"s_lshr_b32 s{S_KQ}, s{S_W}, 1")
        A(f"s_lshl_b32 s{S_T1}, s{S_QP}, 8")
        A(f"v_lshl_add_u32 v239, v2, 2, s{S_T1}")
        A("ds_write_b64 v5, v[16:17] offset:80")
        A(f"s_mov_b32 s{S_T1}, s{S_TT}")
        A(f"s_lshl_b32 s64, s{S_T1}, 16")
        A(f"s_lshl_b32 s11, s{S_BH}, 11")
        A(f"s_add_u32 s64, s64, s11")
        A(f"s_add_u32 s64, s64, {OF_OFF}")
        A(f"s_lshl_b32 s{S_T1}, s{S_T1}, 7")
        A(f"s_lshl_b32 s11, s{S_BH}, 2")
        A(f"s_add_u32 s{S_T1}, s{S_T1}, s11")
        A(f"v_mov_b32 v234, s{S_T1}")
        A(f"s_mov_b32 s11, {FO_OFF}")
        A(f"s_cmp_lg_u32 s{S_W}, s{S_POLL}")
        A("s_cbranch_scc1 L_ka_nosnap3")
        A("buffer_load_dword v240, v239, s[24:27], s11 offen sc1")
        A("L_ka_nosnap3:")
        A("s_mov_b64 exec, 1")
        A("buffer_load_dword v233, v234, s[24:27], s11 offen sc1")
        if opt("pt", 0):
            A(f"s_cmp_lg_u32 s{S_W}, 2")
            A("s_cbranch_scc1 L_ka_nopt")
            A("s_load_dwordx2 s[4:5], s[0:1], 16")
            A("s_load_dwordx2 s[6:7], s[0:1], 40")
            A("s_load_dwordx2 s[60:61], s[0:1], 56")
            A("v_mov_b32 v228, 0")
            A(f"s_lshl_b32 s{S_T1}, s{S_TT}, 12")
            A(f"buffer_load_dword v229, v228, s[20:23], s{S_T1} offen sc1")
            A("buffer_load_dword v229, v228, s[24:27], s64 offen sc1")
            A(f"s_lshl_b32 s{S_T1}, s{S_QC}, 16")
            A(f"s_add_u32 s{S_T1}, s{S_T1}, {OF_OFF}")
            A(f"buffer_load_dword v229, v228, s[24:27], s{S_T1} offen sc1")
            A("buffer_load_dword v229, v228, s[56:59], 0 offen sc1")
            A("s_waitcnt lgkmcnt(0)")
            A("global_load_dword v229, v228, s[4:5]")
            A("global_load_dword v229, v228, s[6:7]")
            A("global_load_dword v229, v228, s[60:61]")
            A("L_ka_nopt:")
        A("s_mov_b64 exec, -1")

    def trreads(c, u, st, slices):
        base = "v14" if c < 4 else "v15"
        cc = c if c < 4 else c - 4
        n = 0
        for t in slices:
            for tp in range(2):
                off = (8 * cc + u) * 1536 + t * 512 + tp * 256
                A(f"ds_read_b64_tr_b16 {vr(WF[st]+4*t+2*tp,2)}, {base} offset:{off}")
                n += 1
        return n

    def mm(c, u, st, slices):
        xf = XB + 16 * c + 4 * u
        for t in slices:
            if t == 0:
                A(mfma(AQ, WF[st] + 0, xf, AQ))
            elif t == 1:
                A(mfma(AK, WF[st] + 4, xf, AK))
            else:
                A(mfma(AV, xf, WF[st] + 8, AV))

    def chunks_mfma(cs, slices=(1, 2)):
        steps = [(c, u) for c in cs for u in range(4)]
        trreads(*steps[0], 0, slices)
        for i, (c, u) in enumerate(steps):
            if i + 1 < len(steps):
                n = trreads(*steps[i + 1], (i + 1) % 2, slices)
                A(f"s_waitcnt lgkmcnt({n})")
            else:
                A("s_waitcnt lgkmcnt(0)")
            mm(c, u, i % 2, slices)

    def adv_w():
        A(f"s_add_u32 s{S_WOFF}, s{S_WOFF}, 172032")
        A(f"s_cmp_ge_u32 s{S_WOFF}, s{S_T3}")
        A(f"s_cselect_b32 s{S_T1}, {7*172032}, 0")
        A(f"s_sub_u32 s{S_WOFF}, s{S_WOFF}, s{S_T1}")

    q = []

    def dma_wkv(c):
        A(f"s_lshl_b32 s{S_T1}, s{S_T2}, 1")
        A(f"s_add_u32 m0, s{S_T1}, {KVR + (c%4)*8192}")
        A("s_nop 0" if not opt("exp_now", 0) else "s_mov_b64 exec, 1")
        A(f"buffer_load_dwordx4 v7, s[16:19], s{S_WOFF} offen lds")
        if opt("exp_now", 0):
            A("s_mov_b64 exec, -1")
        adv_w()
        q.append(("W", c))

    def dma_wq(c):
        A(f"s_add_u32 m0, s{S_T2}, {QIMG + c*4096}")
        A("s_mov_b32 exec_hi, 0")
        A(f"buffer_load_dwordx4 v8, s[16:19], s{S_WOFF} offen lds")
        A("s_mov_b32 exec_hi, -1")
        adv_w()
        q.append(("Q", c))

    def dma_xq(c):
        dma_x(c)
        q.extend([("X", c)] * 4)

    def younger(*tags):
        last = max(i for i, t in enumerate(q) if t in tags)
        return len(q) - 1 - last

    A(f"s_cmp_lg_u32 s{S_W}, s{S_POLL}")
    A("s_cbranch_scc1 L_ka_nosnap")
    A(f"buffer_load_dword v{VSNAP}, v225, s[24:27], s{S_FL} offen sc1")
    A("L_ka_nosnap:")
    WLA = opt("wla", 3)
    XD = 3
    WLA = XD
    IB = opt("ib", 2)
    XI = opt("xi", 3)
    for c in range(XI):
        dma_wkv(c)
        dma_xq(c)
        if IB == 1 and c < XI - 1:
            A("s_barrier")
        if IB == 2 and c == 0:
            late_setup()
            q.append(("G", 0))
            q.append(("G", 1))
            A("s_barrier")
        if IB == 3 and c == 0:
            A("s_barrier")
    if IB != 2:
        late_setup()
        q.append(("G", 0))
        q.append(("G", 1))
    A.stamp()
    IDX = 5
    QF = [64, 72]
    O = [16, 32]
    S = [112, 128, 144, 160]
    KF = [176, 184]
    VF = [192, 200, 208, 216]
    T = 48
    VB = 6
    GB = [12, 13]
    PK, PV = 208, 216
    lq = []

    def lwait(tag):
        last = max(i for i, t in enumerate(lq) if t == tag)
        A(f"s_waitcnt lgkmcnt({min(15, len(lq) - 1 - last)})")

    def kvread(i):
        c, u = divmod(i, 4)
        for t in (1, 2):
            for tp in range(2):
                A(f"ds_read_b64_tr_b16 {vr(64+8*(i%3)+4*(t-1)+2*tp,2)}, v14 offset:{(c%4)*8192 + u*1024 + (t-1)*512 + tp*256}")
                lq.append(("T", i))

    def rx(c):
        read_x(c)
        lq.extend([("X", c)] * 4)

    def arrive(c):
        tags = [("X", c), ("W", c)] + ([("Q", 3)] if c == 6 and QE else [])
        assert q.count(("X", c)) == 4 and q.count(("W", c)) == 1
        A(f"s_waitcnt vmcnt({younger(*tags)}) lgkmcnt(0)")
        lq.clear()
        if c == 6 and QE:
            A("s_mov_b32 exec_hi, 0")
            A("ds_write_b16 v13, v206")
            A("s_mov_b32 exec_hi, -1")
            A("s_waitcnt lgkmcnt(0)")
            lq.clear()
        A("s_barrier")
        rx(c)

    pend = []

    def xop(c, i):
        def f():
            dma_x_piece(c, i)
            q.append(("X", c))
        return f

    for c in range(XI, 7):
        e = -1 if c < 3 else (-1 if c == 3 else 4 * (c - 3))
        ew = -1 if c < 4 else 4 * (c - 3)
        pend.append((ew, (lambda cc: (lambda: dma_wkv(cc)))(c)))
        for i in range(4):
            pend.append((e, xop(c, i)))
    for j in range(7):
        pend.append((4 * opt("qat", 4), (lambda jj: (lambda: dma_wq(jj)))(j)))
    RATE = opt("rate", 2)

    def drain(step, n):
        while n > 0 and pend and pend[0][0] <= step:
            pend.pop(0)[1]()
            n -= 1

    QE = 0
    A(f"s_waitcnt vmcnt({younger(('X', 0), ('W', 0))})")
    A(f"s_cmp_lg_u32 s{S_W}, s{S_POLL}")
    A("s_cbranch_scc1 L_ka_nosnap2")
    A(f"v_add_u32 v11, {SNAPL}, v225")
    A(f"ds_write_b32 v11, v{VSNAP}")
    A("L_ka_nosnap2:")
    read_x(0)
    A("s_waitcnt lgkmcnt(0)")
    A.stamp()
    A("s_barrier")
    kvread(0)
    kvread(1)
    for i in range(28):
        c, u = divmod(i, 4)
        if u == 2 and c < 6:
            arrive(c + 1)
            if c == 3 and opt("st4", 0):
                A.stamp()
                lq.clear()
                lq.extend([("T", i)] * 1 + [("T", i + 1)] * 0)
        if i + 2 < 28:
            kvread(i + 2)
        if ("T", i) in lq:
            lwait(("T", i))
        xf = XB + 16 * c + 4 * u
        A(mfma(AK, 64 + 8 * (i % 3), xf, AK))
        A(mfma(AV, xf, 64 + 8 * (i % 3) + 4, AV))
        drain(i, RATE)
    assert not pend
    A("s_load_dwordx2 s[4:5], s[0:1], 16")
    A("s_load_dwordx2 s[6:7], s[0:1], 40")
    A("s_load_dwordx2 s[28:29], s[0:1], 56")
    A.stamp()

    def publish():
        A("s_waitcnt vmcnt(0)")
        A("v_mov_b32 v9, 1")
        A(f"s_lshl_b32 s{S_T2}, s{S_TB}, 2")
        A(f"v_mov_b32 v11, s{S_T2}")
        A("s_mov_b64 exec, 1")
        A("ds_add_rtn_u32 v10, v5, v9")
        A(f"v_add_u32 v12, {SNAPL}, v11")
        A("ds_read_b32 v9, v12")
        A("s_waitcnt lgkmcnt(0)")
        A(f"v_readfirstlane_b32 s{S_T1}, v10")
        A("v_add_u32 v9, 1, v9")
        A("s_nop 0")
        A(f"s_cmp_lg_u32 s{S_T1}, 7")
        A("s_cbranch_scc1 L_ka_nopub")
        A(f"buffer_store_dword v9, v11, s[24:27], s{S_FL} offen sc1")
        A("L_ka_nopub:")
        A("s_mov_b64 exec, -1")

    qsteps = [(c, u) for c in range(7) for u in range(4)]
    fill = {}
    fill[0] = ["v_and_b32 v6, 0x13, v3", "v_bfe_u32 v7, v3, 2, 1", "v_lshl_or_b32 v6, v7, 3, v6",
               "v_bfe_u32 v7, v3, 3, 1", "v_lshl_or_b32 v6, v7, 2, v6", "v_lshl_add_u32 v6, v4, 5, v6",
               "v_lshlrev_b32 v6, 4, v6", f"v_add_u32 v7, s{S_LW}, v6", f"v_add_u32 v8, s{S_LW}, v1",
               f"s_lshl_b32 s{S_T0}, s{S_TT}, 12"]
    ZP = opt("zp", 1)
    fill[1] = ["s_mov_b32 exec_lo, 0", f"v_mov_b32 v{AK+12}, 1.0"] + \
              ([f"v_mov_b32 v{AK+r}, 0" for r in (13, 14, 15)] if ZP else []) + ["s_mov_b32 exec_lo, -1"] + \
              [f"v_cvt_pk_bf16_f32 v{PK+i}, v{AK+2*i}, v{AK+2*i+1}" for i in range(8)] + \
              [f"buffer_store_dwordx4 {vr(PK,4)}, v6, s[20:23], s{S_T0} offen sc1",
               f"buffer_store_dwordx4 {vr(PK+4,4)}, v6, s[20:23], s{S_T0} offen offset:1024 sc1"]
    fill[2] = [f"v_cvt_pk_bf16_f32 v{PV+i}, v{AV+2*i}, v{AV+2*i+1}" for i in range(8)]
    fill[3] = ["s_mov_b32 exec_lo, 0x10000000", "s_mov_b32 exec_hi, 0x10000000"] + \
              [f"v_mov_b32 v{PV+i}, 0x3f803f80" for i in range(8)] + \
              ((["s_mov_b32 exec_lo, 0xe0000000", "s_mov_b32 exec_hi, 0xe0000000"] +
                [f"v_mov_b32 v{PV+i}, 0" for i in range(8)]) if ZP else []) + ["s_mov_b64 exec, -1"] + \
              [f"buffer_store_dwordx4 {vr(PV,4)}, v1, s[20:23], s{S_T0} offen offset:2048 sc1",
               f"buffer_store_dwordx4 {vr(PV+4,4)}, v1, s[20:23], s{S_T0} offen offset:3072 sc1"]
    fill[4] = [f"ds_write_b128 v7, {vr(PK,4)}", f"ds_write_b128 v7, {vr(PK+4,4)} offset:1024"]
    fill[5] = [f"ds_write_b128 v8, {vr(PV,4)} offset:2048", f"ds_write_b128 v8, {vr(PV+4,4)} offset:3072"]
    zl = [O[0] + r for r in range(16)] + [O[1] + r for r in range(16)]
    for k in range(8):
        fill[6 + k] = [f"v_mov_b32 v{r}, 0" for r in zl[4 * k:4 * k + 4]]
    fill[17] = ["v_lshrrev_b32 v236, 2, v2", "v_mul_u32_u24 v236, 896, v236", "v_and_b32 v237, 3, v2",
                "v_lshl_add_u32 v236, v237, 4, v236", "v_add_u32 v237, 64, v236"]
    fill[25] = [f"s_xor_b32 s{S_T3}, s{S_LW}, 16384", f"v_add_u32 v7, s{S_T3}, v1",
                f"s_lshl_b32 s{S_T3}, s{S_KH}, 14", f"v_add_u32 v10, s{S_T3}, v1", f"v_mov_b32 v{VB}, v10",
                f"v_mov_b32 v{IDX}, 0xdddd"] + (["v_mov_b32 v232, 0"] if STAMP else [])
    fill[26] = [f"v_mov_b32 v{VF[3]+r}, 0" for r in range(4, 8)] + \
               [f"s_mov_b32 s{S_FLAGS}, 0", f"s_mov_b32 s{S_NEXT}, 1", f"s_mov_b32 s{S_REM}, 0xff",
                f"s_bitset0_b32 s{S_REM}, s{S_TB}",
                f"s_mov_b32 s{S_T3}, 0x{f32bits(QSCALE):08x}", f"s_mov_b32 s{S_T4}, 0x{f32bits(-LOG2E):08x}"]
    PUB_AT = opt("pubat", 6)
    BAR_AT = opt("barat", 10)
    POLL_AT = opt("pollat", 27)
    BAR_AT = opt("barat", 20)
    QD = opt("qd", 4)

    def qread(i):
        c, u = qsteps[i]
        for tp in range(2):
            A(f"ds_read_b64_tr_b16 {vr(64+4*(i%6)+2*tp,2)}, v15 offset:{c*4096 + u*512 + tp*256}")

    A("s_nop 1")
    for k in range(6):
        for ins in fill.pop(k):
            A(ins)
    A("s_waitcnt vmcnt(4)")
    A("s_mov_b32 exec_hi, 0x00ffffff")
    A("ds_write_b16 v13, v206")
    A("s_mov_b32 exec_hi, -1")
    A("s_waitcnt lgkmcnt(0)")
    srd(A, 12, 4, 401408)
    srd(A, 16, 6, 401408)
    srd(A, 52, 28, 1835008)
    A("s_barrier")
    A.stamp()
    for i in range(QD):
        qread(i)
    for i, (c, u) in enumerate(qsteps):
        if i == PUB_AT:
            publish()
        if i == POLL_AT:
            A(f"s_cmp_lg_u32 s{S_W}, s{S_POLL}")
            A("s_cbranch_scc1 L_ka_nopoll")
            A(f"buffer_load_dword v227, v225, s[24:27], s{S_FL} offen sc1")
            A("L_ka_nopoll:")
        seg_end = len(qsteps) - 1
        if i + QD <= seg_end:
            qread(i + QD)
        A(f"s_waitcnt lgkmcnt({2*(min(seg_end, i+QD)-i)})")
        A(mfma(AQ, 64 + 4 * (i % 6), XB + 16 * c + 4 * u, AQ))
        for ins in fill.get(i, []):
            A(ins)
    A.stamp()

    def rtile(q_, I):
        A(f"ds_read_b128 {vr(KF[I%2],4)}, v{VB} offset:{q_*4096}")
        A(f"ds_read_b128 {vr(KF[I%2]+4,4)}, v{VB} offset:{q_*4096+1024}")
        A(f"ds_read_b128 {vr(VF[I%4],4)}, v{VB} offset:{q_*4096+2048}")
        A(f"ds_read_b128 {vr(VF[I%4]+4,4)}, v{VB} offset:{q_*4096+3072}")

    rtile(0, 0)
    rtile(1, 1)
    for r in range(8, 16):
        A(f"v_mov_b32 v{S[3]+r}, 0")
    A(f"v_mul_f32 v12, s{S_T4}, v{AQ+12}")
    A("v_exp_f32 v12, v12")
    for r in range(16):
        A(f"v_mul_f32 v{AQ+r}, s{S_T3}, v{AQ+r}")
    for i in range(8):
        A(f"v_cvt_pk_bf16_f32 v{QF[1]+i}, v{AQ+2*i}, v{AQ+2*i+1}")
    A("s_mov_b32 exec_lo, 0")
    A(f"v_mov_b32 v{QF[1]+6}, 0")
    A(f"v_mov_b32 v{QF[1]+7}, 0")
    A("s_mov_b32 exec_lo, -1")
    A("s_waitcnt lgkmcnt(6)")
    A(mfma(S[1], KF[0], QF[1], None))
    A(mfma(S[1], KF[0] + 4, QF[1] + 4, S[1]))
    A(f"ds_write_b128 v8, {vr(QF[1],4)} offset:32768")
    A("v_add_f32 v12, 1.0, v12")
    A("v_rcp_f32 v12, v12")
    A(f"s_cmp_lg_u32 s{S_W}, s{S_POLL}")
    A("s_cbranch_scc1 L_ka_nofw")
    A("s_waitcnt vmcnt(0)")
    A(f"v_cmp_ne_u32 vcc, v227, v{VSNAP}")
    A(f"v_mov_b32 v11, {FLAGW}")
    A("s_nop 4")
    A(f"s_and_b32 s{S_FLAGS}, vcc_lo, 0xff")
    A(f"v_mov_b32 v9, s{S_FLAGS}")
    A("ds_write_b32 v11, v9")
    A("L_ka_nofw:")
    A(f"v_mul_f32 v12, s{S_GS}, v12")
    A(f"v_add_f32 v12, s{S_GO}, v12")
    A(f"v_mov_b32 v{GB[1]}, v12")
    A("s_nop 1")
    A(f"v_permlane32_swap_b32 v12, v{GB[1]}")
    A("s_nop 3")
    s0 = S[1]
    t = T
    A(f"v_max3_f32 v{t}, v{s0}, v{s0+1}, v{s0+2}")
    A(f"v_max3_f32 v{t+1}, v{s0+3}, v{s0+4}, v{s0+5}")
    A(f"v_max3_f32 v{t+2}, v{s0+6}, v{s0+7}, v{s0+8}")
    A(f"v_max3_f32 v{t+3}, v{s0+9}, v{s0+10}, v{s0+11}")
    A(f"v_max3_f32 v{t+4}, v{s0+12}, v{s0+13}, v{s0+14}")
    A(f"v_max3_f32 v{t}, v{t}, v{t+1}, v{s0+15}")
    A(f"v_max3_f32 v{t+2}, v{t+2}, v{t+3}, v{t+4}")
    A(f"v_max_f32 v{t}, v{t}, v{t+2}")
    A(f"v_mov_b32 v{t+1}, v{t}")
    A("s_nop 1")
    A(f"v_permlane32_swap_b32 v{t}, v{t+1}")
    A("s_nop 1")
    A(f"v_max_f32 v{t}, v{t}, v{t+1}")
    A(f"v_ashrrev_i32 v{t+1}, 31, v{t}")
    A(f"v_and_b32 v{t+1}, 0xffff, v{t+1}")
    A(f"v_add_u32 v{t}, v{t}, v{t+1}")
    A(f"v_lshrrev_b32 v{t}, 16, v{t}")
    A("s_mov_b32 exec_lo, 0")
    A(f"v_xor_b32 v{QF[1]+6}, 0x8000, v{t}")
    A("s_mov_b32 exec_lo, -1")
    A(f"ds_write_b128 v8, {vr(QF[1]+4,4)} offset:{32768+1024}")
    A("s_nop 0")
    A(mfma(S[1], KF[0], QF[1], None))
    A(mfma(S[1], KF[0] + 4, QF[1] + 4, S[1]))
    A("s_waitcnt lgkmcnt(0)")
    A("s_barrier")
    A.stamp()
    A(f"ds_read_b128 {vr(QF[0],4)}, v7 offset:{32768}")
    A(f"ds_read_b128 {vr(QF[0]+4,4)}, v7 offset:{32768+1024}")

    def dma_block():
        lbl = f"L_ka_fl{len(A.lines)}"
        A(f"s_and_b32 s{S_T0}, s{S_FLAGS}, s{S_REM}")
        A(f"s_cbranch_scc1 {lbl}_ok")
        A(f"s_mov_b32 s{S_SPIN}, 0")
        A(f"v_mov_b32 v8, {FLAGW}")
        A(f"{lbl}_spin:")
        A(f"s_cmp_lg_u32 s{S_W}, s{S_POLL}")
        A(f"s_cbranch_scc1 {lbl}_lds")
        A(f"buffer_load_dword v11, v225, s[24:27], s{S_FL} offen sc1")
        A("v_mov_b32 v9, 0")
        A(f"s_and_b32 s{S_T1}, s{S_SPIN}, 7")
        A(f"s_cmp_lg_u32 s{S_T1}, 7")
        A(f"s_cbranch_scc1 {lbl}_nodbg")
        A("buffer_load_dword v9, v9, s[56:59], s63 offen sc1")
        A(f"{lbl}_nodbg:")
        A("s_waitcnt vmcnt(0)")
        A(f"v_cmp_ne_u32 vcc, v11, v{VSNAP}")
        A("s_nop 4")
        A(f"s_or_b32 s{S_T1}, vcc_lo, s{S_FLAGS}")
        A(f"v_or_b32 v11, s{S_T1}, v9")
        A("v_and_b32 v11, 0xff, v11")
        A("ds_write_b32 v8, v11")
        A(f"s_add_u32 s{S_SPIN}, s{S_SPIN}, 16")
        A(f"s_branch {lbl}_chk")
        A(f"{lbl}_lds:")
        A("ds_read_b32 v11, v8")
        A("s_waitcnt lgkmcnt(0)")
        A(f"{lbl}_chk:")
        A(f"v_readfirstlane_b32 s{S_FLAGS}, v11")
        A(f"s_add_u32 s{S_SPIN}, s{S_SPIN}, 1")
        A(f"s_mov_b32 s{S_T0}, s{S_REM}")
        A(f"s_cmp_ge_u32 s{S_SPIN}, 0x1000000")
        A(f"s_cbranch_scc1 {lbl}_ok")
        A(f"s_and_b32 s{S_T0}, s{S_FLAGS}, s{S_REM}")
        A(f"s_cbranch_scc1 {lbl}_ok")
        A(f"s_sleep {opt('sleep', 1)}")
        A(f"s_branch {lbl}_spin")
        A(f"{lbl}_ok:")
        A(f"s_lshl_b32 s{S_T1}, s{S_T0}, 8")
        A(f"s_or_b32 s{S_T0}, s{S_T0}, s{S_T1}")
        A(f"s_lshr_b32 s{S_T0}, s{S_T0}, s{S_TB}")
        A(f"s_ff1_i32_b32 s{S_T0}, s{S_T0}")
        A(f"s_add_u32 s{S_T0}, s{S_T0}, s{S_TB}")
        A(f"s_and_b32 s{S_T0}, s{S_T0}, 7")
        A(f"s_bitset0_b32 s{S_REM}, s{S_T0}")
        A(f"s_lshl_b32 s{S_T0}, s{S_T0}, 15")
        A(f"s_add_u32 s{S_T0}, s{S_T0}, s{S_LW}")
        tab = sum(sl_ << (4 * j) for j, sl_ in enumerate(SLOT_OF_BLOCK))
        A(f"s_lshl_b32 s{S_T1}, s{S_NEXT}, 2")
        A(f"s_lshr_b32 s{S_T1}, 0x{tab:08x}, s{S_T1}")
        A(f"s_and_b32 s{S_T1}, s{S_T1}, 15")
        A(f"s_lshl_b32 s{S_T1}, s{S_T1}, 15")
        A(f"s_add_u32 m0, s{S_T1}, s{S_LW}")
        A(f"s_add_u32 s{S_NEXT}, s{S_NEXT}, 1")
        for i in range(4):
            A(f"buffer_load_dwordx4 v1, s[20:23], s{S_T0} offen offset:{i*1024} sc1 lds")

    dma_block()
    A("s_waitcnt lgkmcnt(0)")
    A(mfma(S[0], KF[0], QF[0], None))
    A(mfma(S[0], KF[0] + 4, QF[0] + 4, S[0]))
    D2 = opt("d2", 1)
    if not D2:
        dma_block()
    else:
        A("s_nop 7")
        A("s_nop 1")
    CN = [None, None]

    PRIO = opt("prio", 1)

    def unit(I, s, q=None, do_qk=True, first=False):
        u = 2 * I + s
        sc = S[u % 4]
        sp = S[(u - 1) % 4]
        sn = S[(u + 2) % 4]
        E = lambda r: A(f"v_exp_f32 v{sc+r}, v{sc+r}")
        if s == 0:
            A("s_waitcnt lgkmcnt(0)")
        E(0); E(1)
        if s == 0:
            A(smfmac(O[1], VF[(I - 1) % 4] + 4, sp + 8, IDX))
        else:
            A(smfmac(O[0], VF[I % 4] + 4, sp + 8, IDX))
        if s == 0 and q is not None:
            A(f"ds_read_b128 {vr(KF[I%2],4)}, v{VB} offset:{q*4096}")
            A(f"ds_read_b128 {vr(KF[I%2]+4,4)}, v{VB} offset:{q*4096+1024}")
        E(2); E(3); E(4); E(5)
        if do_qk:
            A(mfma(sn, KF[(I + 1) % 2], QF[s], CN[s]))
        if s == 0 and q is not None:
            A(f"ds_read_b128 {vr(VF[(I+2)%4],4)}, v{VB} offset:{q*4096+2048}")
            A(f"ds_read_b128 {vr(VF[(I+2)%4]+4,4)}, v{VB} offset:{q*4096+3072}")
        E(6); E(7); E(8); E(9)
        if do_qk:
            A(mfma(sn, KF[(I + 1) % 2] + 4, QF[s] + 4, sn))
        E(10); E(11); E(12); E(13)
        A(smfmac(O[s], VF[I % 4], sc, IDX))
        E(14); E(15)

    def iteration(I, q, do_qk=True, prio=None, mid=None, mid2=None):
        if opt("al", 0) >= 2:
            A(".p2align 3")
        if PRIO and prio is not None:
            A(f"s_setprio {prio}")
        unit(I, 0, q, do_qk)
        if mid:
            mid()
            if opt("al", 0) >= 2:
                A(".p2align 3")
        unit(I, 1, q, do_qk)

    tab = sum(sl_ << (4 * j) for j, sl_ in enumerate(SLOT_OF_BLOCK))

    def next_vb():
        A(f"s_lshl_b32 s{S_T1}, s{S_JB}, 2")
        A(f"s_lshr_b32 s{S_T1}, 0x{tab >> 4:08x}, s{S_T1}")
        A(f"s_and_b32 s{S_T1}, s{S_T1}, 15")
        A(f"s_lshl_b32 s{S_T1}, s{S_T1}, 15")
        A(f"v_add_u32 v{VB}, s{S_T1}, v10")
        A(f"s_add_u32 s{S_JB}, s{S_JB}, 1")
        if opt("al", 0):
            A("s_nop 0")

    WO_REGION = [131072, 0, 65536, 32768]

    def wo_stage(kq, warm=False):
        srdn = "s[12:15]" if kq < 2 else "s[16:19]"
        A(f"s_min_u32 s{S_T0}, s{S_W}, 6")
        A(f"s_mul_i32 s{S_T1}, s{S_T0}, {2*14336}")
        A(f"s_lshl_b32 s{S_T2}, s{S_CB}, 7")
        A(f"s_add_u32 s{S_T1}, s{S_T1}, s{S_T2}")
        if kq & 1:
            A(f"s_add_u32 s{S_T1}, s{S_T1}, 200704")
        A(f"s_lshl_b32 s{S_T0}, s{S_T0}, 11")
        for i in range(4):
            if i == 2:
                A(f"s_add_u32 s{S_T1}, s{S_T1}, 14336")
            if warm:
                if i % 2 == 0:
                    A(f"buffer_load_dwordx4 v[228:231], v236, {srdn}, s{S_T1} offen")
            else:
                A(f"s_add_u32 m0, s{S_T0}, {WO_REGION[kq] + (i & 1)*14336 + (i >> 1)*1024}")
                A("s_nop 0")
                A(f"buffer_load_dwordx4 v{236 + (i & 1)}, {srdn}, s{S_T1} offen lds")

    def side_call(kh):
        def f():
            A(f"s_cmp_eq_u32 s{S_KH}, {kh}")
            A("s_cbranch_scc1 L_ka_sidein")
            A(f"L_ka_ret{kh}:")
        return f

    def side_blocks():
        A("L_ka_sidein:")
        A(f"s_cmp_eq_u32 s{S_JB}, 5")
        A("s_cbranch_scc1 L_ka_x4")
        A("L_ka_x4r:")
        A(f"s_cmp_ge_u32 s{S_JB}, 6")
        A("s_cbranch_scc1 L_ka_nodma")
        dma_block()
        A("L_ka_nodma:")
        A(f"s_bitcmp1_b32 0x7e, s{S_JB}")
        A("s_cbranch_scc1 L_ka_side")
        A("L_ka_nodma2:")
        A(f"s_cmp_eq_u32 s{S_KH}, 0")
        A("s_cbranch_scc1 L_ka_ret0")
        A("s_branch L_ka_ret1")
        A("L_ka_x4:")
        A(f"s_cmp_lg_u32 s{S_W}, s{S_POLL}")
        A("s_cbranch_scc1 L_ka_x4r")
        A("v_lshlrev_b32 v235, 2, v2")
        A("buffer_load_dword v235, v235, s[56:59], 0 offen sc1")
        A("s_branch L_ka_x4r")
        A("L_ka_side:")
        for jb in (3, 4, 5, 6):
            A(f"s_cmp_eq_u32 s{S_JB}, {jb}")
            A(f"s_cbranch_scc1 L_ka_s{jb}")
        A(f"s_cmp_lg_u32 s{S_W}, 1")
        A("s_cbranch_scc1 L_ka_nodma2")
        A(f"s_and_b32 s{S_T1}, s{S_TB}, 1")
        A(f"s_add_u32 s{S_T1}, s{S_T1}, 1")
        A(f"s_cmp_lg_u32 s{S_T1}, s{S_JB}")
        A("s_cbranch_scc1 L_ka_nodma2")
        A(f"s_lshl_b32 s{S_T1}, 0x101, s{S_TB}")
        A(f"v_mov_b32 v9, s{S_T1}")
        A("v_mov_b32 v11, 0")
        A("s_mov_b64 exec, 1")
        A("buffer_atomic_or v9, v11, s[56:59], s63 offen sc1")
        A("s_mov_b64 exec, -1")
        A("s_branch L_ka_nodma2")
        A("L_ka_s3:")
        wo_stage(0)
        A("s_branch L_ka_nodma2")
        A("L_ka_s4:")
        wo_stage(3, warm=True)
        A("s_branch L_ka_nodma2")
        A("L_ka_s5:")
        wo_stage(1)
        A("s_branch L_ka_nodma2")
        A("L_ka_s6:")
        wo_stage(2)
        A(f"s_cmp_lg_u32 s{S_W}, s{S_POLL}")
        A("s_cbranch_scc1 L_ka_nodma2")
        A("v_bfe_u32 v235, v235, 8, 8")
        A("v_mov_b32 v9, 0xff")
        A("v_cmp_eq_u32 vcc, v235, v9")
        A(f"v_mov_b32 v9, {CNT_ADDR}")
        A("v_mov_b32 v11, 1")
        A("s_nop 3")
        A(f"s_and_b32 s{S_T0}, vcc_lo, vcc_hi")
        A(f"s_and_b32 s{S_T0}, s{S_T0}, 0x55555555")
        A(f"s_cmp_lg_u32 s{S_T0}, 0x55555555")
        A("s_cbranch_scc1 L_ka_nodma2")
        A(f"ds_write_b32 v9, v11 offset:{REGOK_OFF}")
        A("s_branch L_ka_nodma2")

    A.stamp()
    if DT:
        A("s_memrealtime s[72:73]")
        A("s_waitcnt lgkmcnt(0)")
    A(f"s_mov_b32 s{S_JB}, 0")
    iteration(0, 2, prio=1, mid=dma_block if D2 else None)
    iteration(1, 3, prio=0, mid=next_vb)
    A(".p2align 6")
    A("L_ka_loop:")
    LST = STAMP and opt("lst", 0)
    if LST:
        A("s_memtime s[94:95]")
        A(f"s_mov_b32 m0, s{S_JB}")
        A("s_waitcnt lgkmcnt(0)")
        A(f"v_writelane_b32 v232, s94, m0")
    A(f"s_cmp_ge_u32 s{S_JB}, 7")
    A("s_cbranch_scc1 L_ka_w0")
    A("s_waitcnt vmcnt(4)")
    A("s_barrier")
    A("L_ka_w1:")
    if LST:
        A("s_memtime s[94:95]")
        A(f"s_add_u32 m0, s{S_JB}, 16")
        A("s_waitcnt lgkmcnt(0)")
        A(f"v_writelane_b32 v232, s94, m0")
    p0, p1 = opt("p0", 0), opt("p1", 1)
    mids = [None, None, None]
    if p0 == p1:
        mids[p0] = lambda: (side_call(0)(), side_call(1)())
    else:
        mids[p0] = side_call(0)
        mids[p1] = side_call(1)
    iteration(2, 0, prio=3, mid=mids[0])
    iteration(3, 1, prio=2, mid=mids[1])
    iteration(4, 2, prio=1, mid=mids[2])
    iteration(5, 3, prio=0, mid=next_vb)
    A(f"s_cmp_lt_u32 s{S_JB}, 8")
    A("s_cbranch_scc1 L_ka_loop")

    def tail_addr():
        A(f"s_add_u32 s{S_T0}, s{S_LW}, 98304")
        A(f"v_add_u32 v8, s{S_T0}, v1")
        A(f"s_xor_b32 s{S_T0}, s{S_T0}, 16384")
        A(f"v_add_u32 v9, s{S_T0}, v1")
        A(f"s_mov_b32 s66, 0")

    iteration(30, None, True, prio=1, mid=tail_addr)
    iteration(31, None, False, prio=0)
    for r4 in range(4):
        A(f"ds_write_b128 v8, {vr(O[0]+4*r4,4)} offset:{r4*1024}")
    A(smfmac(O[1], VF[31 % 4] + 4, S[3] + 8, IDX))
    A.stamp()
    if DT:
        A("s_memrealtime s[74:75]")
        A("s_waitcnt lgkmcnt(0)")
    A("s_waitcnt lgkmcnt(0)")
    A("s_barrier")
    for r4 in (3, 0, 1, 2):
        A(f"ds_read_b128 {vr(O[0]+4*r4,4)}, v9 offset:{r4*1024}")
    A(f"v_mov_b32 v235, {CNT_ADDR}")
    A(f"ds_read_b32 v235, v235 offset:{REGOK_OFF}")
    A("s_nop 4")
    A("s_waitcnt lgkmcnt(4)")
    OK_, OO = O[1], O[0]
    F1 = T + 4
    A("L_ka_fin:")
    A(f"v_add_f32 v{T+3}, v{OK_+12}, v{OO+12}")
    A(f"v_mov_b32 v{T+4}, v{T+3}")
    A("s_nop 1")
    A(f"v_permlane32_swap_b32 v{T+3}, v{T+4}")
    A("s_nop 1")
    A(f"v_rcp_f32 v{T+4}, v{T+4}")
    A("s_waitcnt lgkmcnt(0)")
    A(f"v_mul_f32 v{F1}, v{T+4}, v{GB[1]}")
    R = S[1]
    for r in range(16):
        A(f"v_add_f32 v{R+r}, v{OK_+r}, v{OO+r}")
    for r in range(16):
        A(f"v_mul_f32 v{R+r}, v{R+r}, v{F1}")
    for i in range(8):
        A(f"v_cvt_pk_bf16_f32 v{S[0]+i}, v{R+2*i}, v{R+2*i+1}")
    A(f"v_maximum3_f32 v{T+3}, abs(v{R}), abs(v{R+1}), abs(v{R+2})")
    for r in range(3, 15, 2):
        A(f"v_maximum3_f32 v{T+3}, v{T+3}, abs(v{R+r}), abs(v{R+r+1})")
    A(f"v_maximum3_f32 v{T+3}, v{T+3}, abs(v{R+15}), abs(v{R+15})")
    A("s_mov_b32 s65, 0x7f000000")
    A(f"v_cmp_nlt_f32 vcc, v{T+3}, s65")
    A("s_cmp_lg_u32 s66, 0")
    A("s_cbranch_scc1 L_ka_st")
    A("s_nop 2")
    A("s_cmp_lg_u64 vcc, 0")
    A("s_cbranch_scc1 L_ka_slow")
    A("L_ka_st:")
    A("s_mov_b32 exec_lo, 0")
    A(f"v_mov_b32 v{S[0]+6}, 0")
    A(f"v_mov_b32 v{S[0]+7}, 0")
    A("s_mov_b32 exec_lo, -1")
    A(f"buffer_store_dwordx4 {vr(S[0],4)}, v1, s[24:27], s64 offen sc1")
    A(f"buffer_store_dwordx4 {vr(S[0]+4,4)}, v1, s[24:27], s64 offen offset:1024 sc1")
    wo_stage(3)
    ACC = [16, 32]
    AB3 = 64
    WF3 = [136, 144]
    A(f"v_readfirstlane_b32 s{S_T0}, v235")
    A("v_add_u32 v238, 1, v233")
    A(f"s_lshl_b32 s{S_T1}, s{S_KQ}, 2")
    A(f"s_lshr_b32 s{S_T1}, 0x1204, s{S_T1}")
    A(f"s_and_b32 s{S_T1}, s{S_T1}, 15")
    A(f"s_lshl_b32 s{S_T1}, s{S_T1}, 15")
    A("v_bfe_u32 v9, v2, 2, 2")
    A("v_lshlrev_b32 v7, 6, v9")
    A("v_bfe_u32 v9, v2, 4, 1")
    A("v_lshl_add_u32 v7, v9, 5, v7")
    A("v_and_b32 v9, 3, v2")
    A("v_lshl_add_u32 v7, v9, 3, v7")
    A(f"v_add_u32 v7, s{S_T1}, v7")
    A("v_lshl_add_u32 v8, v4, 8, v7")
    for r in range(32):
        A(f"v_mov_b32 v{16+r}, 0")
    A(f"s_lshl_b32 s{S_T2}, s{S_QC}, 16")
    A(f"s_lshl_b32 s{S_T1}, s{S_KQ}, 14")
    A(f"s_add_u32 s{S_T2}, s{S_T2}, s{S_T1}")
    A(f"s_add_u32 s{S_T2}, s{S_T2}, {OF_OFF}")
    A(f"s_cmp_lg_u32 s{S_T0}, 0")
    A("s_cbranch_scc0 L_ka_regspin")
    A("L_ka_regok:")
    A("s_waitcnt vmcnt(4)")
    A.stamp()
    A("s_mov_b64 exec, 1")
    A("buffer_store_dword v238, v234, s[24:27], s11 offen sc1")
    A("s_mov_b64 exec, -1")
    A("s_cmp_ge_u32 s2, 224")
    A("s_cbranch_scc1 L_ka_done")
    A("s_waitcnt vmcnt(1)")
    A("s_barrier")
    A(f"s_mov_b32 s{S_SPIN}, 0")
    A(f"v_mov_b32 v10, {CNT_ADDR}")
    A(f"s_and_b32 s{S_T3}, s{S_W}, 1")
    A(f"s_lshl_b32 s{S_T3}, s{S_T3}, 5")
    A(f"s_lshl_b32 s{S_T4}, s{S_KQ}, 3")
    A(f"s_add_u32 s{S_T3}, s{S_T3}, s{S_T4}")
    A(f"s_cmp_lg_u32 s{S_W}, 0")
    A("s_cbranch_scc1 L_ka_p3lds")
    A("L_ka_p3spin:")
    A("buffer_load_dword v9, v239, s[24:27], s11 offen sc1")
    A("s_waitcnt vmcnt(0)")
    A("v_cmp_ne_u32 vcc, v9, v240")
    A(f"s_add_u32 s{S_SPIN}, s{S_SPIN}, 1")
    A("s_nop 3")
    A("v_mov_b32 v12, vcc_lo")
    A("v_mov_b32 v13, vcc_hi")
    A("ds_write_b64 v10, v[12:13] offset:80")
    A("s_cmp_eq_u64 vcc, -1")
    A("s_cbranch_scc1 L_ka_p3go")
    A(f"s_cmp_ge_u32 s{S_SPIN}, 0x100000")
    A("s_cbranch_scc1 L_ka_p3go")
    A(f"s_sleep {opt('sleep3', 4)}")
    A("s_branch L_ka_p3spin")
    A("L_ka_p3lds:")
    A("ds_read_b64 v[12:13], v10 offset:80")
    A("s_waitcnt lgkmcnt(0)")
    A("v_readfirstlane_b32 s4, v12")
    A("v_readfirstlane_b32 s5, v13")
    A(f"s_add_u32 s{S_SPIN}, s{S_SPIN}, 1")
    A("s_nop 1")
    A(f"s_lshr_b64 s[4:5], s[4:5], s{S_T3}")
    A("s_and_b32 s4, s4, 0xff")
    A("s_cmp_eq_u32 s4, 0xff")
    A("s_cbranch_scc1 L_ka_p3go")
    A(f"s_cmp_ge_u32 s{S_SPIN}, 0x1000000")
    A("s_cbranch_scc1 L_ka_p3go")
    A("s_sleep 1")
    A("s_branch L_ka_p3lds")
    A("L_ka_p3go:")
    A.stamp()
    for ks in range(16):
        if ks and ks % 4 == 0:
            A(f"s_add_u32 s{S_T2}, s{S_T2}, 4096")
        A(f"buffer_load_dwordx4 {vr(AB3+4*ks,4)}, v1, s[24:27], s{S_T2} offen offset:{(ks%4)*1024} sc1")

    def tr3(ks, st):
        for ct in range(2):
            for tp in range(2):
                hd, s_ = divmod(ks, 2)
                base = "v7" if (s_ == 1 and tp == 1) else "v8"
                A(f"ds_read_b64_tr_b16 {vr(WF3[st]+4*ct+2*tp,2)}, {base} offset:{ct*14336 + (28*hd + 16*s_ + 8*tp)*64}")

    tr3(0, 0)
    A(f"s_lshl_b32 s{S_T0}, s{S_W}, 13")
    A(f"s_and_b32 s{S_T1}, s{S_W}, 1")
    A(f"s_lshl_b32 s{S_T0}, s{S_T1}, 15")
    A(f"s_lshl_b32 s{S_T3}, s{S_KQ}, 13")
    A(f"s_add_u32 s{S_T3}, s{S_T3}, s{S_T0}")
    A(f"v_add_u32 v10, s{S_T3}, v1")
    A(f"s_and_b32 s{S_T3}, s{S_KQ}, 1")
    A(f"s_lshr_b32 s{S_T4}, s{S_KQ}, 1")
    A(f"s_lshl_b32 s{S_T1}, s{S_T3}, 12")
    A(f"s_add_u32 s{S_T0}, s{S_T0}, s{S_T1}")
    A(f"s_lshl_b32 s{S_T1}, s{S_T4}, 11")
    A(f"s_add_u32 s{S_T0}, s{S_T0}, s{S_T1}")
    A(f"v_add_u32 v11, s{S_T0}, v1")
    A("v_mul_u32_u24 v12, 896, v3")
    A("v_lshl_add_u32 v12, v4, 4, v12")
    A(f"s_mul_i32 s{S_T0}, s{S_QC}, 28672")
    A(f"s_lshl_b32 s{S_T1}, s{S_CB}, 7")
    A(f"s_add_u32 s{S_T0}, s{S_T0}, s{S_T1}")
    A(f"s_lshl_b32 s{S_T1}, s{S_T3}, 6")
    A(f"s_add_u32 s{S_T0}, s{S_T0}, s{S_T1}")
    A(f"s_lshl_b32 s{S_T1}, s{S_T4}, 5")
    A(f"s_add_u32 s{S_T0}, s{S_T0}, s{S_T1}")
    for ks in range(16):
        st = ks % 2
        if ks < 15:
            tr3(ks + 1, 1 - st)
            A(f"s_waitcnt vmcnt({15-ks}) lgkmcnt(4)")
        else:
            A("s_waitcnt vmcnt(0) lgkmcnt(0)")
        for ct in range(2):
            A(mfma(ACC[ct], WF3[st] + 4 * ct, AB3 + 4 * ks, ACC[ct]))
    A.stamp()
    A("s_barrier")
    A("s_nop 7")
    A("s_nop 3")
    for ct in range(2):
        for r4 in range(4):
            A(f"ds_write_b128 v10, {vr(ACC[ct]+4*r4,4)} offset:{ct*4096+r4*1024}")
    A("s_waitcnt lgkmcnt(0)")
    A("s_barrier")
    for k in range(4):
        for h2 in range(2):
            A(f"ds_read_b128 {vr(AB3+8*k+4*h2,4)}, v11 offset:{k*8192+h2*1024}")
    A("s_waitcnt lgkmcnt(4)")
    for r in range(8):
        A(f"v_add_f32 v{AB3+r}, v{AB3+r}, v{AB3+8+r}")
    A("s_waitcnt lgkmcnt(0)")
    for r in range(8):
        A(f"v_add_f32 v{AB3+16+r}, v{AB3+16+r}, v{AB3+24+r}")
    for r in range(8):
        A(f"v_add_f32 v{AB3+r}, v{AB3+r}, v{AB3+16+r}")
    for i in range(4):
        A(f"v_cvt_pk_bf16_f32 v{16+i}, v{AB3+2*i}, v{AB3+2*i+1}")
    A("s_nop 1")
    A("v_permlane32_swap_b32 v16, v18")
    A("v_permlane32_swap_b32 v17, v19")
    A("s_nop 1")
    A(f"buffer_store_dwordx4 v[16:19], v12, s[52:55], s{S_T0} offen {opt('outf', '').replace('+', ' ')}")
    A("L_ka_done:")
    if DT:
        A("s_waitcnt vmcnt(0)")
        A("s_memrealtime s[76:77]")
        A(f"s_cmp_lg_u32 s{S_W}, 0")
        A("s_waitcnt lgkmcnt(0)")
        A("s_cbranch_scc1 L_ka_end")
        A("s_mov_b64 exec, 1")
        A("v_mov_b32 v0, 0")
        A("s_not_b32 s78, s70")
        for off, sr in ((4, 76), (12, 78), (20, 72), (28, 74), (36, 70)):
            A(f"v_mov_b32 v1, s{sr}")
            A(f"buffer_atomic_umax v1, v0, s[56:59], 0 offen offset:{off} sc1")
            A("s_nop 1")
    if STAMP:
        A("s_mov_b64 exec, -1")
        A(f"s_mul_i32 s67, s2, 8")
        A(f"s_add_u32 s67, s67, s{S_W}")
        A("s_lshl_b32 s67, s67, 8")
        A(f"s_add_u32 s67, s67, {STAMP_OFF + 2*(1<<20)}")
        A("v_lshlrev_b32 v0, 2, v2")
        A("v_mov_b32 v1, s68")
        A("v_sub_u32 v232, v232, v1")
        A("buffer_store_dword v232, v0, s[24:27], s67 offen")
    A.stamp_flush(0, S_W, 8)
    A("L_ka_end:")
    A("s_endpgm")
    A("L_ka_w0:")
    A("s_waitcnt vmcnt(0)")
    A("s_barrier")
    A("s_branch L_ka_w1")
    side_blocks()
    A("L_ka_regspin:")
    A(f"s_mov_b32 s{S_SPIN}, 0")
    A("L_ka_regspin2:")
    A("v_lshlrev_b32 v235, 2, v2")
    A("buffer_load_dword v235, v235, s[56:59], 0 offen sc1")
    A("v_mov_b32 v9, 0xff")
    A("s_waitcnt vmcnt(0)")
    A("v_bfe_u32 v235, v235, 8, 8")
    A("v_cmp_eq_u32 vcc, v235, v9")
    A(f"s_add_u32 s{S_SPIN}, s{S_SPIN}, 1")
    A("s_nop 3")
    A(f"s_and_b32 s{S_T0}, vcc_lo, vcc_hi")
    A(f"s_and_b32 s{S_T0}, s{S_T0}, 0x55555555")
    A(f"s_cmp_eq_u32 s{S_T0}, 0x55555555")
    A("s_cbranch_scc1 L_ka_regok")
    A(f"s_cmp_ge_u32 s{S_SPIN}, 0x100000")
    A("s_cbranch_scc1 L_ka_regok")
    A("s_sleep 8")
    A("s_branch L_ka_regspin2")
    A("L_ka_slow:")
    M = T + 5
    s0 = S[0]
    A("s_waitcnt vmcnt(0) lgkmcnt(0)")
    for r in range(16):
        A(f"v_mov_b32 v{OK_+r}, 0")
        A(f"v_mov_b32 v{OO+r}, 0")
    A(f"v_mov_b32 v{M}, 0xff7fffff")
    A("L_ka_slow_loop:")
    A(f"buffer_load_dwordx4 {vr(KF[0],4)}, v1, s[20:23], s66 offen sc1")
    A(f"buffer_load_dwordx4 {vr(KF[0]+4,4)}, v1, s[20:23], s66 offen offset:1024 sc1")
    A(f"buffer_load_dwordx4 {vr(VF[0],4)}, v1, s[20:23], s66 offen offset:2048 sc1")
    A(f"buffer_load_dwordx4 {vr(VF[0]+4,4)}, v1, s[20:23], s66 offen offset:3072 sc1")
    A("s_waitcnt vmcnt(0)")
    A(mfma(s0, KF[0], QF[1], None))
    A(mfma(s0, KF[0] + 4, QF[1] + 4, s0))
    A("s_nop 15")
    A("s_nop 3")
    A(f"v_max3_f32 v{T}, v{s0}, v{s0+1}, v{s0+2}")
    for r in range(3, 15, 2):
        A(f"v_max3_f32 v{T}, v{T}, v{s0+r}, v{s0+r+1}")
    A(f"v_max_f32 v{T}, v{T}, v{s0+15}")
    A(f"v_mov_b32 v{T+1}, v{T}")
    A("s_nop 1")
    A(f"v_permlane32_swap_b32 v{T}, v{T+1}")
    A("s_nop 1")
    A(f"v_max3_f32 v{T}, v{T}, v{T+1}, v{M}")
    A(f"v_sub_f32 v{T+1}, v{M}, v{T}")
    A(f"v_exp_f32 v{T+1}, v{T+1}")
    A(f"v_mov_b32 v{M}, v{T}")
    for r in range(16):
        A(f"v_sub_f32 v{s0+r}, v{s0+r}, v{T}")
    for r in range(16):
        A(f"v_exp_f32 v{s0+r}, v{s0+r}")
    for r in range(16):
        A(f"v_mul_f32 v{OK_+r}, v{OK_+r}, v{T+1}")
    A("s_nop 3")
    A(smfmac(OK_, VF[0], s0, IDX))
    A(smfmac(OK_, VF[0] + 4, s0 + 8, IDX))
    A("s_nop 15")
    A("s_nop 3")
    A("s_add_u32 s66, s66, 4096")
    A("s_cmp_lt_u32 s66, 262144")
    A("s_cbranch_scc1 L_ka_slow_loop")
    A("s_branch L_ka_fin")
    A("L_ka_last:")
    return A.text(), 248, 68


def gen_kb():
    A = Asm()
    ACC = [16, 32, 48, 64]
    WF = [80, 88]
    AB = 96
    A("s_cmp_ge_u32 s2, 224")
    A("s_cbranch_scc1 L_k3_end")
    A.stamp()
    A("s_load_dwordx2 s[4:5], s[0:1], 16")
    A("s_load_dwordx2 s[6:7], s[0:1], 40")
    A("s_load_dwordx2 s[8:9], s[0:1], 56")
    A("s_load_dwordx2 s[28:29], s[0:1], 72")
    A("s_and_b32 s30, s2, 7")
    A("s_lshr_b32 s31, s2, 3")
    A("s_and_b32 s32, s31, 3")
    A("s_lshl_b32 s30, s30, 2")
    A("s_add_u32 s32, s32, s30")
    A("s_lshr_b32 s33, s31, 2")
    A("v_lshrrev_b32 v1, 6, v0")
    A("v_and_b32 v2, 63, v0")
    A("v_readfirstlane_b32 s35, v1")
    A("v_lshlrev_b32 v1, 4, v2")
    A("v_lshrrev_b32 v3, 2, v2")
    A("v_and_b32 v4, 3, v2")
    A("v_mul_u32_u24 v5, 896, v3")
    A("v_lshl_add_u32 v5, v4, 4, v5")
    A("v_add_u32 v6, 64, v5")
    A("v_lshrrev_b32 v7, 5, v2")
    A("v_and_b32 v8, 31, v2")
    A("s_mul_i32 s41, s35, 28672")
    A("v_lshlrev_b32 v9, 9, v7")
    A("v_bfe_u32 v10, v2, 2, 2")
    A("v_lshl_add_u32 v9, v10, 6, v9")
    A("v_bfe_u32 v10, v2, 4, 1")
    A("v_lshl_add_u32 v9, v10, 5, v9")
    A("v_lshl_add_u32 v9, v4, 3, v9")
    A("v_add_u32 v9, s41, v9")
    A("s_and_b32 s36, s35, 1")
    A("s_mul_i32 s36, s36, 200704")
    A("s_lshl_b32 s37, s33, 7")
    A("s_add_u32 s36, s36, s37")
    A("s_mul_i32 s38, s32, 114688")
    A("s_mul_i32 s39, s35, 14336")
    A("s_add_u32 s38, s38, s39")
    A(f"s_add_u32 s38, s38, {OF_OFF}")
    A("s_and_b32 s48, s32, 3")
    A("s_lshl_b32 s48, s48, 2")
    A("s_lshr_b32 s48, 0xa730, s48")
    A("s_and_b32 s48, s48, 15")
    A("s_lshl_b32 s49, s33, 1")
    A("s_add_u32 s48, s48, s49")
    A("s_cmp_ge_u32 s48, 14")
    A("s_cselect_b32 s49, 14, 0")
    A("s_sub_u32 s48, s48, s49")
    if not opt("rotb", 1):
        A("s_mov_b32 s48, 0")
    A("s_add_u32 s50, s38, 14336")
    A("s_mul_i32 s49, s48, 14336")
    A("s_add_u32 s36, s36, s49")
    A("s_lshl_b32 s49, s48, 10")
    A("s_add_u32 s38, s38, s49")
    A("s_add_u32 s39, s38, 57344")
    A("s_cmp_ge_u32 s35, 2")
    A("s_waitcnt lgkmcnt(0)")
    A("s_cselect_b32 s4, s6, s4")
    A("s_cselect_b32 s5, s7, s5")
    A.stamp()
    srd(A, 12, 4, 401408)
    srd(A, 16, 8, 1835008)
    srd(A, 24, 28, WS_USED)
    A("s_mov_b32 s42, s41")

    def loads(ks):
        A("s_mov_b32 m0, s42")
        A("s_add_u32 s42, s42, 1024")
        A("buffer_load_dwordx4 v5, s[12:15], s36 offen lds")
        A("s_mov_b32 m0, s42")
        A("s_add_u32 s42, s42, 1024")
        A("buffer_load_dwordx4 v6, s[12:15], s36 offen lds")
        A(f"buffer_load_dwordx4 {vr(AB+8*ks,4)}, v1, s[24:27], s38 offen")
        A(f"buffer_load_dwordx4 {vr(AB+8*ks+4,4)}, v1, s[24:27], s39 offen")
        if ks < 13:
            A("s_add_u32 s36, s36, 14336")
            A("s_add_u32 s38, s38, 1024")
            A("s_cmp_ge_u32 s38, s50")
            A("s_cselect_b32 s49, 14336, 0")
            A("s_cselect_b32 s51, 200704, 0")
            A("s_sub_u32 s38, s38, s49")
            A("s_sub_u32 s36, s36, s51")
            A("s_add_u32 s39, s38, 57344")

    D = opt("bd", 6)
    for ks in range(D):
        loads(ks)
    A.stamp()
    for r in range(16, 80):
        A(f"v_mov_b32 v{r}, 0")

    def trreads(ks, st):
        for ct in range(2):
            for tp in range(2):
                A(f"ds_read_b64_tr_b16 {vr(WF[st]+4*ct+2*tp,2)}, v9 offset:{(ks*2+ct)*1024+tp*256}")

    A(f"s_waitcnt vmcnt({4*(D-1)})")
    A.stamp()
    trreads(0, 0)
    for ks in range(14):
        st = ks % 2
        if ks + D < 14:
            loads(ks + D)
        if ks < 13:
            A(f"s_waitcnt vmcnt({4*(min(13, ks+D)-(ks+1))})")
            trreads(ks + 1, 1 - st)
            A("s_waitcnt lgkmcnt(4)")
        else:
            A("s_waitcnt lgkmcnt(0)")
        for ti in range(2):
            for ct in range(2):
                A(mfma(ACC[ti * 2 + ct], WF[st] + 4 * ct, AB + 8 * ks + 4 * ti, ACC[ti * 2 + ct]))
    A.stamp()
    A("v_add_u32 v10, s41, v1")
    A("s_lshl_b32 s43, s35, 12")
    A("v_add_u32 v11, s43, v1")
    A("v_mul_u32_u24 v12, 896, v8")
    A("v_lshl_add_u32 v12, v7, 4, v12")
    A("s_lshr_b32 s44, s35, 1")
    A("s_and_b32 s45, s35, 1")
    A("s_lshl_b32 s46, s32, 1")
    A("s_add_u32 s46, s46, s44")
    A("s_mul_i32 s46, s46, 28672")
    A("s_lshl_b32 s47, s33, 7")
    A("s_add_u32 s46, s46, s47")
    A("s_lshl_b32 s45, s45, 6")
    A("s_add_u32 s46, s46, s45")
    A("s_nop 7")
    for tile in range(4):
        for r4 in range(4):
            A(f"ds_write_b128 v10, {vr(ACC[tile]+4*r4,4)} offset:{tile*4096+r4*1024}")
    A("s_waitcnt lgkmcnt(0)")
    A.stamp()
    A("s_barrier")
    A.stamp()
    for w in range(4):
        for r4 in range(4):
            off = w * 28672 + r4 * 1024
            if off < 65536:
                A(f"ds_read_b128 {vr(AB+16*w+4*r4,4)}, v11 offset:{off}")
            else:
                if r4 == 0:
                    A("v_add_u32 v13, 65536, v11")
                A(f"ds_read_b128 {vr(AB+16*w+4*r4,4)}, v13 offset:{off-65536}")
    A("s_waitcnt lgkmcnt(8)")
    for r in range(16):
        A(f"v_add_f32 v{AB+r}, v{AB+r}, v{AB+16+r}")
    A("s_waitcnt lgkmcnt(0)")
    for r in range(16):
        A(f"v_add_f32 v{AB+32+r}, v{AB+32+r}, v{AB+48+r}")
    for r in range(16):
        A(f"v_add_f32 v{AB+r}, v{AB+r}, v{AB+32+r}")
    for i in range(8):
        A(f"v_cvt_pk_bf16_f32 v{16+i}, v{AB+2*i}, v{AB+2*i+1}")
    A("s_nop 1")
    A("v_permlane32_swap_b32 v16, v18")
    A("v_permlane32_swap_b32 v17, v19")
    A("v_permlane32_swap_b32 v20, v22")
    A("v_permlane32_swap_b32 v21, v23")
    A("s_nop 1")
    A("buffer_store_dwordx4 v[16:19], v12, s[16:19], s46 offen")
    A("buffer_store_dwordx4 v[20:23], v12, s[16:19], s46 offen offset:32")
    A.stamp()
    A.stamp_flush(1, 35, 4)
    A("L_k3_end:")
    A("s_endpgm")
    return A.text(), 208, 56


HEADER = """; Kernarg layout for this problem (80 bytes, ptrs only, base s[0:1]):
"""


def main(outpath):
    name = NAME + "_kernel"
    body, nv, ns = gen_ka()
    out = HEADER
    out += "; @launch grid=(256,1,1) block=(512,1,1) lds=163840\n"
    out += '.amdgcn_target "amdgcn-amd-amdhsa--gfx950"\n.text\n'
    out += f".globl {name}\n.p2align 8\n.type {name},@function\n{name}:\n{body}"
    out += '.section .rodata,"a"\n'
    out += f""".p2align 6
.amdhsa_kernel {name}
  .amdhsa_next_free_vgpr {nv}
  .amdhsa_next_free_sgpr {102 if (STAMP or opt('dbgtime', 0)) else ns}
  .amdhsa_accum_offset {(nv+3)//4*4}
  .amdhsa_group_segment_fixed_size 0
  .amdhsa_kernarg_size 80
  .amdhsa_user_sgpr_count 2
  .amdhsa_user_sgpr_kernarg_segment_ptr 1
  .amdhsa_system_sgpr_workgroup_id_x 1
.end_amdhsa_kernel
"""
    open(outpath, "w").write(out)


if __name__ == "__main__":
    main(sys.argv[1] if len(sys.argv) > 1 else f"cdna_kernels/{NAME}.s")
```

```python
import struct, math, sys, os

NAME = "gated_mix__softmax_full_mha__softmax_full_mha__prompt"

KVF_OFF = 0
OF_OFF = 8 << 20
WI_OFF = 13 << 20
FL_OFF = 12 << 20
WS_USED = 24 << 20
STAMP_OFF = 20 << 20
STAMP = bool(os.environ.get("STAMP"))
OPT = dict(kv.split("=") for kv in os.environ.get("OPT", "").split(",") if kv)


def opt(name, default):
    return type(default)(OPT.get(name, default))


def f32bits(x):
    return struct.unpack("<I", struct.pack("<f", x))[0]


LOG2E = math.log2(math.e)
QSCALE = (28 ** -0.5) * LOG2E


class Asm:
    def __init__(self):
        self.lines = []
        self.nst = 0

    def __call__(self, s):
        for ln in s.strip("\n").split("\n"):
            self.lines.append("    " + ln.strip() if not ln.strip().endswith(":") else ln.strip())

    def text(self):
        return "\n".join(self.lines) + "\n"

    def stamp(self):
        if not STAMP:
            return
        k = self.nst
        self.nst += 1
        assert k < 14
        if k == 0:
            self("s_memrealtime s[96:97]")
        self(f"{'s_memrealtime' if os.environ.get('RT') else 's_memtime'} s[{68+2*k}:{69+2*k}]")
        self("s_waitcnt lgkmcnt(0)")

    def stamp_flush(self, kidx, wave_sgpr, nwaves, srd="s[24:27]"):
        if not STAMP:
            return
        self("s_waitcnt vmcnt(0)")
        self(f"{'s_memrealtime' if os.environ.get('RT') else 's_memtime'} s[98:99]")
        self("s_memrealtime s[100:101]")
        self("s_waitcnt lgkmcnt(0)")
        self("s_mov_b64 exec, 1")
        self(f"s_mul_i32 s67, s2, {nwaves}")
        self(f"s_add_u32 s67, s67, s{wave_sgpr}")
        self("s_lshl_b32 s67, s67, 7")
        self(f"s_add_u32 s67, s67, {STAMP_OFF + kidx*(1<<20)}")
        self("v_mov_b32 v0, 0")
        regs = [96, 100, 98] + [68 + 2 * k for k in range(self.nst)]
        for i, r in enumerate(regs):
            self(f"v_mov_b32 v1, s{r}")
            self(f"buffer_store_dword v1, v0, {srd}, s67 offen offset:{4*i}")
            self("s_nop 1")


def vr(a, n):
    return f"v[{a}:{a+n-1}]"


def srd(A, d, base, nbytes):
    A(f"s_mov_b32 s{d}, s{base}")
    A(f"s_mov_b32 s{d+1}, s{base+1}")
    A(f"s_mov_b32 s{d+2}, {nbytes}")
    A(f"s_mov_b32 s{d+3}, 0x00020000")


def mfma(d, a, b, c):
    cs = vr(c, 16) if c is not None else "0"
    return f"v_mfma_f32_32x32x16_bf16 {vr(d,16)}, {vr(a,4)}, {vr(b,4)}, {cs}"


def smfmac(d, a, b, idx):
    return f"v_smfmac_f32_32x32x32_bf16 {vr(d,16)}, {vr(a,4)}, {vr(b,8)}, v{idx}"


S_BH, S_TB, S_H, S_W, S_TT, S_ROT = 32, 33, 34, 35, 36, 37
S_WOFF, S_XOFF, S_T0, S_T1, S_T2 = 38, 39, 40, 41, 42
S_KH, S_QP, S_JB, S_FLAGS, S_GS, S_GO = 43, 44, 45, 46, 47, 48
S_LW, S_T3, S_T4 = 49, 50, 51
S_NEXT = 60
S_SPIN = 61
S_REM = 62
S_FL = 3
S_POLL = 65
S_A = 66

KVR = 98304
QIMG = 131072
CNT_ADDR = 159744
MX_ADDR = CNT_ADDR + 1024
REGOK_OFF = 68
FO_OFF = (12 << 20) + 65536
S_CB, S_QC, S_KQ = 8, 9, 10
FLAGW = CNT_ADDR + 64
WRDY = CNT_ADDR + 68
SNAPL = CNT_ADDR + 128
SLOT_OF_BLOCK = [0, 2, 3, 1, 0, 2, 3, 1]
VSNAP = 224


def gen_ka():
    A = Asm()
    A("s_cmp_ge_u32 s2, 256")
    A("s_cbranch_scc1 L_ka_end")
    A.stamp()
    if opt("delay", 0):
        A("s_mul_i32 s4, s2, 0x9e37")
        A("s_lshr_b32 s4, s4, 5")
        A(f"s_and_b32 s4, s4, {opt('delay', 0)}")
        A("s_lshl_b32 s4, s4, 2")
        A("L_ka_dly:")
        A("s_cmp_eq_u32 s4, 0")
        A("s_cbranch_scc1 L_ka_dly2")
        A("s_sleep 127")
        A("s_sub_u32 s4, s4, 1")
        A("s_branch L_ka_dly")
        A("L_ka_dly2:")
    DT = opt("dbgtime", 0)
    if DT:
        A("s_memrealtime s[70:71]")
    A("s_load_dwordx4 s[4:7], s[0:1], 0")
    A("s_load_dwordx2 s[8:9], s[0:1], 32")
    A("s_load_dwordx2 s[10:11], s[0:1], 48")
    A("s_load_dwordx4 s[28:31], s[0:1], 64")
    if opt("cpf", 0):
        A("s_getpc_b64 s[12:13]")
        A("L_ka_pc:")
        A("v_lshlrev_b32 v245, 6, v0")
        A("v_min_u32 v245, L_ka_last-L_ka_pc-4, v245")
        A("global_load_dword v246, v245, s[12:13]")
    A("v_lshrrev_b32 v1, 6, v0")
    A("v_and_b32 v2, 63, v0")
    A(f"v_readfirstlane_b32 s{S_W}, v1")
    A(f"s_and_b32 s{S_T0}, s2, 7")
    A(f"s_lshr_b32 s{S_T1}, s2, 3")
    MAP = opt("map", 0)
    if MAP == 0:
        A(f"s_and_b32 s{S_A}, s{S_T1}, 3")
        A(f"s_lshl_b32 s{S_BH}, s{S_T0}, 2")
        A(f"s_add_u32 s{S_BH}, s{S_BH}, s{S_A}")
        A(f"s_lshr_b32 s{S_TB}, s{S_T1}, 2")
    elif MAP == 1:
        A(f"s_and_b32 s{S_A}, s{S_T1}, 7")
        A(f"s_lshr_b32 s{S_BH}, s{S_T0}, 1")
        A(f"s_lshl_b32 s{S_BH}, s{S_BH}, 3")
        A(f"s_add_u32 s{S_BH}, s{S_BH}, s{S_A}")
        A(f"s_and_b32 s{S_TB}, s{S_T0}, 1")
        A(f"s_lshl_b32 s{S_TB}, s{S_TB}, 2")
        A(f"s_lshr_b32 s{S_T1}, s{S_T1}, 3")
        A(f"s_add_u32 s{S_TB}, s{S_TB}, s{S_T1}")
    else:
        A(f"s_and_b32 s{S_A}, s{S_T1}, 15")
        A(f"s_lshr_b32 s{S_BH}, s{S_T0}, 2")
        A(f"s_lshl_b32 s{S_BH}, s{S_BH}, 4")
        A(f"s_add_u32 s{S_BH}, s{S_BH}, s{S_A}")
        A(f"s_and_b32 s{S_TB}, s{S_T0}, 3")
        A(f"s_lshl_b32 s{S_TB}, s{S_TB}, 1")
        A(f"s_lshr_b32 s{S_T1}, s{S_T1}, 4")
        A(f"s_add_u32 s{S_TB}, s{S_TB}, s{S_T1}")
    A(f"s_and_b32 s{S_H}, s{S_BH}, 15")
    rm = opt("rot", 3)
    if rm == 3:
        A(f"s_add_u32 s{S_ROT}, s{S_TB}, s{S_T0}")
        A(f"s_cmp_ge_u32 s{S_ROT}, 7")
        A(f"s_cselect_b32 s{S_T1}, 7, 0")
        A(f"s_sub_u32 s{S_ROT}, s{S_ROT}, s{S_T1}")
    elif rm == 5:
        A(f"s_and_b32 s{S_ROT}, s{S_BH}, 3")
        A(f"s_and_b32 s{S_T1}, s{S_TB}, 3")
        A(f"s_lshl_b32 s{S_T1}, s{S_T1}, 1")
        A(f"s_add_u32 s{S_ROT}, s{S_ROT}, s{S_T1}")
        A(f"s_lshr_b32 s{S_T1}, s{S_T0}, 1")
        A(f"s_add_u32 s{S_ROT}, s{S_ROT}, s{S_T1}")
    elif rm == 0:
        A(f"s_lshl_b32 s{S_ROT}, s{S_A}, 1")
        A(f"s_add_u32 s{S_ROT}, s{S_ROT}, s{S_T0}")
    elif rm == 1:
        A(f"s_mov_b32 s{S_ROT}, s{S_T0}")
    elif rm == 2:
        A(f"s_and_b32 s{S_ROT}, s{S_A}, 1")
        A(f"s_mul_i32 s{S_ROT}, s{S_ROT}, 3")
        A(f"s_add_u32 s{S_ROT}, s{S_ROT}, s{S_T0}")
    A(f"s_cmp_ge_u32 s{S_ROT}, 7")
    A(f"s_cselect_b32 s{S_T1}, 7, 0")
    A(f"s_sub_u32 s{S_ROT}, s{S_ROT}, s{S_T1}")
    A("v_lshlrev_b32 v1, 4, v2")
    A("v_and_b32 v3, 31, v2")
    A("v_lshrrev_b32 v4, 5, v2")
    A("v_lshrrev_b32 v5, 2, v3")
    A("v_and_b32 v6, 3, v2")
    A("v_mul_u32_u24 v7, 2688, v5")
    A("v_lshl_add_u32 v7, v6, 4, v7")
    A("v_mov_b32 v8, v7")
    A("v_mul_u32_u24 v9, 896, v4")
    A("v_add3_u32 v7, v7, v9, v9" if False else "v_add_u32 v7, v7, v9")
    A("v_add_u32 v7, 896, v7")
    A("v_lshrrev_b32 v5, 3, v2")
    A("v_mul_u32_u24 v9, 896, v5")
    A("v_and_b32 v5, 7, v2")
    A("v_lshrrev_b32 v11, 4, v2")
    A("v_xor_b32 v5, v5, v11")
    A("v_xor_b32 v11, 4, v5")
    A("v_lshl_add_u32 v10, v11, 4, v9")
    A("v_lshl_add_u32 v9, v5, 4, v9")
    A("v_lshlrev_b32 v225, 2, v3")
    A(f"s_lshl_b32 s{S_LW}, s{S_W}, 12")
    A(f"s_lshl_b32 s{S_TT}, s{S_TB}, 3")
    A(f"s_add_u32 s{S_TT}, s{S_TT}, s{S_W}")
    A(f"s_mul_i32 s{S_XOFF}, s{S_TT}, 28672")
    A(f"s_add_u32 s{S_T4}, s{S_XOFF}, 896")
    A(f"s_lshl_b32 s{S_T1}, s{S_ROT}, 7")
    A(f"s_add_u32 s{S_XOFF}, s{S_XOFF}, s{S_T1}")
    A(f"s_lshl_b32 s{S_FL}, s{S_BH}, 7")
    A(f"s_add_u32 s{S_FL}, s{S_FL}, {FL_OFF}")
    A(f"s_mov_b32 s{S_POLL}, 0")
    A(f"s_mul_i32 s{S_T0}, s{S_H}, 56")
    A(f"s_mul_i32 s{S_WOFF}, s{S_W}, 21504")
    A(f"s_add_u32 s{S_WOFF}, s{S_WOFF}, s{S_T0}")
    A(f"s_add_u32 s{S_T3}, s{S_WOFF}, {7*172032}")
    A(f"s_mul_i32 s{S_T1}, s{S_ROT}, 172032")
    A(f"s_add_u32 s{S_WOFF}, s{S_WOFF}, s{S_T1}")
    A(f"s_lshl_b32 s{S_T2}, s{S_W}, 9")
    A(f"s_cmp_ge_u32 s{S_BH}, 16")
    A("s_waitcnt lgkmcnt(0)")
    A("s_cselect_b32 s6, s8, s6")
    A("s_cselect_b32 s7, s9, s7")
    A.stamp()
    srd(A, 12, 4, 1835008)
    srd(A, 16, 6, 1204224)
    srd(A, 24, 30, WS_USED)

    XB = 88
    AK, AV, AQ = 16, 32, 48
    WF = [64, 76]

    def dma_x(c):
        for i in range(4):
            A(f"s_add_u32 m0, s{S_LW}, {(c%3)*32768 + i*1024}")
            if i == 0:
                A("s_nop 0")
                A(f"buffer_load_dwordx4 v9, s[12:15], s{S_XOFF} offen lds")
            else:
                A(f"s_add_u32 s{S_T1}, s{S_XOFF}, {i*7168}")
                A(f"buffer_load_dwordx4 v{9 + (i&1)}, s[12:15], s{S_T1} offen lds")
        A(f"s_add_u32 s{S_XOFF}, s{S_XOFF}, 128")
        A(f"s_cmp_ge_u32 s{S_XOFF}, s{S_T4}")
        A(f"s_cselect_b32 s{S_T1}, 896, 0")
        A(f"s_sub_u32 s{S_XOFF}, s{S_XOFF}, s{S_T1}")

    def dma_x_piece(c, i):
        A(f"s_add_u32 m0, s{S_LW}, {(c%3)*32768 + i*1024}")
        if i == 0:
            A("s_nop 0")
            A(f"buffer_load_dwordx4 v9, s[12:15], s{S_XOFF} offen lds")
        else:
            A(f"s_add_u32 s{S_T1}, s{S_XOFF}, {i*7168}")
            A(f"buffer_load_dwordx4 v{9 + (i&1)}, s[12:15], s{S_T1} offen lds")
        if i == 3:
            A(f"s_add_u32 s{S_XOFF}, s{S_XOFF}, 128")
            A(f"s_cmp_ge_u32 s{S_XOFF}, s{S_T4}")
            A(f"s_cselect_b32 s{S_T1}, 896, 0")
            A(f"s_sub_u32 s{S_XOFF}, s{S_XOFF}, s{S_T1}")

    def read_x(c):
        for u in range(4):
            if c % 3 < 2:
                A(f"ds_read_b128 {vr(XB+16*c+4*u,4)}, v{200+u} offset:{(c%3)*32768}")
            else:
                A(f"ds_read_b128 {vr(XB+16*c+4*u,4)}, v{241+u} offset:32768")

    def hx(c, vm):
        A(f"s_waitcnt vmcnt({vm})")
        read_x(c)
        if c + 2 < 7:
            A("s_waitcnt lgkmcnt(0)")
            dma_x(c + 2)

    def late_setup():
        srd(A, 56, 28, 256)
        A(f"s_lshl_b32 s{S_T1}, s{S_BH}, 18")
        A(f"s_add_u32 s20, s30, s{S_T1}")
        A("s_addc_u32 s21, s31, 0")
        A("s_mov_b32 s22, 262144")
        A("s_mov_b32 s23, 0x00020000")
        A(f"s_lshl_b32 s63, s{S_BH}, 3")
        A("v_bfe_u32 v5, v3, 1, 3")
        A("v_lshlrev_b32 v11, 2, v4")
        A("v_xor_b32 v5, v5, v11")
        A("v_lshlrev_b32 v11, 7, v3")
        A(f"v_add_u32 v11, s{S_LW}, v11")
        for u in range(4):
            A(f"v_xor_b32 v12, {u}, v5")
            A(f"v_lshl_add_u32 v{200+u}, v12, 4, v11")
        for u in range(4):
            A(f"v_add_u32 v{241+u}, 32768, v{200+u}")
        A("v_bfe_u32 v15, v2, 2, 2")
        A("v_lshlrev_b32 v14, 6, v15")
        A("v_bfe_u32 v15, v2, 4, 1")
        A("v_lshl_add_u32 v14, v15, 5, v14")
        A("v_lshl_add_u32 v14, v6, 3, v14")
        A("v_lshl_add_u32 v15, v4, 11, v14")
        A(f"v_add_u32 v15, {QIMG}, v15")
        A("v_lshl_add_u32 v14, v4, 12, v14")
        A(f"v_add_u32 v14, {KVR}, v14")
        A(f"s_lshr_b32 s{S_KH}, s{S_W}, 2")
        A(f"s_and_b32 s{S_QP}, s{S_W}, 3")
        A(f"s_cmp_ge_u32 s{S_BH}, 16")
        A(f"s_cselect_b32 s{S_GS}, -1.0, 1.0")
        A(f"s_cselect_b32 s{S_GO}, 1.0, 0")
        for r in range(16, 64):
            A(f"v_mov_b32 v{r}, 0")
        A("v_mov_b32 v207, 0")
        A(f"v_mov_b32 v5, {CNT_ADDR}")
        A("ds_write_b32 v5, v207")
        A("ds_write_b32 v5, v207 offset:64")
        srd(A, 52, 10, 896)
        A("v_lshrrev_b32 v12, 3, v2")
        A("v_min_u32 v12, 6, v12")
        A("v_and_b32 v204, 7, v2")
        A("v_lshlrev_b32 v13, 12, v12")
        A("v_lshl_add_u32 v13, v204, 6, v13")
        A(f"s_add_u32 s{S_T1}, s{S_T2}, {QIMG + 56}")
        A(f"v_add_u32 v13, s{S_T1}, v13")
        A(f"v_add_u32 v12, s{S_ROT}, v12")
        A("v_subrev_u32 v11, 7, v12")
        A("v_min_u32 v12, v12, v11")
        A("v_lshl_add_u32 v12, v12, 6, v204")
        A(f"s_lshl_b32 s{S_T1}, s{S_W}, 3")
        A(f"v_add_u32 v12, s{S_T1}, v12")
        A("v_lshlrev_b32 v12, 1, v12")
        A("buffer_load_ushort v206, v12, s[52:55], 0 offen")
        A("ds_write_b32 v5, v207 offset:68")
        A(f"s_lshr_b32 s{S_CB}, s2, 5")
        A(f"s_min_u32 s{S_CB}, s{S_CB}, 6")
        A(f"s_and_b32 s{S_QP}, s2, 7")
        A(f"s_lshl_b32 s{S_QP}, s{S_QP}, 2")
        A(f"s_bfe_u32 s{S_T1}, s2, 0x20003")
        A(f"s_add_u32 s{S_QP}, s{S_QP}, s{S_T1}")
        A(f"s_lshl_b32 s{S_QC}, s{S_QP}, 1")
        A(f"s_and_b32 s{S_T1}, s{S_W}, 1")
        A(f"s_add_u32 s{S_QC}, s{S_QC}, s{S_T1}")
        A(f"s_lshr_b32 s{S_KQ}, s{S_W}, 1")
        A(f"s_lshl_b32 s{S_T1}, s{S_QP}, 8")
        A(f"v_lshl_add_u32 v239, v2, 2, s{S_T1}")
        A("ds_write_b64 v5, v[16:17] offset:80")
        A(f"s_mov_b32 s{S_T1}, s{S_TT}")
        A(f"s_lshl_b32 s64, s{S_T1}, 16")
        A(f"s_lshl_b32 s11, s{S_BH}, 11")
        A(f"s_add_u32 s64, s64, s11")
        A(f"s_add_u32 s64, s64, {OF_OFF}")
        A(f"s_lshl_b32 s{S_T1}, s{S_T1}, 7")
        A(f"s_lshl_b32 s11, s{S_BH}, 2")
        A(f"s_add_u32 s{S_T1}, s{S_T1}, s11")
        A(f"v_mov_b32 v234, s{S_T1}")
        A(f"s_mov_b32 s11, {FO_OFF}")
        A(f"s_cmp_lg_u32 s{S_W}, s{S_POLL}")
        A("s_cbranch_scc1 L_ka_nosnap3")
        A("buffer_load_dword v240, v239, s[24:27], s11 offen sc1")
        A("L_ka_nosnap3:")
        A("s_mov_b64 exec, 1")
        A("buffer_load_dword v233, v234, s[24:27], s11 offen sc1")
        if opt("pt", 0):
            A(f"s_cmp_lg_u32 s{S_W}, 2")
            A("s_cbranch_scc1 L_ka_nopt")
            A("s_load_dwordx2 s[4:5], s[0:1], 16")
            A("s_load_dwordx2 s[6:7], s[0:1], 40")
            A("s_load_dwordx2 s[60:61], s[0:1], 56")
            A("v_mov_b32 v228, 0")
            A(f"s_lshl_b32 s{S_T1}, s{S_TT}, 12")
            A(f"buffer_load_dword v229, v228, s[20:23], s{S_T1} offen sc1")
            A("buffer_load_dword v229, v228, s[24:27], s64 offen sc1")
            A(f"s_lshl_b32 s{S_T1}, s{S_QC}, 16")
            A(f"s_add_u32 s{S_T1}, s{S_T1}, {OF_OFF}")
            A(f"buffer_load_dword v229, v228, s[24:27], s{S_T1} offen sc1")
            A("buffer_load_dword v229, v228, s[56:59], 0 offen sc1")
            A("s_waitcnt lgkmcnt(0)")
            A("global_load_dword v229, v228, s[4:5]")
            A("global_load_dword v229, v228, s[6:7]")
            A("global_load_dword v229, v228, s[60:61]")
            A("L_ka_nopt:")
        A("s_mov_b64 exec, -1")

    def trreads(c, u, st, slices):
        base = "v14" if c < 4 else "v15"
        cc = c if c < 4 else c - 4
        n = 0
        for t in slices:
            for tp in range(2):
                off = (8 * cc + u) * 1536 + t * 512 + tp * 256
                A(f"ds_read_b64_tr_b16 {vr(WF[st]+4*t+2*tp,2)}, {base} offset:{off}")
                n += 1
        return n

    def mm(c, u, st, slices):
        xf = XB + 16 * c + 4 * u
        for t in slices:
            if t == 0:
                A(mfma(AQ, WF[st] + 0, xf, AQ))
            elif t == 1:
                A(mfma(AK, WF[st] + 4, xf, AK))
            else:
                A(mfma(AV, xf, WF[st] + 8, AV))

    def chunks_mfma(cs, slices=(1, 2)):
        steps = [(c, u) for c in cs for u in range(4)]
        trreads(*steps[0], 0, slices)
        for i, (c, u) in enumerate(steps):
            if i + 1 < len(steps):
                n = trreads(*steps[i + 1], (i + 1) % 2, slices)
                A(f"s_waitcnt lgkmcnt({n})")
            else:
                A("s_waitcnt lgkmcnt(0)")
            mm(c, u, i % 2, slices)

    def adv_w():
        A(f"s_add_u32 s{S_WOFF}, s{S_WOFF}, 172032")
        A(f"s_cmp_ge_u32 s{S_WOFF}, s{S_T3}")
        A(f"s_cselect_b32 s{S_T1}, {7*172032}, 0")
        A(f"s_sub_u32 s{S_WOFF}, s{S_WOFF}, s{S_T1}")

    q = []

    def dma_wkv(c):
        A(f"s_lshl_b32 s{S_T1}, s{S_T2}, 1")
        A(f"s_add_u32 m0, s{S_T1}, {KVR + (c%4)*8192}")
        A("s_nop 0" if not opt("exp_now", 0) else "s_mov_b64 exec, 1")
        A(f"buffer_load_dwordx4 v7, s[16:19], s{S_WOFF} offen lds")
        if opt("exp_now", 0):
            A("s_mov_b64 exec, -1")
        adv_w()
        q.append(("W", c))

    def dma_wq(c):
        A(f"s_add_u32 m0, s{S_T2}, {QIMG + c*4096}")
        A("s_mov_b32 exec_hi, 0")
        A(f"buffer_load_dwordx4 v8, s[16:19], s{S_WOFF} offen lds")
        A("s_mov_b32 exec_hi, -1")
        adv_w()
        q.append(("Q", c))

    def dma_xq(c):
        dma_x(c)
        q.extend([("X", c)] * 4)

    def younger(*tags):
        last = max(i for i, t in enumerate(q) if t in tags)
        return len(q) - 1 - last

    A(f"s_cmp_lg_u32 s{S_W}, s{S_POLL}")
    A("s_cbranch_scc1 L_ka_nosnap")
    A(f"buffer_load_dword v{VSNAP}, v225, s[24:27], s{S_FL} offen sc1")
    A("L_ka_nosnap:")
    WLA = opt("wla", 3)
    XD = 3
    WLA = XD
    IB = opt("ib", 2)
    XI = opt("xi", 3)
    for c in range(XI):
        dma_wkv(c)
        dma_xq(c)
        if IB == 1 and c < XI - 1:
            A("s_barrier")
        if IB == 2 and c == 0:
            late_setup()
            q.append(("G", 0))
            q.append(("G", 1))
            A("s_barrier")
        if IB == 3 and c == 0:
            A("s_barrier")
    if IB != 2:
        late_setup()
        q.append(("G", 0))
        q.append(("G", 1))
    A.stamp()
    IDX = 5
    QF = [64, 72]
    O = [16, 32]
    S = [112, 128, 144, 160]
    KF = [176, 184]
    VF = [192, 200, 208, 216]
    T = 48
    VB = 6
    GB = [12, 13]
    PK, PV = 208, 216
    lq = []

    def lwait(tag):
        last = max(i for i, t in enumerate(lq) if t == tag)
        A(f"s_waitcnt lgkmcnt({min(15, len(lq) - 1 - last)})")

    def kvread(i):
        c, u = divmod(i, 4)
        for t in (1, 2):
            for tp in range(2):
                A(f"ds_read_b64_tr_b16 {vr(64+8*(i%3)+4*(t-1)+2*tp,2)}, v14 offset:{(c%4)*8192 + u*1024 + (t-1)*512 + tp*256}")
                lq.append(("T", i))

    def rx(c):
        read_x(c)
        lq.extend([("X", c)] * 4)

    def arrive(c):
        tags = [("X", c), ("W", c)] + ([("Q", 3)] if c == 6 and QE else [])
        assert q.count(("X", c)) == 4 and q.count(("W", c)) == 1
        A(f"s_waitcnt vmcnt({younger(*tags)}) lgkmcnt(0)")
        lq.clear()
        if c == 6 and QE:
            A("s_mov_b32 exec_hi, 0")
            A("ds_write_b16 v13, v206")
            A("s_mov_b32 exec_hi, -1")
            A("s_waitcnt lgkmcnt(0)")
            lq.clear()
        A("s_barrier")
        rx(c)

    pend = []

    def xop(c, i):
        def f():
            dma_x_piece(c, i)
            q.append(("X", c))
        return f

    for c in range(XI, 7):
        e = -1 if c < 3 else (-1 if c == 3 else 4 * (c - 3))
        ew = -1 if c < 4 else 4 * (c - 3)
        pend.append((ew, (lambda cc: (lambda: dma_wkv(cc)))(c)))
        for i in range(4):
            pend.append((e, xop(c, i)))
    for j in range(7):
        pend.append((4 * opt("qat", 4), (lambda jj: (lambda: dma_wq(jj)))(j)))
    RATE = opt("rate", 2)

    def drain(step, n):
        while n > 0 and pend and pend[0][0] <= step:
            pend.pop(0)[1]()
            n -= 1

    QE = 0
    A(f"s_waitcnt vmcnt({younger(('X', 0), ('W', 0))})")
    A(f"s_cmp_lg_u32 s{S_W}, s{S_POLL}")
    A("s_cbranch_scc1 L_ka_nosnap2")
    A(f"v_add_u32 v11, {SNAPL}, v225")
    A(f"ds_write_b32 v11, v{VSNAP}")
    A("L_ka_nosnap2:")
    read_x(0)
    A("s_waitcnt lgkmcnt(0)")
    A.stamp()
    A("s_barrier")
    kvread(0)
    kvread(1)
    for i in range(28):
        c, u = divmod(i, 4)
        if u == 2 and c < 6:
            arrive(c + 1)
            if c == 3 and opt("st4", 0):
                A.stamp()
                lq.clear()
                lq.extend([("T", i)] * 1 + [("T", i + 1)] * 0)
        if i + 2 < 28:
            kvread(i + 2)
        if ("T", i) in lq:
            lwait(("T", i))
        xf = XB + 16 * c + 4 * u
        A(mfma(AK, 64 + 8 * (i % 3), xf, AK))
        A(mfma(AV, xf, 64 + 8 * (i % 3) + 4, AV))
        drain(i, RATE)
    assert not pend
    A("s_load_dwordx2 s[4:5], s[0:1], 16")
    A("s_load_dwordx2 s[6:7], s[0:1], 40")
    A("s_load_dwordx2 s[28:29], s[0:1], 56")
    A.stamp()

    def publish():
        A("s_waitcnt vmcnt(0)")
        A("v_mov_b32 v9, 1")
        A(f"s_lshl_b32 s{S_T2}, s{S_TB}, 2")
        A(f"v_mov_b32 v11, s{S_T2}")
        A("s_mov_b64 exec, 1")
        A("ds_add_rtn_u32 v10, v5, v9")
        A(f"v_add_u32 v12, {SNAPL}, v11")
        A("ds_read_b32 v9, v12")
        A("s_waitcnt lgkmcnt(0)")
        A(f"v_readfirstlane_b32 s{S_T1}, v10")
        A("v_add_u32 v9, 1, v9")
        A("s_nop 0")
        A(f"s_cmp_lg_u32 s{S_T1}, 7")
        A("s_cbranch_scc1 L_ka_nopub")
        A(f"buffer_store_dword v9, v11, s[24:27], s{S_FL} offen sc1")
        A("L_ka_nopub:")
        A("s_mov_b64 exec, -1")

    qsteps = [(c, u) for c in range(7) for u in range(4)]
    fill = {}
    fill[0] = ["v_and_b32 v6, 0x13, v3", "v_bfe_u32 v7, v3, 2, 1", "v_lshl_or_b32 v6, v7, 3, v6",
               "v_bfe_u32 v7, v3, 3, 1", "v_lshl_or_b32 v6, v7, 2, v6", "v_lshl_add_u32 v6, v4, 5, v6",
               "v_lshlrev_b32 v6, 4, v6", f"v_add_u32 v7, s{S_LW}, v6", f"v_add_u32 v8, s{S_LW}, v1",
               f"s_lshl_b32 s{S_T0}, s{S_TT}, 12"]
    ZP = opt("zp", 1)
    fill[1] = ["s_mov_b32 exec_lo, 0", f"v_mov_b32 v{AK+12}, 1.0"] + \
              ([f"v_mov_b32 v{AK+r}, 0" for r in (13, 14, 15)] if ZP else []) + ["s_mov_b32 exec_lo, -1"] + \
              [f"v_cvt_pk_bf16_f32 v{PK+i}, v{AK+2*i}, v{AK+2*i+1}" for i in range(8)] + \
              [f"buffer_store_dwordx4 {vr(PK,4)}, v6, s[20:23], s{S_T0} offen sc1",
               f"buffer_store_dwordx4 {vr(PK+4,4)}, v6, s[20:23], s{S_T0} offen offset:1024 sc1"]
    fill[2] = [f"v_cvt_pk_bf16_f32 v{PV+i}, v{AV+2*i}, v{AV+2*i+1}" for i in range(8)]
    fill[3] = ["s_mov_b32 exec_lo, 0x10000000", "s_mov_b32 exec_hi, 0x10000000"] + \
              [f"v_mov_b32 v{PV+i}, 0x3f803f80" for i in range(8)] + \
              ((["s_mov_b32 exec_lo, 0xe0000000", "s_mov_b32 exec_hi, 0xe0000000"] +
                [f"v_mov_b32 v{PV+i}, 0" for i in range(8)]) if ZP else []) + ["s_mov_b64 exec, -1"] + \
              [f"buffer_store_dwordx4 {vr(PV,4)}, v1, s[20:23], s{S_T0} offen offset:2048 sc1",
               f"buffer_store_dwordx4 {vr(PV+4,4)}, v1, s[20:23], s{S_T0} offen offset:3072 sc1"]
    fill[4] = [f"ds_write_b128 v7, {vr(PK,4)}", f"ds_write_b128 v7, {vr(PK+4,4)} offset:1024"]
    fill[5] = [f"ds_write_b128 v8, {vr(PV,4)} offset:2048", f"ds_write_b128 v8, {vr(PV+4,4)} offset:3072"]
    zl = [O[0] + r for r in range(16)] + [O[1] + r for r in range(16)]
    for k in range(8):
        fill[6 + k] = [f"v_mov_b32 v{r}, 0" for r in zl[4 * k:4 * k + 4]]
    fill[17] = ["v_lshrrev_b32 v236, 2, v2", "v_mul_u32_u24 v236, 896, v236", "v_and_b32 v237, 3, v2",
                "v_lshl_add_u32 v236, v237, 4, v236", "v_add_u32 v237, 64, v236"]
    fill[25] = [f"s_xor_b32 s{S_T3}, s{S_LW}, 16384", f"v_add_u32 v7, s{S_T3}, v1",
                f"s_lshl_b32 s{S_T3}, s{S_KH}, 14", f"v_add_u32 v10, s{S_T3}, v1", f"v_mov_b32 v{VB}, v10",
                f"v_mov_b32 v{IDX}, 0xdddd"] + (["v_mov_b32 v232, 0"] if STAMP else [])
    fill[26] = [f"v_mov_b32 v{VF[3]+r}, 0" for r in range(4, 8)] + \
               [f"s_mov_b32 s{S_FLAGS}, 0", f"s_mov_b32 s{S_NEXT}, 1", f"s_mov_b32 s{S_REM}, 0xff",
                f"s_bitset0_b32 s{S_REM}, s{S_TB}",
                f"s_mov_b32 s{S_T3}, 0x{f32bits(QSCALE):08x}", f"s_mov_b32 s{S_T4}, 0x{f32bits(-LOG2E):08x}"]
    PUB_AT = opt("pubat", 6)
    BAR_AT = opt("barat", 10)
    POLL_AT = opt("pollat", 27)
    BAR_AT = opt("barat", 20)
    QD = opt("qd", 4)

    def qread(i):
        c, u = qsteps[i]
        for tp in range(2):
            A(f"ds_read_b64_tr_b16 {vr(64+4*(i%6)+2*tp,2)}, v15 offset:{c*4096 + u*512 + tp*256}")

    A("s_nop 1")
    for k in range(6):
        for ins in fill.pop(k):
            A(ins)
    A("s_waitcnt vmcnt(4)")
    A("s_mov_b32 exec_hi, 0x00ffffff")
    A("ds_write_b16 v13, v206")
    A("s_mov_b32 exec_hi, -1")
    A("s_waitcnt lgkmcnt(0)")
    srd(A, 12, 4, 401408)
    srd(A, 16, 6, 401408)
    srd(A, 52, 28, 1835008)
    A("s_barrier")
    A.stamp()
    for i in range(QD):
        qread(i)
    for i, (c, u) in enumerate(qsteps):
        if i == PUB_AT:
            publish()
        if i == POLL_AT:
            A(f"s_cmp_lg_u32 s{S_W}, s{S_POLL}")
            A("s_cbranch_scc1 L_ka_nopoll")
            A(f"buffer_load_dword v227, v225, s[24:27], s{S_FL} offen sc1")
            A("L_ka_nopoll:")
        seg_end = len(qsteps) - 1
        if i + QD <= seg_end:
            qread(i + QD)
        A(f"s_waitcnt lgkmcnt({2*(min(seg_end, i+QD)-i)})")
        A(mfma(AQ, 64 + 4 * (i % 6), XB + 16 * c + 4 * u, AQ))
        for ins in fill.get(i, []):
            A(ins)
    A.stamp()

    def rtile(q_, I):
        A(f"ds_read_b128 {vr(KF[I%2],4)}, v{VB} offset:{q_*4096}")
        A(f"ds_read_b128 {vr(KF[I%2]+4,4)}, v{VB} offset:{q_*4096+1024}")
        A(f"ds_read_b128 {vr(VF[I%4],4)}, v{VB} offset:{q_*4096+2048}")
        A(f"ds_read_b128 {vr(VF[I%4]+4,4)}, v{VB} offset:{q_*4096+3072}")

    rtile(0, 0)
    rtile(1, 1)
    for r in range(8, 16):
        A(f"v_mov_b32 v{S[3]+r}, 0")
    A(f"v_mul_f32 v12, s{S_T4}, v{AQ+12}")
    A("v_exp_f32 v12, v12")
    for r in range(16):
        A(f"v_mul_f32 v{AQ+r}, s{S_T3}, v{AQ+r}")
    for i in range(8):
        A(f"v_cvt_pk_bf16_f32 v{QF[1]+i}, v{AQ+2*i}, v{AQ+2*i+1}")
    A("s_mov_b32 exec_lo, 0")
    A(f"v_mov_b32 v{QF[1]+6}, 0")
    A(f"v_mov_b32 v{QF[1]+7}, 0")
    A("s_mov_b32 exec_lo, -1")
    A("s_waitcnt lgkmcnt(6)")
    A(mfma(S[1], KF[0], QF[1], None))
    A(mfma(S[1], KF[0] + 4, QF[1] + 4, S[1]))
    A(f"ds_write_b128 v8, {vr(QF[1],4)} offset:32768")
    A("v_add_f32 v12, 1.0, v12")
    A("v_rcp_f32 v12, v12")
    A(f"s_cmp_lg_u32 s{S_W}, s{S_POLL}")
    A("s_cbranch_scc1 L_ka_nofw")
    A("s_waitcnt vmcnt(0)")
    A(f"v_cmp_ne_u32 vcc, v227, v{VSNAP}")
    A(f"v_mov_b32 v11, {FLAGW}")
    A("s_nop 4")
    A(f"s_and_b32 s{S_FLAGS}, vcc_lo, 0xff")
    A(f"v_mov_b32 v9, s{S_FLAGS}")
    A("ds_write_b32 v11, v9")
    A("L_ka_nofw:")
    A(f"v_mul_f32 v12, s{S_GS}, v12")
    A(f"v_add_f32 v12, s{S_GO}, v12")
    A(f"v_mov_b32 v{GB[1]}, v12")
    A("s_nop 1")
    A(f"v_permlane32_swap_b32 v12, v{GB[1]}")
    A("s_nop 3")
    s0 = S[1]
    t = T
    A(f"v_max3_f32 v{t}, v{s0}, v{s0+1}, v{s0+2}")
    A(f"v_max3_f32 v{t+1}, v{s0+3}, v{s0+4}, v{s0+5}")
    A(f"v_max3_f32 v{t+2}, v{s0+6}, v{s0+7}, v{s0+8}")
    A(f"v_max3_f32 v{t+3}, v{s0+9}, v{s0+10}, v{s0+11}")
    A(f"v_max3_f32 v{t+4}, v{s0+12}, v{s0+13}, v{s0+14}")
    A(f"v_max3_f32 v{t}, v{t}, v{t+1}, v{s0+15}")
    A(f"v_max3_f32 v{t+2}, v{t+2}, v{t+3}, v{t+4}")
    A(f"v_max_f32 v{t}, v{t}, v{t+2}")
    A(f"v_mov_b32 v{t+1}, v{t}")
    A("s_nop 1")
    A(f"v_permlane32_swap_b32 v{t}, v{t+1}")
    A("s_nop 1")
    A(f"v_max_f32 v{t}, v{t}, v{t+1}")
    A(f"v_ashrrev_i32 v{t+1}, 31, v{t}")
    A(f"v_and_b32 v{t+1}, 0xffff, v{t+1}")
    A(f"v_add_u32 v{t}, v{t}, v{t+1}")
    A(f"v_lshrrev_b32 v{t}, 16, v{t}")
    A("s_mov_b32 exec_lo, 0")
    A(f"v_xor_b32 v{QF[1]+6}, 0x8000, v{t}")
    A("s_mov_b32 exec_lo, -1")
    A(f"ds_write_b128 v8, {vr(QF[1]+4,4)} offset:{32768+1024}")
    A("s_nop 0")
    A(mfma(S[1], KF[0], QF[1], None))
    A(mfma(S[1], KF[0] + 4, QF[1] + 4, S[1]))
    A("s_waitcnt lgkmcnt(0)")
    A("s_barrier")
    A.stamp()
    A(f"ds_read_b128 {vr(QF[0],4)}, v7 offset:{32768}")
    A(f"ds_read_b128 {vr(QF[0]+4,4)}, v7 offset:{32768+1024}")

    def dma_block():
        lbl = f"L_ka_fl{len(A.lines)}"
        A(f"s_and_b32 s{S_T0}, s{S_FLAGS}, s{S_REM}")
        A(f"s_cbranch_scc1 {lbl}_ok")
        A(f"s_mov_b32 s{S_SPIN}, 0")
        A(f"v_mov_b32 v8, {FLAGW}")
        A(f"{lbl}_spin:")
        A(f"s_cmp_lg_u32 s{S_W}, s{S_POLL}")
        A(f"s_cbranch_scc1 {lbl}_lds")
        A(f"buffer_load_dword v11, v225, s[24:27], s{S_FL} offen sc1")
        A("v_mov_b32 v9, 0")
        A(f"s_and_b32 s{S_T1}, s{S_SPIN}, 7")
        A(f"s_cmp_lg_u32 s{S_T1}, 7")
        A(f"s_cbranch_scc1 {lbl}_nodbg")
        A("buffer_load_dword v9, v9, s[56:59], s63 offen sc1")
        A(f"{lbl}_nodbg:")
        A("s_waitcnt vmcnt(0)")
        A(f"v_cmp_ne_u32 vcc, v11, v{VSNAP}")
        A("s_nop 4")
        A(f"s_or_b32 s{S_T1}, vcc_lo, s{S_FLAGS}")
        A(f"v_or_b32 v11, s{S_T1}, v9")
        A("v_and_b32 v11, 0xff, v11")
        A("ds_write_b32 v8, v11")
        A(f"s_add_u32 s{S_SPIN}, s{S_SPIN}, 16")
        A(f"s_branch {lbl}_chk")
        A(f"{lbl}_lds:")
        A("ds_read_b32 v11, v8")
        A("s_waitcnt lgkmcnt(0)")
        A(f"{lbl}_chk:")
        A(f"v_readfirstlane_b32 s{S_FLAGS}, v11")
        A(f"s_add_u32 s{S_SPIN}, s{S_SPIN}, 1")
        A(f"s_mov_b32 s{S_T0}, s{S_REM}")
        A(f"s_cmp_ge_u32 s{S_SPIN}, 0x1000000")
        A(f"s_cbranch_scc1 {lbl}_ok")
        A(f"s_and_b32 s{S_T0}, s{S_FLAGS}, s{S_REM}")
        A(f"s_cbranch_scc1 {lbl}_ok")
        A(f"s_sleep {opt('sleep', 1)}")
        A(f"s_branch {lbl}_spin")
        A(f"{lbl}_ok:")
        A(f"s_lshl_b32 s{S_T1}, s{S_T0}, 8")
        A(f"s_or_b32 s{S_T0}, s{S_T0}, s{S_T1}")
        A(f"s_lshr_b32 s{S_T0}, s{S_T0}, s{S_TB}")
        A(f"s_ff1_i32_b32 s{S_T0}, s{S_T0}")
        A(f"s_add_u32 s{S_T0}, s{S_T0}, s{S_TB}")
        A(f"s_and_b32 s{S_T0}, s{S_T0}, 7")
        A(f"s_bitset0_b32 s{S_REM}, s{S_T0}")
        A(f"s_lshl_b32 s{S_T0}, s{S_T0}, 15")
        A(f"s_add_u32 s{S_T0}, s{S_T0}, s{S_LW}")
        tab = sum(sl_ << (4 * j) for j, sl_ in enumerate(SLOT_OF_BLOCK))
        A(f"s_lshl_b32 s{S_T1}, s{S_NEXT}, 2")
        A(f"s_lshr_b32 s{S_T1}, 0x{tab:08x}, s{S_T1}")
        A(f"s_and_b32 s{S_T1}, s{S_T1}, 15")
        A(f"s_lshl_b32 s{S_T1}, s{S_T1}, 15")
        A(f"s_add_u32 m0, s{S_T1}, s{S_LW}")
        A(f"s_add_u32 s{S_NEXT}, s{S_NEXT}, 1")
        for i in range(4):
            A(f"buffer_load_dwordx4 v1, s[20:23], s{S_T0} offen offset:{i*1024} sc1 lds")

    dma_block()
    A("s_waitcnt lgkmcnt(0)")
    A(mfma(S[0], KF[0], QF[0], None))
    A(mfma(S[0], KF[0] + 4, QF[0] + 4, S[0]))
    D2 = opt("d2", 1)
    if not D2:
        dma_block()
    else:
        A("s_nop 7")
        A("s_nop 1")
    CN = [None, None]

    PRIO = opt("prio", 1)

    def unit(I, s, q=None, do_qk=True, first=False):
        u = 2 * I + s
        sc = S[u % 4]
        sp = S[(u - 1) % 4]
        sn = S[(u + 2) % 4]
        E = lambda r: A(f"v_exp_f32 v{sc+r}, v{sc+r}")
        if s == 0:
            A("s_waitcnt lgkmcnt(0)")
        E(0); E(1)
        if s == 0:
            A(smfmac(O[1], VF[(I - 1) % 4] + 4, sp + 8, IDX))
        else:
            A(smfmac(O[0], VF[I % 4] + 4, sp + 8, IDX))
        if s == 0 and q is not None:
            A(f"ds_read_b128 {vr(KF[I%2],4)}, v{VB} offset:{q*4096}")
            A(f"ds_read_b128 {vr(KF[I%2]+4,4)}, v{VB} offset:{q*4096+1024}")
        E(2); E(3); E(4); E(5)
        if do_qk:
            A(mfma(sn, KF[(I + 1) % 2], QF[s], CN[s]))
        if s == 0 and q is not None:
            A(f"ds_read_b128 {vr(VF[(I+2)%4],4)}, v{VB} offset:{q*4096+2048}")
            A(f"ds_read_b128 {vr(VF[(I+2)%4]+4,4)}, v{VB} offset:{q*4096+3072}")
        E(6); E(7); E(8); E(9)
        if do_qk:
            A(mfma(sn, KF[(I + 1) % 2] + 4, QF[s] + 4, sn))
        E(10); E(11); E(12); E(13)
        A(smfmac(O[s], VF[I % 4], sc, IDX))
        E(14); E(15)

    def iteration(I, q, do_qk=True, prio=None, mid=None, mid2=None):
        if opt("al", 2) >= 2:
            A(".p2align 3")
        if PRIO and prio is not None:
            A(f"s_setprio {prio}")
        unit(I, 0, q, do_qk)
        if mid:
            mid()
            if opt("al", 2) >= 2:
                A(".p2align 3")
        unit(I, 1, q, do_qk)

    tab = sum(sl_ << (4 * j) for j, sl_ in enumerate(SLOT_OF_BLOCK))

    def next_vb():
        A(f"s_lshl_b32 s{S_T1}, s{S_JB}, 2")
        A(f"s_lshr_b32 s{S_T1}, 0x{tab >> 4:08x}, s{S_T1}")
        A(f"s_and_b32 s{S_T1}, s{S_T1}, 15")
        A(f"s_lshl_b32 s{S_T1}, s{S_T1}, 15")
        A(f"v_add_u32 v{VB}, s{S_T1}, v10")
        A(f"s_add_u32 s{S_JB}, s{S_JB}, 1")
        if opt("al", 2):
            A("s_nop 0")

    WO_REGION = [131072, 0, 65536, 32768]

    def wo_stage(kq, warm=False):
        srdn = "s[12:15]" if kq < 2 else "s[16:19]"
        A(f"s_min_u32 s{S_T0}, s{S_W}, 6")
        A(f"s_mul_i32 s{S_T1}, s{S_T0}, {2*14336}")
        A(f"s_lshl_b32 s{S_T2}, s{S_CB}, 7")
        A(f"s_add_u32 s{S_T1}, s{S_T1}, s{S_T2}")
        if kq & 1:
            A(f"s_add_u32 s{S_T1}, s{S_T1}, 200704")
        A(f"s_lshl_b32 s{S_T0}, s{S_T0}, 11")
        for i in range(4):
            if i == 2:
                A(f"s_add_u32 s{S_T1}, s{S_T1}, 14336")
            if warm:
                if i % 2 == 0:
                    A(f"buffer_load_dwordx4 v[228:231], v236, {srdn}, s{S_T1} offen")
            else:
                A(f"s_add_u32 m0, s{S_T0}, {WO_REGION[kq] + (i & 1)*14336 + (i >> 1)*1024}")
                A("s_nop 0")
                A(f"buffer_load_dwordx4 v{236 + (i & 1)}, {srdn}, s{S_T1} offen lds")

    def side_call(kh):
        def f():
            A(f"s_cmp_eq_u32 s{S_KH}, {kh}")
            A("s_cbranch_scc1 L_ka_sidein")
            A(f"L_ka_ret{kh}:")
        return f

    def side_blocks():
        A("L_ka_sidein:")
        A(f"s_cmp_eq_u32 s{S_JB}, 5")
        A("s_cbranch_scc1 L_ka_x4")
        A("L_ka_x4r:")
        A(f"s_cmp_ge_u32 s{S_JB}, 6")
        A("s_cbranch_scc1 L_ka_nodma")
        dma_block()
        A("L_ka_nodma:")
        A(f"s_bitcmp1_b32 0x7e, s{S_JB}")
        A("s_cbranch_scc1 L_ka_side")
        A("L_ka_nodma2:")
        A(f"s_cmp_eq_u32 s{S_KH}, 0")
        A("s_cbranch_scc1 L_ka_ret0")
        A("s_branch L_ka_ret1")
        A("L_ka_x4:")
        A(f"s_cmp_lg_u32 s{S_W}, s{S_POLL}")
        A("s_cbranch_scc1 L_ka_x4r")
        A("v_lshlrev_b32 v235, 2, v2")
        A("buffer_load_dword v235, v235, s[56:59], 0 offen sc1")
        A("s_branch L_ka_x4r")
        A("L_ka_side:")
        for jb in (3, 4, 5, 6):
            A(f"s_cmp_eq_u32 s{S_JB}, {jb}")
            A(f"s_cbranch_scc1 L_ka_s{jb}")
        A(f"s_cmp_lg_u32 s{S_W}, 1")
        A("s_cbranch_scc1 L_ka_nodma2")
        A(f"s_and_b32 s{S_T1}, s{S_TB}, 1")
        A(f"s_add_u32 s{S_T1}, s{S_T1}, 1")
        A(f"s_cmp_lg_u32 s{S_T1}, s{S_JB}")
        A("s_cbranch_scc1 L_ka_nodma2")
        A(f"s_lshl_b32 s{S_T1}, 0x101, s{S_TB}")
        A(f"v_mov_b32 v9, s{S_T1}")
        A("v_mov_b32 v11, 0")
        A("s_mov_b64 exec, 1")
        A("buffer_atomic_or v9, v11, s[56:59], s63 offen sc1")
        A("s_mov_b64 exec, -1")
        A("s_branch L_ka_nodma2")
        A("L_ka_s3:")
        wo_stage(0)
        A("s_branch L_ka_nodma2")
        A("L_ka_s4:")
        wo_stage(3, warm=True)
        A("s_branch L_ka_nodma2")
        A("L_ka_s5:")
        wo_stage(1)
        A("s_branch L_ka_nodma2")
        A("L_ka_s6:")
        wo_stage(2)
        A(f"s_cmp_lg_u32 s{S_W}, s{S_POLL}")
        A("s_cbranch_scc1 L_ka_nodma2")
        A("v_bfe_u32 v235, v235, 8, 8")
        A("v_mov_b32 v9, 0xff")
        A("v_cmp_eq_u32 vcc, v235, v9")
        A(f"v_mov_b32 v9, {CNT_ADDR}")
        A("v_mov_b32 v11, 1")
        A("s_nop 3")
        A(f"s_and_b32 s{S_T0}, vcc_lo, vcc_hi")
        A(f"s_and_b32 s{S_T0}, s{S_T0}, 0x55555555")
        A(f"s_cmp_lg_u32 s{S_T0}, 0x55555555")
        A("s_cbranch_scc1 L_ka_nodma2")
        A(f"ds_write_b32 v9, v11 offset:{REGOK_OFF}")
        A("s_branch L_ka_nodma2")

    A.stamp()
    if DT:
        A("s_memrealtime s[72:73]")
        A("s_waitcnt lgkmcnt(0)")
    A(f"s_mov_b32 s{S_JB}, 0")
    iteration(0, 2, prio=1, mid=dma_block if D2 else None)
    iteration(1, 3, prio=0, mid=next_vb)
    A(".p2align 6")
    A("L_ka_loop:")
    LST = STAMP and opt("lst", 0)
    if LST:
        A("s_memtime s[94:95]")
        A(f"s_mov_b32 m0, s{S_JB}")
        A("s_waitcnt lgkmcnt(0)")
        A(f"v_writelane_b32 v232, s94, m0")
    A(f"s_cmp_ge_u32 s{S_JB}, 7")
    A("s_cbranch_scc1 L_ka_w0")
    A("s_waitcnt vmcnt(4)")
    A("s_barrier")
    A("L_ka_w1:")
    if LST:
        A("s_memtime s[94:95]")
        A(f"s_add_u32 m0, s{S_JB}, 16")
        A("s_waitcnt lgkmcnt(0)")
        A(f"v_writelane_b32 v232, s94, m0")
    p0, p1 = opt("p0", 0), opt("p1", 1)
    mids = [None, None, None]
    if p0 == p1:
        mids[p0] = lambda: (side_call(0)(), side_call(1)())
    else:
        mids[p0] = side_call(0)
        mids[p1] = side_call(1)
    iteration(2, 0, prio=3, mid=mids[0])
    iteration(3, 1, prio=2, mid=mids[1])
    iteration(4, 2, prio=1, mid=mids[2])
    iteration(5, 3, prio=0, mid=next_vb)
    A(f"s_cmp_lt_u32 s{S_JB}, 8")
    A("s_cbranch_scc1 L_ka_loop")

    def tail_addr():
        A(f"s_add_u32 s{S_T0}, s{S_LW}, 98304")
        A(f"v_add_u32 v8, s{S_T0}, v1")
        A(f"s_xor_b32 s{S_T0}, s{S_T0}, 16384")
        A(f"v_add_u32 v9, s{S_T0}, v1")
        A(f"s_mov_b32 s66, 0")

    iteration(30, None, True, prio=1, mid=tail_addr)
    iteration(31, None, False, prio=0)
    for r4 in range(4):
        A(f"ds_write_b128 v8, {vr(O[0]+4*r4,4)} offset:{r4*1024}")
    A(smfmac(O[1], VF[31 % 4] + 4, S[3] + 8, IDX))
    A.stamp()
    if DT:
        A("s_memrealtime s[74:75]")
        A("s_waitcnt lgkmcnt(0)")
    A("s_waitcnt lgkmcnt(0)")
    A("s_barrier")
    for r4 in (3, 0, 1, 2):
        A(f"ds_read_b128 {vr(O[0]+4*r4,4)}, v9 offset:{r4*1024}")
    A(f"v_mov_b32 v235, {CNT_ADDR}")
    A(f"ds_read_b32 v235, v235 offset:{REGOK_OFF}")
    A("s_nop 4")
    A("s_waitcnt lgkmcnt(4)")
    OK_, OO = O[1], O[0]
    F1 = T + 4
    A("L_ka_fin:")
    A(f"v_add_f32 v{T+3}, v{OK_+12}, v{OO+12}")
    A(f"v_mov_b32 v{T+4}, v{T+3}")
    A("s_nop 1")
    A(f"v_permlane32_swap_b32 v{T+3}, v{T+4}")
    A("s_nop 1")
    A(f"v_rcp_f32 v{T+4}, v{T+4}")
    A("s_waitcnt lgkmcnt(0)")
    R = S[1]
    for r in range(0, 8, 2):
        A(f"v_pk_add_f32 {vr(R+r,2)}, {vr(OK_+r,2)}, {vr(OO+r,2)}")
    A(f"v_mul_f32 v{F1}, v{T+4}, v{GB[1]}")
    for r in range(8, 16, 2):
        A(f"v_pk_add_f32 {vr(R+r,2)}, {vr(OK_+r,2)}, {vr(OO+r,2)}")
    for half in range(2):
        for r in range(8 * half, 8 * half + 8, 2):
            A(f"v_pk_mul_f32 {vr(R+r,2)}, {vr(R+r,2)}, {vr(F1,2)} op_sel_hi:[1,0]")
        for i in range(4 * half, 4 * half + 4):
            A(f"v_cvt_pk_bf16_f32 v{S[0]+i}, v{R+2*i}, v{R+2*i+1}")
        if half:
            A("s_mov_b32 exec_lo, 0")
            A(f"v_mov_b32 v{S[0]+6}, 0")
            A(f"v_mov_b32 v{S[0]+7}, 0")
            A("s_mov_b32 exec_lo, -1")
        A(f"buffer_store_dwordx4 {vr(S[0]+4*half,4)}, v1, s[24:27], s64 offen offset:{1024*half} sc1")
    A(f"v_maximum3_f32 v{T+3}, abs(v{R}), abs(v{R+1}), abs(v{R+2})")
    for r in range(3, 15, 2):
        A(f"v_maximum3_f32 v{T+3}, v{T+3}, abs(v{R+r}), abs(v{R+r+1})")
    A(f"v_maximum3_f32 v{T+3}, v{T+3}, abs(v{R+15}), abs(v{R+15})")
    A("s_mov_b32 s65, 0x7f000000")
    A(f"v_cmp_nlt_f32 vcc, v{T+3}, s65")
    A("s_cmp_lg_u32 s66, 0")
    A("s_cbranch_scc1 L_ka_st")
    A("s_nop 2")
    A("s_cmp_lg_u64 vcc, 0")
    A("s_cbranch_scc1 L_ka_slow")
    A("L_ka_st:")
    wo_stage(3)
    ACC = [16, 32]
    AB3 = 64
    WF3 = [136, 144]
    A(f"v_readfirstlane_b32 s{S_T0}, v235")
    A("v_add_u32 v238, 1, v233")
    A(f"s_lshl_b32 s{S_T1}, s{S_KQ}, 2")
    A(f"s_lshr_b32 s{S_T1}, 0x1204, s{S_T1}")
    A(f"s_and_b32 s{S_T1}, s{S_T1}, 15")
    A(f"s_lshl_b32 s{S_T1}, s{S_T1}, 15")
    A("v_bfe_u32 v9, v2, 2, 2")
    A("v_lshlrev_b32 v7, 6, v9")
    A("v_bfe_u32 v9, v2, 4, 1")
    A("v_lshl_add_u32 v7, v9, 5, v7")
    A("v_and_b32 v9, 3, v2")
    A("v_lshl_add_u32 v7, v9, 3, v7")
    A(f"v_add_u32 v7, s{S_T1}, v7")
    A("v_lshl_add_u32 v8, v4, 8, v7")
    for r in range(32):
        A(f"v_mov_b32 v{16+r}, 0")
    A(f"s_lshl_b32 s{S_T2}, s{S_QC}, 16")
    A(f"s_lshl_b32 s{S_T1}, s{S_KQ}, 14")
    A(f"s_add_u32 s{S_T2}, s{S_T2}, s{S_T1}")
    A(f"s_add_u32 s{S_T2}, s{S_T2}, {OF_OFF}")
    A(f"s_cmp_lg_u32 s{S_T0}, 0")
    A("s_cbranch_scc0 L_ka_regspin")
    A("L_ka_regok:")
    A("s_waitcnt vmcnt(4)")
    A.stamp()
    A("s_mov_b64 exec, 1")
    A("buffer_store_dword v238, v234, s[24:27], s11 offen sc1")
    A("s_mov_b64 exec, -1")
    A("s_cmp_ge_u32 s2, 224")
    A("s_cbranch_scc1 L_ka_done")
    A("s_waitcnt vmcnt(1)")
    A("s_barrier")
    A(f"s_mov_b32 s{S_SPIN}, 0")
    A(f"v_mov_b32 v10, {CNT_ADDR}")
    A(f"s_and_b32 s{S_T3}, s{S_W}, 1")
    A(f"s_lshl_b32 s{S_T3}, s{S_T3}, 5")
    A(f"s_lshl_b32 s{S_T4}, s{S_KQ}, 3")
    A(f"s_add_u32 s{S_T3}, s{S_T3}, s{S_T4}")
    A(f"s_cmp_lg_u32 s{S_W}, 0")
    A("s_cbranch_scc1 L_ka_p3lds")
    A("L_ka_p3spin:")
    A("buffer_load_dword v9, v239, s[24:27], s11 offen sc1")
    A("s_waitcnt vmcnt(0)")
    A("v_cmp_ne_u32 vcc, v9, v240")
    A(f"s_add_u32 s{S_SPIN}, s{S_SPIN}, 1")
    A("s_nop 3")
    A("v_mov_b32 v12, vcc_lo")
    A("v_mov_b32 v13, vcc_hi")
    A("ds_write_b64 v10, v[12:13] offset:80")
    A("s_cmp_eq_u64 vcc, -1")
    A("s_cbranch_scc1 L_ka_p3go")
    A(f"s_cmp_ge_u32 s{S_SPIN}, 0x100000")
    A("s_cbranch_scc1 L_ka_p3go")
    A(f"s_sleep {opt('sleep3', 4)}")
    A("s_branch L_ka_p3spin")
    A("L_ka_p3lds:")
    A("ds_read_b64 v[12:13], v10 offset:80")
    A("s_waitcnt lgkmcnt(0)")
    A("v_readfirstlane_b32 s4, v12")
    A("v_readfirstlane_b32 s5, v13")
    A(f"s_add_u32 s{S_SPIN}, s{S_SPIN}, 1")
    A("s_nop 1")
    A(f"s_lshr_b64 s[4:5], s[4:5], s{S_T3}")
    A("s_and_b32 s4, s4, 0xff")
    A("s_cmp_eq_u32 s4, 0xff")
    A("s_cbranch_scc1 L_ka_p3go")
    A(f"s_cmp_ge_u32 s{S_SPIN}, 0x1000000")
    A("s_cbranch_scc1 L_ka_p3go")
    A("s_sleep 1")
    A("s_branch L_ka_p3lds")
    A("L_ka_p3go:")
    A.stamp()
    for ks in range(16):
        if ks and ks % 4 == 0:
            A(f"s_add_u32 s{S_T2}, s{S_T2}, 4096")
        A(f"buffer_load_dwordx4 {vr(AB3+4*ks,4)}, v1, s[24:27], s{S_T2} offen offset:{(ks%4)*1024} sc1")

    def tr3(ks, st):
        for ct in range(2):
            for tp in range(2):
                hd, s_ = divmod(ks, 2)
                base = "v7" if (s_ == 1 and tp == 1) else "v8"
                A(f"ds_read_b64_tr_b16 {vr(WF3[st]+4*ct+2*tp,2)}, {base} offset:{ct*14336 + (28*hd + 16*s_ + 8*tp)*64}")

    tr3(0, 0)
    A(f"s_lshl_b32 s{S_T0}, s{S_W}, 13")
    A(f"s_and_b32 s{S_T1}, s{S_W}, 1")
    A(f"s_lshl_b32 s{S_T0}, s{S_T1}, 15")
    A(f"s_lshl_b32 s{S_T3}, s{S_KQ}, 13")
    A(f"s_add_u32 s{S_T3}, s{S_T3}, s{S_T0}")
    A(f"v_add_u32 v10, s{S_T3}, v1")
    A(f"s_and_b32 s{S_T3}, s{S_KQ}, 1")
    A(f"s_lshr_b32 s{S_T4}, s{S_KQ}, 1")
    A(f"s_lshl_b32 s{S_T1}, s{S_T3}, 12")
    A(f"s_add_u32 s{S_T0}, s{S_T0}, s{S_T1}")
    A(f"s_lshl_b32 s{S_T1}, s{S_T4}, 11")
    A(f"s_add_u32 s{S_T0}, s{S_T0}, s{S_T1}")
    A(f"v_add_u32 v11, s{S_T0}, v1")
    A("v_mul_u32_u24 v12, 896, v3")
    A("v_lshl_add_u32 v12, v4, 4, v12")
    A(f"s_mul_i32 s{S_T0}, s{S_QC}, 28672")
    A(f"s_lshl_b32 s{S_T1}, s{S_CB}, 7")
    A(f"s_add_u32 s{S_T0}, s{S_T0}, s{S_T1}")
    A(f"s_lshl_b32 s{S_T1}, s{S_T3}, 6")
    A(f"s_add_u32 s{S_T0}, s{S_T0}, s{S_T1}")
    A(f"s_lshl_b32 s{S_T1}, s{S_T4}, 5")
    A(f"s_add_u32 s{S_T0}, s{S_T0}, s{S_T1}")
    for ks in range(16):
        st = ks % 2
        if ks < 15:
            tr3(ks + 1, 1 - st)
            A(f"s_waitcnt vmcnt({15-ks}) lgkmcnt(4)")
        else:
            A("s_waitcnt vmcnt(0) lgkmcnt(0)")
        for ct in range(2):
            A(mfma(ACC[ct], WF3[st] + 4 * ct, AB3 + 4 * ks, ACC[ct]))
    A.stamp()
    A("s_barrier")
    A("s_nop 7")
    A("s_nop 3")
    for ct in range(2):
        for r4 in range(4):
            A(f"ds_write_b128 v10, {vr(ACC[ct]+4*r4,4)} offset:{ct*4096+r4*1024}")
    A("s_waitcnt lgkmcnt(0)")
    A("s_barrier")
    for k in range(4):
        for h2 in range(2):
            A(f"ds_read_b128 {vr(AB3+8*k+4*h2,4)}, v11 offset:{k*8192+h2*1024}")
    A("s_waitcnt lgkmcnt(4)")
    for r in range(8):
        A(f"v_add_f32 v{AB3+r}, v{AB3+r}, v{AB3+8+r}")
    A("s_waitcnt lgkmcnt(0)")
    for r in range(8):
        A(f"v_add_f32 v{AB3+16+r}, v{AB3+16+r}, v{AB3+24+r}")
    for r in range(8):
        A(f"v_add_f32 v{AB3+r}, v{AB3+r}, v{AB3+16+r}")
    for i in range(4):
        A(f"v_cvt_pk_bf16_f32 v{16+i}, v{AB3+2*i}, v{AB3+2*i+1}")
    A("s_nop 1")
    A("v_permlane32_swap_b32 v16, v18")
    A("v_permlane32_swap_b32 v17, v19")
    A("s_nop 1")
    A(f"buffer_store_dwordx4 v[16:19], v12, s[52:55], s{S_T0} offen {opt('outf', '').replace('+', ' ')}")
    A("L_ka_done:")
    if DT:
        A("s_waitcnt vmcnt(0)")
        A("s_memrealtime s[76:77]")
        A(f"s_cmp_lg_u32 s{S_W}, 0")
        A("s_waitcnt lgkmcnt(0)")
        A("s_cbranch_scc1 L_ka_end")
        A("s_mov_b64 exec, 1")
        A("v_mov_b32 v0, 0")
        A("s_not_b32 s78, s70")
        for off, sr in ((4, 76), (12, 78), (20, 72), (28, 74), (36, 70)):
            A(f"v_mov_b32 v1, s{sr}")
            A(f"buffer_atomic_umax v1, v0, s[56:59], 0 offen offset:{off} sc1")
            A("s_nop 1")
    if STAMP:
        A("s_mov_b64 exec, -1")
        A(f"s_mul_i32 s67, s2, 8")
        A(f"s_add_u32 s67, s67, s{S_W}")
        A("s_lshl_b32 s67, s67, 8")
        A(f"s_add_u32 s67, s67, {STAMP_OFF + 2*(1<<20)}")
        A("v_lshlrev_b32 v0, 2, v2")
        A("v_mov_b32 v1, s68")
        A("v_sub_u32 v232, v232, v1")
        A("buffer_store_dword v232, v0, s[24:27], s67 offen")
    A.stamp_flush(0, S_W, 8)
    A("L_ka_end:")
    A("s_endpgm")
    A("L_ka_w0:")
    A("s_waitcnt vmcnt(0)")
    A("s_barrier")
    A("s_branch L_ka_w1")
    side_blocks()
    A("L_ka_regspin:")
    A(f"s_mov_b32 s{S_SPIN}, 0")
    A("L_ka_regspin2:")
    A("v_lshlrev_b32 v235, 2, v2")
    A("buffer_load_dword v235, v235, s[56:59], 0 offen sc1")
    A("v_mov_b32 v9, 0xff")
    A("s_waitcnt vmcnt(0)")
    A("v_bfe_u32 v235, v235, 8, 8")
    A("v_cmp_eq_u32 vcc, v235, v9")
    A(f"s_add_u32 s{S_SPIN}, s{S_SPIN}, 1")
    A("s_nop 3")
    A(f"s_and_b32 s{S_T0}, vcc_lo, vcc_hi")
    A(f"s_and_b32 s{S_T0}, s{S_T0}, 0x55555555")
    A(f"s_cmp_eq_u32 s{S_T0}, 0x55555555")
    A("s_cbranch_scc1 L_ka_regok")
    A(f"s_cmp_ge_u32 s{S_SPIN}, 0x100000")
    A("s_cbranch_scc1 L_ka_regok")
    A("s_sleep 8")
    A("s_branch L_ka_regspin2")
    A("L_ka_slow:")
    M = T + 5
    s0 = S[0]
    A("s_waitcnt vmcnt(0) lgkmcnt(0)")
    for r in range(16):
        A(f"v_mov_b32 v{OK_+r}, 0")
        A(f"v_mov_b32 v{OO+r}, 0")
    A(f"v_mov_b32 v{M}, 0xff7fffff")
    A("L_ka_slow_loop:")
    A(f"buffer_load_dwordx4 {vr(KF[0],4)}, v1, s[20:23], s66 offen sc1")
    A(f"buffer_load_dwordx4 {vr(KF[0]+4,4)}, v1, s[20:23], s66 offen offset:1024 sc1")
    A(f"buffer_load_dwordx4 {vr(VF[0],4)}, v1, s[20:23], s66 offen offset:2048 sc1")
    A(f"buffer_load_dwordx4 {vr(VF[0]+4,4)}, v1, s[20:23], s66 offen offset:3072 sc1")
    A("s_waitcnt vmcnt(0)")
    A(mfma(s0, KF[0], QF[1], None))
    A(mfma(s0, KF[0] + 4, QF[1] + 4, s0))
    A("s_nop 15")
    A("s_nop 3")
    A(f"v_max3_f32 v{T}, v{s0}, v{s0+1}, v{s0+2}")
    for r in range(3, 15, 2):
        A(f"v_max3_f32 v{T}, v{T}, v{s0+r}, v{s0+r+1}")
    A(f"v_max_f32 v{T}, v{T}, v{s0+15}")
    A(f"v_mov_b32 v{T+1}, v{T}")
    A("s_nop 1")
    A(f"v_permlane32_swap_b32 v{T}, v{T+1}")
    A("s_nop 1")
    A(f"v_max3_f32 v{T}, v{T}, v{T+1}, v{M}")
    A(f"v_sub_f32 v{T+1}, v{M}, v{T}")
    A(f"v_exp_f32 v{T+1}, v{T+1}")
    A(f"v_mov_b32 v{M}, v{T}")
    for r in range(16):
        A(f"v_sub_f32 v{s0+r}, v{s0+r}, v{T}")
    for r in range(16):
        A(f"v_exp_f32 v{s0+r}, v{s0+r}")
    for r in range(16):
        A(f"v_mul_f32 v{OK_+r}, v{OK_+r}, v{T+1}")
    A("s_nop 3")
    A(smfmac(OK_, VF[0], s0, IDX))
    A(smfmac(OK_, VF[0] + 4, s0 + 8, IDX))
    A("s_nop 15")
    A("s_nop 3")
    A("s_add_u32 s66, s66, 4096")
    A("s_cmp_lt_u32 s66, 262144")
    A("s_cbranch_scc1 L_ka_slow_loop")
    A("s_branch L_ka_fin")
    A("L_ka_last:")
    return A.text(), 248, 68


def gen_kb():
    A = Asm()
    ACC = [16, 32, 48, 64]
    WF = [80, 88]
    AB = 96
    A("s_cmp_ge_u32 s2, 224")
    A("s_cbranch_scc1 L_k3_end")
    A.stamp()
    A("s_load_dwordx2 s[4:5], s[0:1], 16")
    A("s_load_dwordx2 s[6:7], s[0:1], 40")
    A("s_load_dwordx2 s[8:9], s[0:1], 56")
    A("s_load_dwordx2 s[28:29], s[0:1], 72")
    A("s_and_b32 s30, s2, 7")
    A("s_lshr_b32 s31, s2, 3")
    A("s_and_b32 s32, s31, 3")
    A("s_lshl_b32 s30, s30, 2")
    A("s_add_u32 s32, s32, s30")
    A("s_lshr_b32 s33, s31, 2")
    A("v_lshrrev_b32 v1, 6, v0")
    A("v_and_b32 v2, 63, v0")
    A("v_readfirstlane_b32 s35, v1")
    A("v_lshlrev_b32 v1, 4, v2")
    A("v_lshrrev_b32 v3, 2, v2")
    A("v_and_b32 v4, 3, v2")
    A("v_mul_u32_u24 v5, 896, v3")
    A("v_lshl_add_u32 v5, v4, 4, v5")
    A("v_add_u32 v6, 64, v5")
    A("v_lshrrev_b32 v7, 5, v2")
    A("v_and_b32 v8, 31, v2")
    A("s_mul_i32 s41, s35, 28672")
    A("v_lshlrev_b32 v9, 9, v7")
    A("v_bfe_u32 v10, v2, 2, 2")
    A("v_lshl_add_u32 v9, v10, 6, v9")
    A("v_bfe_u32 v10, v2, 4, 1")
    A("v_lshl_add_u32 v9, v10, 5, v9")
    A("v_lshl_add_u32 v9, v4, 3, v9")
    A("v_add_u32 v9, s41, v9")
    A("s_and_b32 s36, s35, 1")
    A("s_mul_i32 s36, s36, 200704")
    A("s_lshl_b32 s37, s33, 7")
    A("s_add_u32 s36, s36, s37")
    A("s_mul_i32 s38, s32, 114688")
    A("s_mul_i32 s39, s35, 14336")
    A("s_add_u32 s38, s38, s39")
    A(f"s_add_u32 s38, s38, {OF_OFF}")
    A("s_and_b32 s48, s32, 3")
    A("s_lshl_b32 s48, s48, 2")
    A("s_lshr_b32 s48, 0xa730, s48")
    A("s_and_b32 s48, s48, 15")
    A("s_lshl_b32 s49, s33, 1")
    A("s_add_u32 s48, s48, s49")
    A("s_cmp_ge_u32 s48, 14")
    A("s_cselect_b32 s49, 14, 0")
    A("s_sub_u32 s48, s48, s49")
    if not opt("rotb", 1):
        A("s_mov_b32 s48, 0")
    A("s_add_u32 s50, s38, 14336")
    A("s_mul_i32 s49, s48, 14336")
    A("s_add_u32 s36, s36, s49")
    A("s_lshl_b32 s49, s48, 10")
    A("s_add_u32 s38, s38, s49")
    A("s_add_u32 s39, s38, 57344")
    A("s_cmp_ge_u32 s35, 2")
    A("s_waitcnt lgkmcnt(0)")
    A("s_cselect_b32 s4, s6, s4")
    A("s_cselect_b32 s5, s7, s5")
    A.stamp()
    srd(A, 12, 4, 401408)
    srd(A, 16, 8, 1835008)
    srd(A, 24, 28, WS_USED)
    A("s_mov_b32 s42, s41")

    def loads(ks):
        A("s_mov_b32 m0, s42")
        A("s_add_u32 s42, s42, 1024")
        A("buffer_load_dwordx4 v5, s[12:15], s36 offen lds")
        A("s_mov_b32 m0, s42")
        A("s_add_u32 s42, s42, 1024")
        A("buffer_load_dwordx4 v6, s[12:15], s36 offen lds")
        A(f"buffer_load_dwordx4 {vr(AB+8*ks,4)}, v1, s[24:27], s38 offen")
        A(f"buffer_load_dwordx4 {vr(AB+8*ks+4,4)}, v1, s[24:27], s39 offen")
        if ks < 13:
            A("s_add_u32 s36, s36, 14336")
            A("s_add_u32 s38, s38, 1024")
            A("s_cmp_ge_u32 s38, s50")
            A("s_cselect_b32 s49, 14336, 0")
            A("s_cselect_b32 s51, 200704, 0")
            A("s_sub_u32 s38, s38, s49")
            A("s_sub_u32 s36, s36, s51")
            A("s_add_u32 s39, s38, 57344")

    D = opt("bd", 6)
    for ks in range(D):
        loads(ks)
    A.stamp()
    for r in range(16, 80):
        A(f"v_mov_b32 v{r}, 0")

    def trreads(ks, st):
        for ct in range(2):
            for tp in range(2):
                A(f"ds_read_b64_tr_b16 {vr(WF[st]+4*ct+2*tp,2)}, v9 offset:{(ks*2+ct)*1024+tp*256}")

    A(f"s_waitcnt vmcnt({4*(D-1)})")
    A.stamp()
    trreads(0, 0)
    for ks in range(14):
        st = ks % 2
        if ks + D < 14:
            loads(ks + D)
        if ks < 13:
            A(f"s_waitcnt vmcnt({4*(min(13, ks+D)-(ks+1))})")
            trreads(ks + 1, 1 - st)
            A("s_waitcnt lgkmcnt(4)")
        else:
            A("s_waitcnt lgkmcnt(0)")
        for ti in range(2):
            for ct in range(2):
                A(mfma(ACC[ti * 2 + ct], WF[st] + 4 * ct, AB + 8 * ks + 4 * ti, ACC[ti * 2 + ct]))
    A.stamp()
    A("v_add_u32 v10, s41, v1")
    A("s_lshl_b32 s43, s35, 12")
    A("v_add_u32 v11, s43, v1")
    A("v_mul_u32_u24 v12, 896, v8")
    A("v_lshl_add_u32 v12, v7, 4, v12")
    A("s_lshr_b32 s44, s35, 1")
    A("s_and_b32 s45, s35, 1")
    A("s_lshl_b32 s46, s32, 1")
    A("s_add_u32 s46, s46, s44")
    A("s_mul_i32 s46, s46, 28672")
    A("s_lshl_b32 s47, s33, 7")
    A("s_add_u32 s46, s46, s47")
    A("s_lshl_b32 s45, s45, 6")
    A("s_add_u32 s46, s46, s45")
    A("s_nop 7")
    for tile in range(4):
        for r4 in range(4):
            A(f"ds_write_b128 v10, {vr(ACC[tile]+4*r4,4)} offset:{tile*4096+r4*1024}")
    A("s_waitcnt lgkmcnt(0)")
    A.stamp()
    A("s_barrier")
    A.stamp()
    for w in range(4):
        for r4 in range(4):
            off = w * 28672 + r4 * 1024
            if off < 65536:
                A(f"ds_read_b128 {vr(AB+16*w+4*r4,4)}, v11 offset:{off}")
            else:
                if r4 == 0:
                    A("v_add_u32 v13, 65536, v11")
                A(f"ds_read_b128 {vr(AB+16*w+4*r4,4)}, v13 offset:{off-65536}")
    A("s_waitcnt lgkmcnt(8)")
    for r in range(16):
        A(f"v_add_f32 v{AB+r}, v{AB+r}, v{AB+16+r}")
    A("s_waitcnt lgkmcnt(0)")
    for r in range(16):
        A(f"v_add_f32 v{AB+32+r}, v{AB+32+r}, v{AB+48+r}")
    for r in range(16):
        A(f"v_add_f32 v{AB+r}, v{AB+r}, v{AB+32+r}")
    for i in range(8):
        A(f"v_cvt_pk_bf16_f32 v{16+i}, v{AB+2*i}, v{AB+2*i+1}")
    A("s_nop 1")
    A("v_permlane32_swap_b32 v16, v18")
    A("v_permlane32_swap_b32 v17, v19")
    A("v_permlane32_swap_b32 v20, v22")
    A("v_permlane32_swap_b32 v21, v23")
    A("s_nop 1")
    A("buffer_store_dwordx4 v[16:19], v12, s[16:19], s46 offen")
    A("buffer_store_dwordx4 v[20:23], v12, s[16:19], s46 offen offset:32")
    A.stamp()
    A.stamp_flush(1, 35, 4)
    A("L_k3_end:")
    A("s_endpgm")
    return A.text(), 208, 56


HEADER = """; Kernarg layout for this problem (80 bytes, ptrs only, base s[0:1]):
"""


def main(outpath):
    name = NAME + "_kernel"
    body, nv, ns = gen_ka()
    out = HEADER
    out += "; @launch grid=(256,1,1) block=(512,1,1) lds=163840\n"
    out += '.amdgcn_target "amdgcn-amd-amdhsa--gfx950"\n.text\n'
    out += f".globl {name}\n.p2align 8\n.type {name},@function\n{name}:\n{body}"
    out += '.section .rodata,"a"\n'
    out += f""".p2align 6
.amdhsa_kernel {name}
  .amdhsa_next_free_vgpr {nv}
  .amdhsa_next_free_sgpr {102 if (STAMP or opt('dbgtime', 0)) else ns}
  .amdhsa_accum_offset {(nv+3)//4*4}
  .amdhsa_group_segment_fixed_size 0
  .amdhsa_kernarg_size 80
  .amdhsa_user_sgpr_count 2
  .amdhsa_user_sgpr_kernarg_segment_ptr 1
  .amdhsa_system_sgpr_workgroup_id_x 1
.end_amdhsa_kernel
"""
    open(outpath, "w").write(out)


if __name__ == "__main__":
    main(sys.argv[1] if len(sys.argv) > 1 else f"cdna_kernels/{NAME}.s")
```

```python
import struct, math, sys, os

NAME = "gated_mix__softmax_full_mha__softmax_full_mha__prompt"

KVF_OFF = 0
OF_OFF = 8 << 20
WI_OFF = 13 << 20
FL_OFF = 12 << 20
WS_USED = 24 << 20
STAMP_OFF = 20 << 20
STAMP = bool(os.environ.get("STAMP"))
OPT = dict(kv.split("=") for kv in os.environ.get("OPT", "").split(",") if kv)


def opt(name, default):
    return type(default)(OPT.get(name, default))


def f32bits(x):
    return struct.unpack("<I", struct.pack("<f", x))[0]


LOG2E = math.log2(math.e)
QSCALE = (28 ** -0.5) * LOG2E


class Asm:
    def __init__(self):
        self.lines = []
        self.nst = 0

    def __call__(self, s):
        for ln in s.strip("\n").split("\n"):
            self.lines.append("    " + ln.strip() if not ln.strip().endswith(":") else ln.strip())

    def text(self):
        return "\n".join(self.lines) + "\n"

    def stamp(self):
        if not STAMP:
            return
        k = self.nst
        self.nst += 1
        assert k < 14
        if k == 0:
            self("s_memrealtime s[96:97]")
        self(f"{'s_memrealtime' if os.environ.get('RT') else 's_memtime'} s[{68+2*k}:{69+2*k}]")
        self("s_waitcnt lgkmcnt(0)")

    def stamp_flush(self, kidx, wave_sgpr, nwaves, srd="s[24:27]"):
        if not STAMP:
            return
        self("s_waitcnt vmcnt(0)")
        self(f"{'s_memrealtime' if os.environ.get('RT') else 's_memtime'} s[98:99]")
        self("s_memrealtime s[100:101]")
        self("s_waitcnt lgkmcnt(0)")
        self("s_mov_b64 exec, 1")
        self(f"s_mul_i32 s67, s2, {nwaves}")
        self(f"s_add_u32 s67, s67, s{wave_sgpr}")
        self("s_lshl_b32 s67, s67, 7")
        self(f"s_add_u32 s67, s67, {STAMP_OFF + kidx*(1<<20)}")
        self("v_mov_b32 v0, 0")
        regs = [96, 100, 98] + [68 + 2 * k for k in range(self.nst)]
        for i, r in enumerate(regs):
            self(f"v_mov_b32 v1, s{r}")
            self(f"buffer_store_dword v1, v0, {srd}, s67 offen offset:{4*i}")
            self("s_nop 1")


def vr(a, n):
    return f"v[{a}:{a+n-1}]"


def srd(A, d, base, nbytes):
    A(f"s_mov_b32 s{d}, s{base}")
    A(f"s_mov_b32 s{d+1}, s{base+1}")
    A(f"s_mov_b32 s{d+2}, {nbytes}")
    A(f"s_mov_b32 s{d+3}, 0x00020000")


def mfma(d, a, b, c):
    cs = vr(c, 16) if c is not None else "0"
    return f"v_mfma_f32_32x32x16_bf16 {vr(d,16)}, {vr(a,4)}, {vr(b,4)}, {cs}"


def smfmac(d, a, b, idx):
    return f"v_smfmac_f32_32x32x32_bf16 {vr(d,16)}, {vr(a,4)}, {vr(b,8)}, v{idx}"


S_BH, S_TB, S_H, S_W, S_TT, S_ROT = 32, 33, 34, 35, 36, 37
S_WOFF, S_XOFF, S_T0, S_T1, S_T2 = 38, 39, 40, 41, 42
S_KH, S_QP, S_JB, S_FLAGS, S_GS, S_GO = 43, 44, 45, 46, 47, 48
S_LW, S_T3, S_T4 = 49, 50, 51
S_NEXT = 60
S_SPIN = 61
S_REM = 62
S_FL = 3
S_POLL = 65
S_A = 66

KVR = 98304
QIMG = 131072
CNT_ADDR = 159744
MX_ADDR = CNT_ADDR + 1024
REGOK_OFF = 68
FO_OFF = (12 << 20) + 65536
S_CB, S_QC, S_KQ = 8, 9, 10
FLAGW = CNT_ADDR + 64
WRDY = CNT_ADDR + 68
SNAPL = CNT_ADDR + 128
SLOT_OF_BLOCK = [0, 2, 3, 1, 0, 2, 3, 1]
VSNAP = 224


def gen_ka():
    A = Asm()
    A("s_cmp_ge_u32 s2, 256")
    A("s_cbranch_scc1 L_ka_end")
    A.stamp()
    if opt("delay", 0):
        A("s_mul_i32 s4, s2, 0x9e37")
        A("s_lshr_b32 s4, s4, 5")
        A(f"s_and_b32 s4, s4, {opt('delay', 0)}")
        A("s_lshl_b32 s4, s4, 2")
        A("L_ka_dly:")
        A("s_cmp_eq_u32 s4, 0")
        A("s_cbranch_scc1 L_ka_dly2")
        A("s_sleep 127")
        A("s_sub_u32 s4, s4, 1")
        A("s_branch L_ka_dly")
        A("L_ka_dly2:")
    DT = opt("dbgtime", 0)
    if DT:
        A("s_memrealtime s[70:71]")
    A("s_load_dwordx4 s[4:7], s[0:1], 0")
    A("s_load_dwordx2 s[8:9], s[0:1], 32")
    A("s_load_dwordx2 s[10:11], s[0:1], 48")
    A("s_load_dwordx4 s[28:31], s[0:1], 64")
    if opt("cpf", 0):
        A("s_getpc_b64 s[12:13]")
        A("L_ka_pc:")
        A("v_lshlrev_b32 v245, 6, v0")
        A("v_min_u32 v245, L_ka_last-L_ka_pc-4, v245")
        A("global_load_dword v246, v245, s[12:13]")
    A("v_lshrrev_b32 v1, 6, v0")
    A("v_and_b32 v2, 63, v0")
    A(f"v_readfirstlane_b32 s{S_W}, v1")
    A(f"s_and_b32 s{S_T0}, s2, 7")
    A(f"s_lshr_b32 s{S_T1}, s2, 3")
    MAP = opt("map", 0)
    if MAP == 0:
        A(f"s_and_b32 s{S_A}, s{S_T1}, 3")
        A(f"s_lshl_b32 s{S_BH}, s{S_T0}, 2")
        A(f"s_add_u32 s{S_BH}, s{S_BH}, s{S_A}")
        A(f"s_lshr_b32 s{S_TB}, s{S_T1}, 2")
    elif MAP == 1:
        A(f"s_and_b32 s{S_A}, s{S_T1}, 7")
        A(f"s_lshr_b32 s{S_BH}, s{S_T0}, 1")
        A(f"s_lshl_b32 s{S_BH}, s{S_BH}, 3")
        A(f"s_add_u32 s{S_BH}, s{S_BH}, s{S_A}")
        A(f"s_and_b32 s{S_TB}, s{S_T0}, 1")
        A(f"s_lshl_b32 s{S_TB}, s{S_TB}, 2")
        A(f"s_lshr_b32 s{S_T1}, s{S_T1}, 3")
        A(f"s_add_u32 s{S_TB}, s{S_TB}, s{S_T1}")
    else:
        A(f"s_and_b32 s{S_A}, s{S_T1}, 15")
        A(f"s_lshr_b32 s{S_BH}, s{S_T0}, 2")
        A(f"s_lshl_b32 s{S_BH}, s{S_BH}, 4")
        A(f"s_add_u32 s{S_BH}, s{S_BH}, s{S_A}")
        A(f"s_and_b32 s{S_TB}, s{S_T0}, 3")
        A(f"s_lshl_b32 s{S_TB}, s{S_TB}, 1")
        A(f"s_lshr_b32 s{S_T1}, s{S_T1}, 4")
        A(f"s_add_u32 s{S_TB}, s{S_TB}, s{S_T1}")
    A(f"s_and_b32 s{S_H}, s{S_BH}, 15")
    rm = opt("rot", 3)
    if rm == 3:
        A(f"s_add_u32 s{S_ROT}, s{S_TB}, s{S_T0}")
        A(f"s_cmp_ge_u32 s{S_ROT}, 7")
        A(f"s_cselect_b32 s{S_T1}, 7, 0")
        A(f"s_sub_u32 s{S_ROT}, s{S_ROT}, s{S_T1}")
    elif rm == 5:
        A(f"s_and_b32 s{S_ROT}, s{S_BH}, 3")
        A(f"s_and_b32 s{S_T1}, s{S_TB}, 3")
        A(f"s_lshl_b32 s{S_T1}, s{S_T1}, 1")
        A(f"s_add_u32 s{S_ROT}, s{S_ROT}, s{S_T1}")
        A(f"s_lshr_b32 s{S_T1}, s{S_T0}, 1")
        A(f"s_add_u32 s{S_ROT}, s{S_ROT}, s{S_T1}")
    elif rm == 0:
        A(f"s_lshl_b32 s{S_ROT}, s{S_A}, 1")
        A(f"s_add_u32 s{S_ROT}, s{S_ROT}, s{S_T0}")
    elif rm == 1:
        A(f"s_mov_b32 s{S_ROT}, s{S_T0}")
    elif rm == 2:
        A(f"s_and_b32 s{S_ROT}, s{S_A}, 1")
        A(f"s_mul_i32 s{S_ROT}, s{S_ROT}, 3")
        A(f"s_add_u32 s{S_ROT}, s{S_ROT}, s{S_T0}")
    A(f"s_cmp_ge_u32 s{S_ROT}, 7")
    A(f"s_cselect_b32 s{S_T1}, 7, 0")
    A(f"s_sub_u32 s{S_ROT}, s{S_ROT}, s{S_T1}")
    A("v_lshlrev_b32 v1, 4, v2")
    A("v_and_b32 v3, 31, v2")
    A("v_lshrrev_b32 v4, 5, v2")
    A("v_lshrrev_b32 v5, 2, v3")
    A("v_and_b32 v6, 3, v2")
    A("v_mul_u32_u24 v7, 2688, v5")
    A("v_lshl_add_u32 v7, v6, 4, v7")
    A("v_mov_b32 v8, v7")
    A("v_mul_u32_u24 v9, 896, v4")
    A("v_add3_u32 v7, v7, v9, v9" if False else "v_add_u32 v7, v7, v9")
    A("v_add_u32 v7, 896, v7")
    A("v_lshrrev_b32 v5, 3, v2")
    A("v_mul_u32_u24 v9, 896, v5")
    A("v_and_b32 v5, 7, v2")
    A("v_lshrrev_b32 v11, 4, v2")
    A("v_xor_b32 v5, v5, v11")
    A("v_xor_b32 v11, 4, v5")
    A("v_lshl_add_u32 v10, v11, 4, v9")
    A("v_lshl_add_u32 v9, v5, 4, v9")
    A("v_lshlrev_b32 v225, 2, v3")
    A(f"s_lshl_b32 s{S_LW}, s{S_W}, 12")
    A(f"s_lshl_b32 s{S_TT}, s{S_TB}, 3")
    A(f"s_add_u32 s{S_TT}, s{S_TT}, s{S_W}")
    A(f"s_mul_i32 s{S_XOFF}, s{S_TT}, 28672")
    A(f"s_add_u32 s{S_T4}, s{S_XOFF}, 896")
    A(f"s_lshl_b32 s{S_T1}, s{S_ROT}, 7")
    A(f"s_add_u32 s{S_XOFF}, s{S_XOFF}, s{S_T1}")
    A(f"s_lshl_b32 s{S_FL}, s{S_BH}, 7")
    A(f"s_add_u32 s{S_FL}, s{S_FL}, {FL_OFF}")
    A(f"s_mov_b32 s{S_POLL}, 0")
    A(f"s_mul_i32 s{S_T0}, s{S_H}, 56")
    A(f"s_mul_i32 s{S_WOFF}, s{S_W}, 21504")
    A(f"s_add_u32 s{S_WOFF}, s{S_WOFF}, s{S_T0}")
    A(f"s_add_u32 s{S_T3}, s{S_WOFF}, {7*172032}")
    A(f"s_mul_i32 s{S_T1}, s{S_ROT}, 172032")
    A(f"s_add_u32 s{S_WOFF}, s{S_WOFF}, s{S_T1}")
    A(f"s_lshl_b32 s{S_T2}, s{S_W}, 9")
    A(f"s_cmp_ge_u32 s{S_BH}, 16")
    A("s_waitcnt lgkmcnt(0)")
    A("s_cselect_b32 s6, s8, s6")
    A("s_cselect_b32 s7, s9, s7")
    A.stamp()
    srd(A, 12, 4, 1835008)
    srd(A, 16, 6, 1204224)
    srd(A, 24, 30, WS_USED)

    XB = 88
    AK, AV, AQ = 16, 32, 48
    WF = [64, 76]

    def dma_x(c):
        for i in range(4):
            A(f"s_add_u32 m0, s{S_LW}, {(c%3)*32768 + i*1024}")
            if i == 0:
                A("s_nop 0")
                A(f"buffer_load_dwordx4 v9, s[12:15], s{S_XOFF} offen lds")
            else:
                A(f"s_add_u32 s{S_T1}, s{S_XOFF}, {i*7168}")
                A(f"buffer_load_dwordx4 v{9 + (i&1)}, s[12:15], s{S_T1} offen lds")
        A(f"s_add_u32 s{S_XOFF}, s{S_XOFF}, 128")
        A(f"s_cmp_ge_u32 s{S_XOFF}, s{S_T4}")
        A(f"s_cselect_b32 s{S_T1}, 896, 0")
        A(f"s_sub_u32 s{S_XOFF}, s{S_XOFF}, s{S_T1}")

    def dma_x_piece(c, i):
        A(f"s_add_u32 m0, s{S_LW}, {(c%3)*32768 + i*1024}")
        if i == 0:
            A("s_nop 0")
            A(f"buffer_load_dwordx4 v9, s[12:15], s{S_XOFF} offen lds")
        else:
            A(f"s_add_u32 s{S_T1}, s{S_XOFF}, {i*7168}")
            A(f"buffer_load_dwordx4 v{9 + (i&1)}, s[12:15], s{S_T1} offen lds")
        if i == 3:
            A(f"s_add_u32 s{S_XOFF}, s{S_XOFF}, 128")
            A(f"s_cmp_ge_u32 s{S_XOFF}, s{S_T4}")
            A(f"s_cselect_b32 s{S_T1}, 896, 0")
            A(f"s_sub_u32 s{S_XOFF}, s{S_XOFF}, s{S_T1}")

    def read_x(c):
        for u in range(4):
            if c % 3 < 2:
                A(f"ds_read_b128 {vr(XB+16*c+4*u,4)}, v{200+u} offset:{(c%3)*32768}")
            else:
                A(f"ds_read_b128 {vr(XB+16*c+4*u,4)}, v{241+u} offset:32768")

    def hx(c, vm):
        A(f"s_waitcnt vmcnt({vm})")
        read_x(c)
        if c + 2 < 7:
            A("s_waitcnt lgkmcnt(0)")
            dma_x(c + 2)

    def late_setup():
        srd(A, 56, 28, 256)
        A(f"s_lshl_b32 s{S_T1}, s{S_BH}, 18")
        A(f"s_add_u32 s20, s30, s{S_T1}")
        A("s_addc_u32 s21, s31, 0")
        A("s_mov_b32 s22, 262144")
        A("s_mov_b32 s23, 0x00020000")
        A(f"s_lshl_b32 s63, s{S_BH}, 3")
        A("v_bfe_u32 v5, v3, 1, 3")
        A("v_lshlrev_b32 v11, 2, v4")
        A("v_xor_b32 v5, v5, v11")
        A("v_lshlrev_b32 v11, 7, v3")
        A(f"v_add_u32 v11, s{S_LW}, v11")
        for u in range(4):
            A(f"v_xor_b32 v12, {u}, v5")
            A(f"v_lshl_add_u32 v{200+u}, v12, 4, v11")
        for u in range(4):
            A(f"v_add_u32 v{241+u}, 32768, v{200+u}")
        A("v_bfe_u32 v15, v2, 2, 2")
        A("v_lshlrev_b32 v14, 6, v15")
        A("v_bfe_u32 v15, v2, 4, 1")
        A("v_lshl_add_u32 v14, v15, 5, v14")
        A("v_lshl_add_u32 v14, v6, 3, v14")
        A("v_lshl_add_u32 v15, v4, 11, v14")
        A(f"v_add_u32 v15, {QIMG}, v15")
        A("v_lshl_add_u32 v14, v4, 12, v14")
        A(f"v_add_u32 v14, {KVR}, v14")
        A(f"s_lshr_b32 s{S_KH}, s{S_W}, 2")
        A(f"s_and_b32 s{S_QP}, s{S_W}, 3")
        A(f"s_cmp_ge_u32 s{S_BH}, 16")
        A(f"s_cselect_b32 s{S_GS}, -1.0, 1.0")
        A(f"s_cselect_b32 s{S_GO}, 1.0, 0")
        for r in range(16, 64):
            A(f"v_mov_b32 v{r}, 0")
        A("v_mov_b32 v207, 0")
        A(f"v_mov_b32 v5, {CNT_ADDR}")
        A("ds_write_b32 v5, v207")
        A("ds_write_b32 v5, v207 offset:64")
        srd(A, 52, 10, 896)
        A("v_lshrrev_b32 v12, 3, v2")
        A("v_min_u32 v12, 6, v12")
        A("v_and_b32 v204, 7, v2")
        A("v_lshlrev_b32 v13, 12, v12")
        A("v_lshl_add_u32 v13, v204, 6, v13")
        A(f"s_add_u32 s{S_T1}, s{S_T2}, {QIMG + 56}")
        A(f"v_add_u32 v13, s{S_T1}, v13")
        A(f"v_add_u32 v12, s{S_ROT}, v12")
        A("v_subrev_u32 v11, 7, v12")
        A("v_min_u32 v12, v12, v11")
        A("v_lshl_add_u32 v12, v12, 6, v204")
        A(f"s_lshl_b32 s{S_T1}, s{S_W}, 3")
        A(f"v_add_u32 v12, s{S_T1}, v12")
        A("v_lshlrev_b32 v12, 1, v12")
        A("buffer_load_ushort v206, v12, s[52:55], 0 offen")
        A("ds_write_b32 v5, v207 offset:68")
        A(f"s_lshr_b32 s{S_CB}, s2, 5")
        A(f"s_min_u32 s{S_CB}, s{S_CB}, 6")
        A(f"s_and_b32 s{S_QP}, s2, 7")
        A(f"s_lshl_b32 s{S_QP}, s{S_QP}, 2")
        A(f"s_bfe_u32 s{S_T1}, s2, 0x20003")
        A(f"s_add_u32 s{S_QP}, s{S_QP}, s{S_T1}")
        A(f"s_lshl_b32 s{S_QC}, s{S_QP}, 1")
        A(f"s_and_b32 s{S_T1}, s{S_W}, 1")
        A(f"s_add_u32 s{S_QC}, s{S_QC}, s{S_T1}")
        A(f"s_lshr_b32 s{S_KQ}, s{S_W}, 1")
        A(f"s_lshl_b32 s{S_T1}, s{S_QP}, 8")
        A(f"v_lshl_add_u32 v239, v2, 2, s{S_T1}")
        A("ds_write_b64 v5, v[16:17] offset:80")
        A(f"s_mov_b32 s{S_T1}, s{S_TT}")
        A(f"s_lshl_b32 s64, s{S_T1}, 16")
        A(f"s_lshl_b32 s11, s{S_BH}, 11")
        A(f"s_add_u32 s64, s64, s11")
        A(f"s_add_u32 s64, s64, {OF_OFF}")
        A(f"s_lshl_b32 s{S_T1}, s{S_T1}, 7")
        A(f"s_lshl_b32 s11, s{S_BH}, 2")
        A(f"s_add_u32 s{S_T1}, s{S_T1}, s11")
        A(f"v_mov_b32 v234, s{S_T1}")
        A(f"s_mov_b32 s11, {FO_OFF}")
        A(f"s_cmp_lg_u32 s{S_W}, s{S_POLL}")
        A("s_cbranch_scc1 L_ka_nosnap3")
        A("buffer_load_dword v240, v239, s[24:27], s11 offen sc1")
        A("L_ka_nosnap3:")
        A("s_mov_b64 exec, 1")
        A("buffer_load_dword v233, v234, s[24:27], s11 offen sc1")
        if opt("pt", 0):
            A(f"s_cmp_lg_u32 s{S_W}, 2")
            A("s_cbranch_scc1 L_ka_nopt")
            A("s_load_dwordx2 s[4:5], s[0:1], 16")
            A("s_load_dwordx2 s[6:7], s[0:1], 40")
            A("s_load_dwordx2 s[60:61], s[0:1], 56")
            A("v_mov_b32 v228, 0")
            A(f"s_lshl_b32 s{S_T1}, s{S_TT}, 12")
            A(f"buffer_load_dword v229, v228, s[20:23], s{S_T1} offen sc1")
            A("buffer_load_dword v229, v228, s[24:27], s64 offen sc1")
            A(f"s_lshl_b32 s{S_T1}, s{S_QC}, 16")
            A(f"s_add_u32 s{S_T1}, s{S_T1}, {OF_OFF}")
            A(f"buffer_load_dword v229, v228, s[24:27], s{S_T1} offen sc1")
            A("buffer_load_dword v229, v228, s[56:59], 0 offen sc1")
            A("s_waitcnt lgkmcnt(0)")
            A("global_load_dword v229, v228, s[4:5]")
            A("global_load_dword v229, v228, s[6:7]")
            A("global_load_dword v229, v228, s[60:61]")
            A("L_ka_nopt:")
        A("s_mov_b64 exec, -1")

    def trreads(c, u, st, slices):
        base = "v14" if c < 4 else "v15"
        cc = c if c < 4 else c - 4
        n = 0
        for t in slices:
            for tp in range(2):
                off = (8 * cc + u) * 1536 + t * 512 + tp * 256
                A(f"ds_read_b64_tr_b16 {vr(WF[st]+4*t+2*tp,2)}, {base} offset:{off}")
                n += 1
        return n

    def mm(c, u, st, slices):
        xf = XB + 16 * c + 4 * u
        for t in slices:
            if t == 0:
                A(mfma(AQ, WF[st] + 0, xf, AQ))
            elif t == 1:
                A(mfma(AK, WF[st] + 4, xf, AK))
            else:
                A(mfma(AV, xf, WF[st] + 8, AV))

    def chunks_mfma(cs, slices=(1, 2)):
        steps = [(c, u) for c in cs for u in range(4)]
        trreads(*steps[0], 0, slices)
        for i, (c, u) in enumerate(steps):
            if i + 1 < len(steps):
                n = trreads(*steps[i + 1], (i + 1) % 2, slices)
                A(f"s_waitcnt lgkmcnt({n})")
            else:
                A("s_waitcnt lgkmcnt(0)")
            mm(c, u, i % 2, slices)

    def adv_w():
        A(f"s_add_u32 s{S_WOFF}, s{S_WOFF}, 172032")
        A(f"s_cmp_ge_u32 s{S_WOFF}, s{S_T3}")
        A(f"s_cselect_b32 s{S_T1}, {7*172032}, 0")
        A(f"s_sub_u32 s{S_WOFF}, s{S_WOFF}, s{S_T1}")

    q = []

    def dma_wkv(c):
        A(f"s_lshl_b32 s{S_T1}, s{S_T2}, 1")
        A(f"s_add_u32 m0, s{S_T1}, {KVR + (c%4)*8192}")
        A("s_nop 0" if not opt("exp_now", 0) else "s_mov_b64 exec, 1")
        A(f"buffer_load_dwordx4 v7, s[16:19], s{S_WOFF} offen lds")
        if opt("exp_now", 0):
            A("s_mov_b64 exec, -1")
        adv_w()
        q.append(("W", c))

    def dma_wq(c):
        A(f"s_add_u32 m0, s{S_T2}, {QIMG + c*4096}")
        A("s_mov_b32 exec_hi, 0")
        A(f"buffer_load_dwordx4 v8, s[16:19], s{S_WOFF} offen lds")
        A("s_mov_b32 exec_hi, -1")
        adv_w()
        q.append(("Q", c))

    def dma_xq(c):
        dma_x(c)
        q.extend([("X", c)] * 4)

    def younger(*tags):
        last = max(i for i, t in enumerate(q) if t in tags)
        return len(q) - 1 - last

    A(f"s_cmp_lg_u32 s{S_W}, s{S_POLL}")
    A("s_cbranch_scc1 L_ka_nosnap")
    A(f"buffer_load_dword v{VSNAP}, v225, s[24:27], s{S_FL} offen sc1")
    A("L_ka_nosnap:")
    WLA = opt("wla", 3)
    XD = 3
    WLA = XD
    IB = opt("ib", 2)
    XI = opt("xi", 3)
    for c in range(XI):
        dma_wkv(c)
        dma_xq(c)
        if IB == 1 and c < XI - 1:
            A("s_barrier")
        if IB == 2 and c == 0:
            late_setup()
            q.append(("G", 0))
            q.append(("G", 1))
            A("s_barrier")
        if IB == 3 and c == 0:
            A("s_barrier")
    if IB != 2:
        late_setup()
        q.append(("G", 0))
        q.append(("G", 1))
    A.stamp()
    IDX = 5
    QF = [64, 72]
    O = [16, 32]
    S = [112, 128, 144, 160]
    KF = [176, 184]
    VF = [192, 200, 208, 216]
    T = 48
    VB = 6
    GB = [12, 13]
    PK, PV = 208, 216
    lq = []

    def lwait(tag):
        last = max(i for i, t in enumerate(lq) if t == tag)
        A(f"s_waitcnt lgkmcnt({min(15, len(lq) - 1 - last)})")

    def kvread(i):
        c, u = divmod(i, 4)
        for t in (1, 2):
            for tp in range(2):
                A(f"ds_read_b64_tr_b16 {vr(64+8*(i%3)+4*(t-1)+2*tp,2)}, v14 offset:{(c%4)*8192 + u*1024 + (t-1)*512 + tp*256}")
                lq.append(("T", i))

    def rx(c):
        read_x(c)
        lq.extend([("X", c)] * 4)

    def arrive(c):
        tags = [("X", c), ("W", c)] + ([("Q", 3)] if c == 6 and QE else [])
        assert q.count(("X", c)) == 4 and q.count(("W", c)) == 1
        A(f"s_waitcnt vmcnt({younger(*tags)}) lgkmcnt(0)")
        lq.clear()
        if c == 6 and QE:
            A("s_mov_b32 exec_hi, 0")
            A("ds_write_b16 v13, v206")
            A("s_mov_b32 exec_hi, -1")
            A("s_waitcnt lgkmcnt(0)")
            lq.clear()
        A("s_barrier")
        rx(c)

    pend = []

    def xop(c, i):
        def f():
            dma_x_piece(c, i)
            q.append(("X", c))
        return f

    for c in range(XI, 7):
        e = -1 if c < 3 else (-1 if c == 3 else 4 * (c - 3))
        ew = -1 if c < 4 else 4 * (c - 3)
        pend.append((ew, (lambda cc: (lambda: dma_wkv(cc)))(c)))
        for i in range(4):
            pend.append((e, xop(c, i)))
    for j in range(7):
        pend.append((4 * opt("qat", 4), (lambda jj: (lambda: dma_wq(jj)))(j)))
    RATE = opt("rate", 2)

    def drain(step, n):
        while n > 0 and pend and pend[0][0] <= step:
            pend.pop(0)[1]()
            n -= 1

    QE = 0
    A(f"s_waitcnt vmcnt({younger(('X', 0), ('W', 0))})")
    A(f"s_cmp_lg_u32 s{S_W}, s{S_POLL}")
    A("s_cbranch_scc1 L_ka_nosnap2")
    A(f"v_add_u32 v11, {SNAPL}, v225")
    A(f"ds_write_b32 v11, v{VSNAP}")
    A("L_ka_nosnap2:")
    read_x(0)
    A("s_waitcnt lgkmcnt(0)")
    A.stamp()
    A("s_barrier")
    kvread(0)
    kvread(1)
    for i in range(28):
        c, u = divmod(i, 4)
        if u == 2 and c < 6:
            arrive(c + 1)
            if c == 3 and opt("st4", 0):
                A.stamp()
                lq.clear()
                lq.extend([("T", i)] * 1 + [("T", i + 1)] * 0)
        if i + 2 < 28:
            kvread(i + 2)
        if ("T", i) in lq:
            lwait(("T", i))
        xf = XB + 16 * c + 4 * u
        A(mfma(AK, 64 + 8 * (i % 3), xf, AK))
        A(mfma(AV, xf, 64 + 8 * (i % 3) + 4, AV))
        drain(i, RATE)
    assert not pend
    A("s_load_dwordx2 s[4:5], s[0:1], 16")
    A("s_load_dwordx2 s[6:7], s[0:1], 40")
    A("s_load_dwordx2 s[28:29], s[0:1], 56")
    A.stamp()

    def publish():
        A("s_waitcnt vmcnt(0)")
        A("v_mov_b32 v9, 1")
        A(f"s_lshl_b32 s{S_T2}, s{S_TB}, 2")
        A(f"v_mov_b32 v11, s{S_T2}")
        A("s_mov_b64 exec, 1")
        A("ds_add_rtn_u32 v10, v5, v9")
        A(f"v_add_u32 v12, {SNAPL}, v11")
        A("ds_read_b32 v9, v12")
        A("s_waitcnt lgkmcnt(0)")
        A(f"v_readfirstlane_b32 s{S_T1}, v10")
        A("v_add_u32 v9, 1, v9")
        A("s_nop 0")
        A(f"s_cmp_lg_u32 s{S_T1}, 7")
        A("s_cbranch_scc1 L_ka_nopub")
        A(f"buffer_store_dword v9, v11, s[24:27], s{S_FL} offen sc1")
        A("L_ka_nopub:")
        A("s_mov_b64 exec, -1")

    qsteps = [(c, u) for c in range(7) for u in range(4)]
    fill = {}
    fill[0] = ["v_and_b32 v6, 0x13, v3", "v_bfe_u32 v7, v3, 2, 1", "v_lshl_or_b32 v6, v7, 3, v6",
               "v_bfe_u32 v7, v3, 3, 1", "v_lshl_or_b32 v6, v7, 2, v6", "v_lshl_add_u32 v6, v4, 5, v6",
               "v_lshlrev_b32 v6, 4, v6", f"v_add_u32 v7, s{S_LW}, v6", f"v_add_u32 v8, s{S_LW}, v1",
               f"s_lshl_b32 s{S_T0}, s{S_TT}, 12"]
    ZP = opt("zp", 1)
    fill[1] = [f"v_mul_f32 v{AK+r}, 0x{f32bits(QSCALE):08x}, v{AK+r}" for r in range(16)] + \
              ["s_mov_b32 exec_lo, 0", f"v_mov_b32 v{AK+12}, 1.0"] + \
              ([f"v_mov_b32 v{AK+r}, 0" for r in (13, 14, 15)] if ZP else []) + ["s_mov_b32 exec_lo, -1"] + \
              [f"v_cvt_pk_bf16_f32 v{PK+i}, v{AK+2*i}, v{AK+2*i+1}" for i in range(8)] + \
              [f"buffer_store_dwordx4 {vr(PK,4)}, v6, s[20:23], s{S_T0} offen sc1",
               f"buffer_store_dwordx4 {vr(PK+4,4)}, v6, s[20:23], s{S_T0} offen offset:1024 sc1"]
    fill[2] = [f"v_cvt_pk_bf16_f32 v{PV+i}, v{AV+2*i}, v{AV+2*i+1}" for i in range(8)]
    fill[3] = ["s_mov_b32 exec_lo, 0x10000000", "s_mov_b32 exec_hi, 0x10000000"] + \
              [f"v_mov_b32 v{PV+i}, 0x3f803f80" for i in range(8)] + \
              ((["s_mov_b32 exec_lo, 0xe0000000", "s_mov_b32 exec_hi, 0xe0000000"] +
                [f"v_mov_b32 v{PV+i}, 0" for i in range(8)]) if ZP else []) + ["s_mov_b64 exec, -1"] + \
              [f"buffer_store_dwordx4 {vr(PV,4)}, v1, s[20:23], s{S_T0} offen offset:2048 sc1",
               f"buffer_store_dwordx4 {vr(PV+4,4)}, v1, s[20:23], s{S_T0} offen offset:3072 sc1"]
    fill[4] = [f"ds_write_b128 v7, {vr(PK,4)}", f"ds_write_b128 v7, {vr(PK+4,4)} offset:1024"]
    fill[5] = [f"ds_write_b128 v8, {vr(PV,4)} offset:2048", f"ds_write_b128 v8, {vr(PV+4,4)} offset:3072"]
    zl = [O[0] + r for r in range(16)] + [O[1] + r for r in range(16)]
    for k in range(8):
        fill[6 + k] = [f"v_mov_b32 v{r}, 0" for r in zl[4 * k:4 * k + 4]]
    fill[17] = ["v_lshrrev_b32 v236, 2, v2", "v_mul_u32_u24 v236, 896, v236", "v_and_b32 v237, 3, v2",
                "v_lshl_add_u32 v236, v237, 4, v236", "v_add_u32 v237, 64, v236"]
    fill[25] = [f"s_xor_b32 s{S_T3}, s{S_LW}, 16384", f"v_add_u32 v7, s{S_T3}, v1",
                f"s_lshl_b32 s{S_T3}, s{S_KH}, 14", f"v_add_u32 v10, s{S_T3}, v1", f"v_mov_b32 v{VB}, v10",
                f"v_mov_b32 v{IDX}, 0xdddd"] + (["v_mov_b32 v232, 0"] if STAMP else [])
    fill[26] = [f"v_mov_b32 v{VF[3]+r}, 0" for r in range(4, 8)] + \
               [f"s_mov_b32 s{S_FLAGS}, 0", f"s_mov_b32 s{S_NEXT}, 1", f"s_mov_b32 s{S_REM}, 0xff",
                f"s_bitset0_b32 s{S_REM}, s{S_TB}",
                f"s_mov_b32 s{S_T3}, 0x{f32bits(QSCALE):08x}", f"s_mov_b32 s{S_T4}, 0x{f32bits(-LOG2E):08x}"]
    PUB_AT = opt("pubat", 6)
    BAR_AT = opt("barat", 10)
    POLL_AT = opt("pollat", 27)
    BAR_AT = opt("barat", 20)
    QD = opt("qd", 4)

    def qread(i):
        c, u = qsteps[i]
        for tp in range(2):
            A(f"ds_read_b64_tr_b16 {vr(64+4*(i%6)+2*tp,2)}, v15 offset:{c*4096 + u*512 + tp*256}")

    A("s_nop 1")
    for k in (0, 2, 3, 1, 5, 4):
        for ins in fill.pop(k):
            A(ins)
    A("s_waitcnt vmcnt(4)")
    A("s_mov_b32 exec_hi, 0x00ffffff")
    A("ds_write_b16 v13, v206")
    A("s_mov_b32 exec_hi, -1")
    A("s_waitcnt lgkmcnt(0)")
    srd(A, 12, 4, 401408)
    srd(A, 16, 6, 401408)
    srd(A, 52, 28, 1835008)
    A("s_barrier")
    A.stamp()
    for i in range(QD):
        qread(i)
    for i, (c, u) in enumerate(qsteps):
        if i == PUB_AT:
            publish()
        if i == POLL_AT:
            A(f"s_cmp_lg_u32 s{S_W}, s{S_POLL}")
            A("s_cbranch_scc1 L_ka_nopoll")
            A(f"buffer_load_dword v227, v225, s[24:27], s{S_FL} offen sc1")
            A("L_ka_nopoll:")
        seg_end = len(qsteps) - 1
        if i + QD <= seg_end:
            qread(i + QD)
        A(f"s_waitcnt lgkmcnt({2*(min(seg_end, i+QD)-i)})")
        A(mfma(AQ, 64 + 4 * (i % 6), XB + 16 * c + 4 * u, AQ))
        for ins in fill.get(i, []):
            A(ins)
    A.stamp()

    def rtile(q_, I):
        A(f"ds_read_b128 {vr(KF[I%2],4)}, v{VB} offset:{q_*4096}")
        A(f"ds_read_b128 {vr(KF[I%2]+4,4)}, v{VB} offset:{q_*4096+1024}")
        A(f"ds_read_b128 {vr(VF[I%4],4)}, v{VB} offset:{q_*4096+2048}")
        A(f"ds_read_b128 {vr(VF[I%4]+4,4)}, v{VB} offset:{q_*4096+3072}")

    rtile(0, 0)
    rtile(1, 1)
    for r in range(8, 16):
        A(f"v_mov_b32 v{S[3]+r}, 0")
    A(f"v_mul_f32 v12, s{S_T4}, v{AQ+12}")
    A("v_exp_f32 v12, v12")
    for i in range(8):
        A(f"v_cvt_pk_bf16_f32 v{QF[1]+i}, v{AQ+2*i}, v{AQ+2*i+1}")
    A("s_mov_b32 exec_lo, 0")
    A(f"v_mov_b32 v{QF[1]+6}, 0")
    A(f"v_mov_b32 v{QF[1]+7}, 0")
    A("s_mov_b32 exec_lo, -1")
    A("s_waitcnt lgkmcnt(6)")
    A(mfma(S[1], KF[0], QF[1], None))
    A(mfma(S[1], KF[0] + 4, QF[1] + 4, S[1]))
    A(f"ds_write_b128 v8, {vr(QF[1],4)} offset:32768")
    A("v_add_f32 v12, 1.0, v12")
    A("v_rcp_f32 v12, v12")
    A(f"s_cmp_lg_u32 s{S_W}, s{S_POLL}")
    A("s_cbranch_scc1 L_ka_nofw")
    A("s_waitcnt vmcnt(0)")
    A(f"v_cmp_ne_u32 vcc, v227, v{VSNAP}")
    A(f"v_mov_b32 v11, {FLAGW}")
    A("s_nop 4")
    A(f"s_and_b32 s{S_FLAGS}, vcc_lo, 0xff")
    A(f"v_mov_b32 v9, s{S_FLAGS}")
    A("ds_write_b32 v11, v9")
    A("L_ka_nofw:")
    A(f"v_mul_f32 v12, s{S_GS}, v12")
    A(f"v_add_f32 v12, s{S_GO}, v12")
    A(f"v_mov_b32 v{GB[1]}, v12")
    A("s_nop 1")
    A(f"v_permlane32_swap_b32 v12, v{GB[1]}")
    A("s_nop 3")
    s0 = S[1]
    t = T
    A(f"v_max3_f32 v{t}, v{s0}, v{s0+1}, v{s0+2}")
    A(f"v_max3_f32 v{t+1}, v{s0+3}, v{s0+4}, v{s0+5}")
    A(f"v_max3_f32 v{t+2}, v{s0+6}, v{s0+7}, v{s0+8}")
    A(f"v_max3_f32 v{t+3}, v{s0+9}, v{s0+10}, v{s0+11}")
    A(f"v_max3_f32 v{t+4}, v{s0+12}, v{s0+13}, v{s0+14}")
    A(f"v_max3_f32 v{t}, v{t}, v{t+1}, v{s0+15}")
    A(f"v_max3_f32 v{t+2}, v{t+2}, v{t+3}, v{t+4}")
    A(f"v_max_f32 v{t}, v{t}, v{t+2}")
    A(f"v_mov_b32 v{t+1}, v{t}")
    A("s_nop 1")
    A(f"v_permlane32_swap_b32 v{t}, v{t+1}")
    A("s_nop 1")
    A(f"v_max_f32 v{t}, v{t}, v{t+1}")
    A(f"v_ashrrev_i32 v{t+1}, 31, v{t}")
    A(f"v_and_b32 v{t+1}, 0xffff, v{t+1}")
    A(f"v_add_u32 v{t}, v{t}, v{t+1}")
    A(f"v_lshrrev_b32 v{t}, 16, v{t}")
    A("s_mov_b32 exec_lo, 0")
    A(f"v_xor_b32 v{QF[1]+6}, 0x8000, v{t}")
    A("s_mov_b32 exec_lo, -1")
    A(f"ds_write_b128 v8, {vr(QF[1]+4,4)} offset:{32768+1024}")
    A("s_nop 0")
    A(mfma(S[1], KF[0], QF[1], None))
    A(mfma(S[1], KF[0] + 4, QF[1] + 4, S[1]))
    A("s_waitcnt lgkmcnt(0)")
    A("s_barrier")
    A.stamp()
    A(f"ds_read_b128 {vr(QF[0],4)}, v7 offset:{32768}")
    A(f"ds_read_b128 {vr(QF[0]+4,4)}, v7 offset:{32768+1024}")

    def dma_block():
        lbl = f"L_ka_fl{len(A.lines)}"
        A(f"s_and_b32 s{S_T0}, s{S_FLAGS}, s{S_REM}")
        A(f"s_cbranch_scc1 {lbl}_ok")
        A(f"s_mov_b32 s{S_SPIN}, 0")
        A(f"v_mov_b32 v8, {FLAGW}")
        A(f"{lbl}_spin:")
        A(f"s_cmp_lg_u32 s{S_W}, s{S_POLL}")
        A(f"s_cbranch_scc1 {lbl}_lds")
        A(f"buffer_load_dword v11, v225, s[24:27], s{S_FL} offen sc1")
        A("v_mov_b32 v9, 0")
        A(f"s_and_b32 s{S_T1}, s{S_SPIN}, 7")
        A(f"s_cmp_lg_u32 s{S_T1}, 7")
        A(f"s_cbranch_scc1 {lbl}_nodbg")
        A("buffer_load_dword v9, v9, s[56:59], s63 offen sc1")
        A(f"{lbl}_nodbg:")
        A("s_waitcnt vmcnt(0)")
        A(f"v_cmp_ne_u32 vcc, v11, v{VSNAP}")
        A("s_nop 4")
        A(f"s_or_b32 s{S_T1}, vcc_lo, s{S_FLAGS}")
        A(f"v_or_b32 v11, s{S_T1}, v9")
        A("v_and_b32 v11, 0xff, v11")
        A("ds_write_b32 v8, v11")
        A(f"s_add_u32 s{S_SPIN}, s{S_SPIN}, 16")
        A(f"s_branch {lbl}_chk")
        A(f"{lbl}_lds:")
        A("ds_read_b32 v11, v8")
        A("s_waitcnt lgkmcnt(0)")
        A(f"{lbl}_chk:")
        A(f"v_readfirstlane_b32 s{S_FLAGS}, v11")
        A(f"s_add_u32 s{S_SPIN}, s{S_SPIN}, 1")
        A(f"s_mov_b32 s{S_T0}, s{S_REM}")
        A(f"s_cmp_ge_u32 s{S_SPIN}, 0x1000000")
        A(f"s_cbranch_scc1 {lbl}_ok")
        A(f"s_and_b32 s{S_T0}, s{S_FLAGS}, s{S_REM}")
        A(f"s_cbranch_scc1 {lbl}_ok")
        A(f"s_sleep {opt('sleep', 1)}")
        A(f"s_branch {lbl}_spin")
        A(f"{lbl}_ok:")
        A(f"s_lshl_b32 s{S_T1}, s{S_T0}, 8")
        A(f"s_or_b32 s{S_T0}, s{S_T0}, s{S_T1}")
        A(f"s_lshr_b32 s{S_T0}, s{S_T0}, s{S_TB}")
        A(f"s_ff1_i32_b32 s{S_T0}, s{S_T0}")
        A(f"s_add_u32 s{S_T0}, s{S_T0}, s{S_TB}")
        A(f"s_and_b32 s{S_T0}, s{S_T0}, 7")
        A(f"s_bitset0_b32 s{S_REM}, s{S_T0}")
        A(f"s_lshl_b32 s{S_T0}, s{S_T0}, 15")
        A(f"s_add_u32 s{S_T0}, s{S_T0}, s{S_LW}")
        tab = sum(sl_ << (4 * j) for j, sl_ in enumerate(SLOT_OF_BLOCK))
        A(f"s_lshl_b32 s{S_T1}, s{S_NEXT}, 2")
        A(f"s_lshr_b32 s{S_T1}, 0x{tab:08x}, s{S_T1}")
        A(f"s_and_b32 s{S_T1}, s{S_T1}, 15")
        A(f"s_lshl_b32 s{S_T1}, s{S_T1}, 15")
        A(f"s_add_u32 m0, s{S_T1}, s{S_LW}")
        A(f"s_add_u32 s{S_NEXT}, s{S_NEXT}, 1")
        for i in range(4):
            A(f"buffer_load_dwordx4 v1, s[20:23], s{S_T0} offen offset:{i*1024} sc1 lds")

    dma_block()
    A("s_waitcnt lgkmcnt(0)")
    A(mfma(S[0], KF[0], QF[0], None))
    A(mfma(S[0], KF[0] + 4, QF[0] + 4, S[0]))
    D2 = opt("d2", 1)
    if not D2:
        dma_block()
    else:
        A("s_nop 7")
        A("s_nop 1")
    CN = [None, None]

    PRIO = opt("prio", 1)

    def unit(I, s, q=None, do_qk=True, first=False):
        u = 2 * I + s
        sc = S[u % 4]
        sp = S[(u - 1) % 4]
        sn = S[(u + 2) % 4]
        E = lambda r: A(f"v_exp_f32 v{sc+r}, v{sc+r}")
        if s == 0:
            A("s_waitcnt lgkmcnt(0)")
        E(0); E(1)
        if s == 0:
            A(smfmac(O[1], VF[(I - 1) % 4] + 4, sp + 8, IDX))
        else:
            A(smfmac(O[0], VF[I % 4] + 4, sp + 8, IDX))
        if s == 0 and q is not None:
            A(f"ds_read_b128 {vr(KF[I%2],4)}, v{VB} offset:{q*4096}")
            A(f"ds_read_b128 {vr(KF[I%2]+4,4)}, v{VB} offset:{q*4096+1024}")
        E(2); E(3); E(4); E(5)
        if do_qk:
            A(mfma(sn, KF[(I + 1) % 2], QF[s], CN[s]))
        if s == 0 and q is not None:
            A(f"ds_read_b128 {vr(VF[(I+2)%4],4)}, v{VB} offset:{q*4096+2048}")
            A(f"ds_read_b128 {vr(VF[(I+2)%4]+4,4)}, v{VB} offset:{q*4096+3072}")
        E(6); E(7); E(8); E(9)
        if do_qk:
            A(mfma(sn, KF[(I + 1) % 2] + 4, QF[s] + 4, sn))
        E(10); E(11); E(12); E(13)
        A(smfmac(O[s], VF[I % 4], sc, IDX))
        E(14); E(15)

    def iteration(I, q, do_qk=True, prio=None, mid=None, mid2=None):
        if opt("al", 2) >= 2:
            A(".p2align 3")
        if PRIO and prio is not None:
            A(f"s_setprio {prio}")
        unit(I, 0, q, do_qk)
        if mid:
            mid()
            if opt("al", 2) >= 2:
                A(".p2align 3")
        unit(I, 1, q, do_qk)

    tab = sum(sl_ << (4 * j) for j, sl_ in enumerate(SLOT_OF_BLOCK))

    def next_vb():
        A(f"s_lshl_b32 s{S_T1}, s{S_JB}, 2")
        A(f"s_lshr_b32 s{S_T1}, 0x{tab >> 4:08x}, s{S_T1}")
        A(f"s_and_b32 s{S_T1}, s{S_T1}, 15")
        A(f"s_lshl_b32 s{S_T1}, s{S_T1}, 15")
        A(f"v_add_u32 v{VB}, s{S_T1}, v10")
        A(f"s_add_u32 s{S_JB}, s{S_JB}, 1")
        if opt("al", 2):
            A("s_nop 0")

    WO_REGION = [131072, 0, 65536, 32768]

    def wo_stage(kq, warm=False):
        srdn = "s[12:15]" if kq < 2 else "s[16:19]"
        A(f"s_min_u32 s{S_T0}, s{S_W}, 6")
        A(f"s_mul_i32 s{S_T1}, s{S_T0}, {2*14336}")
        A(f"s_lshl_b32 s{S_T2}, s{S_CB}, 7")
        A(f"s_add_u32 s{S_T1}, s{S_T1}, s{S_T2}")
        if kq & 1:
            A(f"s_add_u32 s{S_T1}, s{S_T1}, 200704")
        A(f"s_lshl_b32 s{S_T0}, s{S_T0}, 11")
        for i in range(4):
            if i == 2:
                A(f"s_add_u32 s{S_T1}, s{S_T1}, 14336")
            if warm:
                if i % 2 == 0:
                    A(f"buffer_load_dwordx4 v[228:231], v236, {srdn}, s{S_T1} offen")
            else:
                A(f"s_add_u32 m0, s{S_T0}, {WO_REGION[kq] + (i & 1)*14336 + (i >> 1)*1024}")
                A("s_nop 0")
                A(f"buffer_load_dwordx4 v{236 + (i & 1)}, {srdn}, s{S_T1} offen lds")

    def side_call(kh):
        def f():
            A(f"s_cmp_eq_u32 s{S_KH}, {kh}")
            A("s_cbranch_scc1 L_ka_sidein")
            A(f"L_ka_ret{kh}:")
        return f

    def side_blocks():
        A("L_ka_sidein:")
        A(f"s_cmp_eq_u32 s{S_JB}, 5")
        A("s_cbranch_scc1 L_ka_x4")
        A("L_ka_x4r:")
        A(f"s_cmp_ge_u32 s{S_JB}, 6")
        A("s_cbranch_scc1 L_ka_nodma")
        dma_block()
        A("L_ka_nodma:")
        A(f"s_bitcmp1_b32 0x7e, s{S_JB}")
        A("s_cbranch_scc1 L_ka_side")
        A("L_ka_nodma2:")
        A(f"s_cmp_eq_u32 s{S_KH}, 0")
        A("s_cbranch_scc1 L_ka_ret0")
        A("s_branch L_ka_ret1")
        A("L_ka_x4:")
        A(f"s_cmp_lg_u32 s{S_W}, s{S_POLL}")
        A("s_cbranch_scc1 L_ka_x4r")
        A("v_lshlrev_b32 v235, 2, v2")
        A("buffer_load_dword v235, v235, s[56:59], 0 offen sc1")
        A("s_branch L_ka_x4r")
        A("L_ka_side:")
        for jb in (3, 4, 5, 6):
            A(f"s_cmp_eq_u32 s{S_JB}, {jb}")
            A(f"s_cbranch_scc1 L_ka_s{jb}")
        A(f"s_cmp_lg_u32 s{S_W}, 1")
        A("s_cbranch_scc1 L_ka_nodma2")
        A(f"s_and_b32 s{S_T1}, s{S_TB}, 1")
        A(f"s_add_u32 s{S_T1}, s{S_T1}, 1")
        A(f"s_cmp_lg_u32 s{S_T1}, s{S_JB}")
        A("s_cbranch_scc1 L_ka_nodma2")
        A(f"s_lshl_b32 s{S_T1}, 0x101, s{S_TB}")
        A(f"v_mov_b32 v9, s{S_T1}")
        A("v_mov_b32 v11, 0")
        A("s_mov_b64 exec, 1")
        A("buffer_atomic_or v9, v11, s[56:59], s63 offen sc1")
        A("s_mov_b64 exec, -1")
        A("s_branch L_ka_nodma2")
        A("L_ka_s3:")
        wo_stage(0)
        A("s_branch L_ka_nodma2")
        A("L_ka_s4:")
        wo_stage(3, warm=True)
        A("s_branch L_ka_nodma2")
        A("L_ka_s5:")
        wo_stage(1)
        A("s_branch L_ka_nodma2")
        A("L_ka_s6:")
        wo_stage(2)
        A(f"s_cmp_lg_u32 s{S_W}, s{S_POLL}")
        A("s_cbranch_scc1 L_ka_nodma2")
        A("v_bfe_u32 v235, v235, 8, 8")
        A("v_mov_b32 v9, 0xff")
        A("v_cmp_eq_u32 vcc, v235, v9")
        A(f"v_mov_b32 v9, {CNT_ADDR}")
        A("v_mov_b32 v11, 1")
        A("s_nop 3")
        A(f"s_and_b32 s{S_T0}, vcc_lo, vcc_hi")
        A(f"s_and_b32 s{S_T0}, s{S_T0}, 0x55555555")
        A(f"s_cmp_lg_u32 s{S_T0}, 0x55555555")
        A("s_cbranch_scc1 L_ka_nodma2")
        A(f"ds_write_b32 v9, v11 offset:{REGOK_OFF}")
        A("s_branch L_ka_nodma2")

    A.stamp()
    if DT:
        A("s_memrealtime s[72:73]")
        A("s_waitcnt lgkmcnt(0)")
    A(f"s_mov_b32 s{S_JB}, 0")
    iteration(0, 2, prio=1, mid=dma_block if D2 else None)
    iteration(1, 3, prio=0, mid=next_vb)
    A(".p2align 6")
    A("L_ka_loop:")
    LST = STAMP and opt("lst", 0)
    if LST:
        A("s_memtime s[94:95]")
        A(f"s_mov_b32 m0, s{S_JB}")
        A("s_waitcnt lgkmcnt(0)")
        A(f"v_writelane_b32 v232, s94, m0")
    A(f"s_cmp_ge_u32 s{S_JB}, 7")
    A("s_cbranch_scc1 L_ka_w0")
    A("s_waitcnt vmcnt(4)")
    A("s_barrier")
    A("L_ka_w1:")
    if LST:
        A("s_memtime s[94:95]")
        A(f"s_add_u32 m0, s{S_JB}, 16")
        A("s_waitcnt lgkmcnt(0)")
        A(f"v_writelane_b32 v232, s94, m0")
    p0, p1 = opt("p0", 0), opt("p1", 1)
    mids = [None, None, None]
    if p0 == p1:
        mids[p0] = lambda: (side_call(0)(), side_call(1)())
    else:
        mids[p0] = side_call(0)
        mids[p1] = side_call(1)
    iteration(2, 0, prio=3, mid=mids[0])
    iteration(3, 1, prio=2, mid=mids[1])
    iteration(4, 2, prio=1, mid=mids[2])
    iteration(5, 3, prio=0, mid=next_vb)
    A(f"s_cmp_lt_u32 s{S_JB}, 8")
    A("s_cbranch_scc1 L_ka_loop")

    def tail_addr():
        A(f"s_add_u32 s{S_T0}, s{S_LW}, 98304")
        A(f"v_add_u32 v8, s{S_T0}, v1")
        A(f"s_xor_b32 s{S_T0}, s{S_T0}, 16384")
        A(f"v_add_u32 v9, s{S_T0}, v1")
        A(f"s_mov_b32 s66, 0")

    iteration(30, None, True, prio=1, mid=tail_addr)
    iteration(31, None, False, prio=0)
    for r4 in range(4):
        A(f"ds_write_b128 v8, {vr(O[0]+4*r4,4)} offset:{r4*1024}")
    A(smfmac(O[1], VF[31 % 4] + 4, S[3] + 8, IDX))
    A.stamp()
    if DT:
        A("s_memrealtime s[74:75]")
        A("s_waitcnt lgkmcnt(0)")
    A("s_waitcnt lgkmcnt(0)")
    A("s_barrier")
    for r4 in (3, 0, 1, 2):
        A(f"ds_read_b128 {vr(O[0]+4*r4,4)}, v9 offset:{r4*1024}")
    A(f"v_mov_b32 v235, {CNT_ADDR}")
    A(f"ds_read_b32 v235, v235 offset:{REGOK_OFF}")
    A("s_nop 4")
    A("s_waitcnt lgkmcnt(4)")
    OK_, OO = O[1], O[0]
    F1 = T + 4
    A("L_ka_fin:")
    A(f"v_add_f32 v{T+3}, v{OK_+12}, v{OO+12}")
    A(f"v_mov_b32 v{T+4}, v{T+3}")
    A("s_nop 1")
    A(f"v_permlane32_swap_b32 v{T+3}, v{T+4}")
    A("s_nop 1")
    A(f"v_rcp_f32 v{T+4}, v{T+4}")
    A("s_waitcnt lgkmcnt(0)")
    R = S[1]
    for r in range(0, 8, 2):
        A(f"v_pk_add_f32 {vr(R+r,2)}, {vr(OK_+r,2)}, {vr(OO+r,2)}")
    A(f"v_mul_f32 v{F1}, v{T+4}, v{GB[1]}")
    for r in range(8, 16, 2):
        A(f"v_pk_add_f32 {vr(R+r,2)}, {vr(OK_+r,2)}, {vr(OO+r,2)}")
    for half in range(2):
        for r in range(8 * half, 8 * half + 8, 2):
            A(f"v_pk_mul_f32 {vr(R+r,2)}, {vr(R+r,2)}, {vr(F1,2)} op_sel_hi:[1,0]")
        for i in range(4 * half, 4 * half + 4):
            A(f"v_cvt_pk_bf16_f32 v{S[0]+i}, v{R+2*i}, v{R+2*i+1}")
        if half:
            A("s_mov_b32 exec_lo, 0")
            A(f"v_mov_b32 v{S[0]+6}, 0")
            A(f"v_mov_b32 v{S[0]+7}, 0")
            A("s_mov_b32 exec_lo, -1")
        A(f"buffer_store_dwordx4 {vr(S[0]+4*half,4)}, v1, s[24:27], s64 offen offset:{1024*half} sc1")
    A(f"v_maximum3_f32 v{T+3}, abs(v{R}), abs(v{R+1}), abs(v{R+2})")
    for r in range(3, 15, 2):
        A(f"v_maximum3_f32 v{T+3}, v{T+3}, abs(v{R+r}), abs(v{R+r+1})")
    A(f"v_maximum3_f32 v{T+3}, v{T+3}, abs(v{R+15}), abs(v{R+15})")
    A("s_mov_b32 s65, 0x7f000000")
    A(f"v_cmp_nlt_f32 vcc, v{T+3}, s65")
    A("s_cmp_lg_u32 s66, 0")
    A("s_cbranch_scc1 L_ka_st")
    A("s_nop 2")
    A("s_cmp_lg_u64 vcc, 0")
    A("s_cbranch_scc1 L_ka_slow")
    A("L_ka_st:")
    wo_stage(3)
    ACC = [16, 32]
    AB3 = 64
    WF3 = [136, 144]
    A(f"v_readfirstlane_b32 s{S_T0}, v235")
    A("v_add_u32 v238, 1, v233")
    A(f"s_lshl_b32 s{S_T1}, s{S_KQ}, 2")
    A(f"s_lshr_b32 s{S_T1}, 0x1204, s{S_T1}")
    A(f"s_and_b32 s{S_T1}, s{S_T1}, 15")
    A(f"s_lshl_b32 s{S_T1}, s{S_T1}, 15")
    A("v_bfe_u32 v9, v2, 2, 2")
    A("v_lshlrev_b32 v7, 6, v9")
    A("v_bfe_u32 v9, v2, 4, 1")
    A("v_lshl_add_u32 v7, v9, 5, v7")
    A("v_and_b32 v9, 3, v2")
    A("v_lshl_add_u32 v7, v9, 3, v7")
    A(f"v_add_u32 v7, s{S_T1}, v7")
    A("v_lshl_add_u32 v8, v4, 8, v7")
    for r in range(32):
        A(f"v_mov_b32 v{16+r}, 0")
    A(f"s_lshl_b32 s{S_T2}, s{S_QC}, 16")
    A(f"s_lshl_b32 s{S_T1}, s{S_KQ}, 14")
    A(f"s_add_u32 s{S_T2}, s{S_T2}, s{S_T1}")
    A(f"s_add_u32 s{S_T2}, s{S_T2}, {OF_OFF}")
    A(f"s_cmp_lg_u32 s{S_T0}, 0")
    A("s_cbranch_scc0 L_ka_regspin")
    A("L_ka_regok:")
    A("s_waitcnt vmcnt(4)")
    A.stamp()
    A("s_mov_b64 exec, 1")
    A("buffer_store_dword v238, v234, s[24:27], s11 offen sc1")
    A("s_mov_b64 exec, -1")
    A("s_cmp_ge_u32 s2, 224")
    A("s_cbranch_scc1 L_ka_done")
    A("s_waitcnt vmcnt(1)")
    A("s_barrier")
    A(f"s_mov_b32 s{S_SPIN}, 0")
    A(f"v_mov_b32 v10, {CNT_ADDR}")
    A(f"s_and_b32 s{S_T3}, s{S_W}, 1")
    A(f"s_lshl_b32 s{S_T3}, s{S_T3}, 5")
    A(f"s_lshl_b32 s{S_T4}, s{S_KQ}, 3")
    A(f"s_add_u32 s{S_T3}, s{S_T3}, s{S_T4}")
    A(f"s_cmp_lg_u32 s{S_W}, 0")
    A("s_cbranch_scc1 L_ka_p3lds")
    A("L_ka_p3spin:")
    A("buffer_load_dword v9, v239, s[24:27], s11 offen sc1")
    A("s_waitcnt vmcnt(0)")
    A("v_cmp_ne_u32 vcc, v9, v240")
    A(f"s_add_u32 s{S_SPIN}, s{S_SPIN}, 1")
    A("s_nop 3")
    A("v_mov_b32 v12, vcc_lo")
    A("v_mov_b32 v13, vcc_hi")
    A("ds_write_b64 v10, v[12:13] offset:80")
    A("s_cmp_eq_u64 vcc, -1")
    A("s_cbranch_scc1 L_ka_p3go")
    A(f"s_cmp_ge_u32 s{S_SPIN}, 0x100000")
    A("s_cbranch_scc1 L_ka_p3go")
    A(f"s_sleep {opt('sleep3', 4)}")
    A("s_branch L_ka_p3spin")
    A("L_ka_p3lds:")
    A("ds_read_b64 v[12:13], v10 offset:80")
    A("s_waitcnt lgkmcnt(0)")
    A("v_readfirstlane_b32 s4, v12")
    A("v_readfirstlane_b32 s5, v13")
    A(f"s_add_u32 s{S_SPIN}, s{S_SPIN}, 1")
    A("s_nop 1")
    A(f"s_lshr_b64 s[4:5], s[4:5], s{S_T3}")
    A("s_and_b32 s4, s4, 0xff")
    A("s_cmp_eq_u32 s4, 0xff")
    A("s_cbranch_scc1 L_ka_p3go")
    A(f"s_cmp_ge_u32 s{S_SPIN}, 0x1000000")
    A("s_cbranch_scc1 L_ka_p3go")
    A("s_sleep 1")
    A("s_branch L_ka_p3lds")
    A("L_ka_p3go:")
    A.stamp()
    for ks in range(16):
        if ks and ks % 4 == 0:
            A(f"s_add_u32 s{S_T2}, s{S_T2}, 4096")
        A(f"buffer_load_dwordx4 {vr(AB3+4*ks,4)}, v1, s[24:27], s{S_T2} offen offset:{(ks%4)*1024} sc1")

    def tr3(ks, st):
        for ct in range(2):
            for tp in range(2):
                hd, s_ = divmod(ks, 2)
                base = "v7" if (s_ == 1 and tp == 1) else "v8"
                A(f"ds_read_b64_tr_b16 {vr(WF3[st]+4*ct+2*tp,2)}, {base} offset:{ct*14336 + (28*hd + 16*s_ + 8*tp)*64}")

    tr3(0, 0)
    A(f"s_lshl_b32 s{S_T0}, s{S_W}, 13")
    A(f"s_and_b32 s{S_T1}, s{S_W}, 1")
    A(f"s_lshl_b32 s{S_T0}, s{S_T1}, 15")
    A(f"s_lshl_b32 s{S_T3}, s{S_KQ}, 13")
    A(f"s_add_u32 s{S_T3}, s{S_T3}, s{S_T0}")
    A(f"v_add_u32 v10, s{S_T3}, v1")
    A(f"s_and_b32 s{S_T3}, s{S_KQ}, 1")
    A(f"s_lshr_b32 s{S_T4}, s{S_KQ}, 1")
    A(f"s_lshl_b32 s{S_T1}, s{S_T3}, 12")
    A(f"s_add_u32 s{S_T0}, s{S_T0}, s{S_T1}")
    A(f"s_lshl_b32 s{S_T1}, s{S_T4}, 11")
    A(f"s_add_u32 s{S_T0}, s{S_T0}, s{S_T1}")
    A(f"v_add_u32 v11, s{S_T0}, v1")
    A("v_mul_u32_u24 v12, 896, v3")
    A("v_lshl_add_u32 v12, v4, 4, v12")
    A(f"s_mul_i32 s{S_T0}, s{S_QC}, 28672")
    A(f"s_lshl_b32 s{S_T1}, s{S_CB}, 7")
    A(f"s_add_u32 s{S_T0}, s{S_T0}, s{S_T1}")
    A(f"s_lshl_b32 s{S_T1}, s{S_T3}, 6")
    A(f"s_add_u32 s{S_T0}, s{S_T0}, s{S_T1}")
    A(f"s_lshl_b32 s{S_T1}, s{S_T4}, 5")
    A(f"s_add_u32 s{S_T0}, s{S_T0}, s{S_T1}")
    for ks in range(16):
        st = ks % 2
        if ks < 15:
            tr3(ks + 1, 1 - st)
            A(f"s_waitcnt vmcnt({15-ks}) lgkmcnt(4)")
        else:
            A("s_waitcnt vmcnt(0) lgkmcnt(0)")
        for ct in range(2):
            A(mfma(ACC[ct], WF3[st] + 4 * ct, AB3 + 4 * ks, ACC[ct]))
    A.stamp()
    A("s_barrier")
    A("s_nop 7")
    A("s_nop 3")
    for ct in range(2):
        for r4 in range(4):
            A(f"ds_write_b128 v10, {vr(ACC[ct]+4*r4,4)} offset:{ct*4096+r4*1024}")
    A("s_waitcnt lgkmcnt(0)")
    A("s_barrier")
    for k in range(4):
        for h2 in range(2):
            A(f"ds_read_b128 {vr(AB3+8*k+4*h2,4)}, v11 offset:{k*8192+h2*1024}")
    A("s_waitcnt lgkmcnt(4)")
    for r in range(8):
        A(f"v_add_f32 v{AB3+r}, v{AB3+r}, v{AB3+8+r}")
    A("s_waitcnt lgkmcnt(0)")
    for r in range(8):
        A(f"v_add_f32 v{AB3+16+r}, v{AB3+16+r}, v{AB3+24+r}")
    for r in range(8):
        A(f"v_add_f32 v{AB3+r}, v{AB3+r}, v{AB3+16+r}")
    for i in range(4):
        A(f"v_cvt_pk_bf16_f32 v{16+i}, v{AB3+2*i}, v{AB3+2*i+1}")
    A("s_nop 1")
    A("v_permlane32_swap_b32 v16, v18")
    A("v_permlane32_swap_b32 v17, v19")
    A("s_nop 1")
    A(f"buffer_store_dwordx4 v[16:19], v12, s[52:55], s{S_T0} offen {opt('outf', '').replace('+', ' ')}")
    A("L_ka_done:")
    if DT:
        A("s_waitcnt vmcnt(0)")
        A("s_memrealtime s[76:77]")
        A(f"s_cmp_lg_u32 s{S_W}, 0")
        A("s_waitcnt lgkmcnt(0)")
        A("s_cbranch_scc1 L_ka_end")
        A("s_mov_b64 exec, 1")
        A("v_mov_b32 v0, 0")
        A("s_not_b32 s78, s70")
        for off, sr in ((4, 76), (12, 78), (20, 72), (28, 74), (36, 70)):
            A(f"v_mov_b32 v1, s{sr}")
            A(f"buffer_atomic_umax v1, v0, s[56:59], 0 offen offset:{off} sc1")
            A("s_nop 1")
    if STAMP:
        A("s_mov_b64 exec, -1")
        A(f"s_mul_i32 s67, s2, 8")
        A(f"s_add_u32 s67, s67, s{S_W}")
        A("s_lshl_b32 s67, s67, 8")
        A(f"s_add_u32 s67, s67, {STAMP_OFF + 2*(1<<20)}")
        A("v_lshlrev_b32 v0, 2, v2")
        A("v_mov_b32 v1, s68")
        A("v_sub_u32 v232, v232, v1")
        A("buffer_store_dword v232, v0, s[24:27], s67 offen")
    A.stamp_flush(0, S_W, 8)
    A("L_ka_end:")
    A("s_endpgm")
    A("L_ka_w0:")
    A("s_waitcnt vmcnt(0)")
    A("s_barrier")
    A("s_branch L_ka_w1")
    side_blocks()
    A("L_ka_regspin:")
    A(f"s_mov_b32 s{S_SPIN}, 0")
    A("L_ka_regspin2:")
    A("v_lshlrev_b32 v235, 2, v2")
    A("buffer_load_dword v235, v235, s[56:59], 0 offen sc1")
    A("v_mov_b32 v9, 0xff")
    A("s_waitcnt vmcnt(0)")
    A("v_bfe_u32 v235, v235, 8, 8")
    A("v_cmp_eq_u32 vcc, v235, v9")
    A(f"s_add_u32 s{S_SPIN}, s{S_SPIN}, 1")
    A("s_nop 3")
    A(f"s_and_b32 s{S_T0}, vcc_lo, vcc_hi")
    A(f"s_and_b32 s{S_T0}, s{S_T0}, 0x55555555")
    A(f"s_cmp_eq_u32 s{S_T0}, 0x55555555")
    A("s_cbranch_scc1 L_ka_regok")
    A(f"s_cmp_ge_u32 s{S_SPIN}, 0x100000")
    A("s_cbranch_scc1 L_ka_regok")
    A("s_sleep 8")
    A("s_branch L_ka_regspin2")
    A("L_ka_slow:")
    M = T + 5
    s0 = S[0]
    A("s_waitcnt vmcnt(0) lgkmcnt(0)")
    for r in range(16):
        A(f"v_mov_b32 v{OK_+r}, 0")
        A(f"v_mov_b32 v{OO+r}, 0")
    A(f"v_mov_b32 v{M}, 0xff7fffff")
    A("L_ka_slow_loop:")
    A(f"buffer_load_dwordx4 {vr(KF[0],4)}, v1, s[20:23], s66 offen sc1")
    A(f"buffer_load_dwordx4 {vr(KF[0]+4,4)}, v1, s[20:23], s66 offen offset:1024 sc1")
    A(f"buffer_load_dwordx4 {vr(VF[0],4)}, v1, s[20:23], s66 offen offset:2048 sc1")
    A(f"buffer_load_dwordx4 {vr(VF[0]+4,4)}, v1, s[20:23], s66 offen offset:3072 sc1")
    A("s_waitcnt vmcnt(0)")
    A(mfma(s0, KF[0], QF[1], None))
    A(mfma(s0, KF[0] + 4, QF[1] + 4, s0))
    A("s_nop 15")
    A("s_nop 3")
    A(f"v_max3_f32 v{T}, v{s0}, v{s0+1}, v{s0+2}")
    for r in range(3, 15, 2):
        A(f"v_max3_f32 v{T}, v{T}, v{s0+r}, v{s0+r+1}")
    A(f"v_max_f32 v{T}, v{T}, v{s0+15}")
    A(f"v_mov_b32 v{T+1}, v{T}")
    A("s_nop 1")
    A(f"v_permlane32_swap_b32 v{T}, v{T+1}")
    A("s_nop 1")
    A(f"v_max3_f32 v{T}, v{T}, v{T+1}, v{M}")
    A(f"v_sub_f32 v{T+1}, v{M}, v{T}")
    A(f"v_exp_f32 v{T+1}, v{T+1}")
    A(f"v_mov_b32 v{M}, v{T}")
    for r in range(16):
        A(f"v_sub_f32 v{s0+r}, v{s0+r}, v{T}")
    for r in range(16):
        A(f"v_exp_f32 v{s0+r}, v{s0+r}")
    for r in range(16):
        A(f"v_mul_f32 v{OK_+r}, v{OK_+r}, v{T+1}")
    A("s_nop 3")
    A(smfmac(OK_, VF[0], s0, IDX))
    A(smfmac(OK_, VF[0] + 4, s0 + 8, IDX))
    A("s_nop 15")
    A("s_nop 3")
    A("s_add_u32 s66, s66, 4096")
    A("s_cmp_lt_u32 s66, 262144")
    A("s_cbranch_scc1 L_ka_slow_loop")
    A("s_branch L_ka_fin")
    A("L_ka_last:")
    return A.text(), 248, 68


def gen_kb():
    A = Asm()
    ACC = [16, 32, 48, 64]
    WF = [80, 88]
    AB = 96
    A("s_cmp_ge_u32 s2, 224")
    A("s_cbranch_scc1 L_k3_end")
    A.stamp()
    A("s_load_dwordx2 s[4:5], s[0:1], 16")
    A("s_load_dwordx2 s[6:7], s[0:1], 40")
    A("s_load_dwordx2 s[8:9], s[0:1], 56")
    A("s_load_dwordx2 s[28:29], s[0:1], 72")
    A("s_and_b32 s30, s2, 7")
    A("s_lshr_b32 s31, s2, 3")
    A("s_and_b32 s32, s31, 3")
    A("s_lshl_b32 s30, s30, 2")
    A("s_add_u32 s32, s32, s30")
    A("s_lshr_b32 s33, s31, 2")
    A("v_lshrrev_b32 v1, 6, v0")
    A("v_and_b32 v2, 63, v0")
    A("v_readfirstlane_b32 s35, v1")
    A("v_lshlrev_b32 v1, 4, v2")
    A("v_lshrrev_b32 v3, 2, v2")
    A("v_and_b32 v4, 3, v2")
    A("v_mul_u32_u24 v5, 896, v3")
    A("v_lshl_add_u32 v5, v4, 4, v5")
    A("v_add_u32 v6, 64, v5")
    A("v_lshrrev_b32 v7, 5, v2")
    A("v_and_b32 v8, 31, v2")
    A("s_mul_i32 s41, s35, 28672")
    A("v_lshlrev_b32 v9, 9, v7")
    A("v_bfe_u32 v10, v2, 2, 2")
    A("v_lshl_add_u32 v9, v10, 6, v9")
    A("v_bfe_u32 v10, v2, 4, 1")
    A("v_lshl_add_u32 v9, v10, 5, v9")
    A("v_lshl_add_u32 v9, v4, 3, v9")
    A("v_add_u32 v9, s41, v9")
    A("s_and_b32 s36, s35, 1")
    A("s_mul_i32 s36, s36, 200704")
    A("s_lshl_b32 s37, s33, 7")
    A("s_add_u32 s36, s36, s37")
    A("s_mul_i32 s38, s32, 114688")
    A("s_mul_i32 s39, s35, 14336")
    A("s_add_u32 s38, s38, s39")
    A(f"s_add_u32 s38, s38, {OF_OFF}")
    A("s_and_b32 s48, s32, 3")
    A("s_lshl_b32 s48, s48, 2")
    A("s_lshr_b32 s48, 0xa730, s48")
    A("s_and_b32 s48, s48, 15")
    A("s_lshl_b32 s49, s33, 1")
    A("s_add_u32 s48, s48, s49")
    A("s_cmp_ge_u32 s48, 14")
    A("s_cselect_b32 s49, 14, 0")
    A("s_sub_u32 s48, s48, s49")
    if not opt("rotb", 1):
        A("s_mov_b32 s48, 0")
    A("s_add_u32 s50, s38, 14336")
    A("s_mul_i32 s49, s48, 14336")
    A("s_add_u32 s36, s36, s49")
    A("s_lshl_b32 s49, s48, 10")
    A("s_add_u32 s38, s38, s49")
    A("s_add_u32 s39, s38, 57344")
    A("s_cmp_ge_u32 s35, 2")
    A("s_waitcnt lgkmcnt(0)")
    A("s_cselect_b32 s4, s6, s4")
    A("s_cselect_b32 s5, s7, s5")
    A.stamp()
    srd(A, 12, 4, 401408)
    srd(A, 16, 8, 1835008)
    srd(A, 24, 28, WS_USED)
    A("s_mov_b32 s42, s41")

    def loads(ks):
        A("s_mov_b32 m0, s42")
        A("s_add_u32 s42, s42, 1024")
        A("buffer_load_dwordx4 v5, s[12:15], s36 offen lds")
        A("s_mov_b32 m0, s42")
        A("s_add_u32 s42, s42, 1024")
        A("buffer_load_dwordx4 v6, s[12:15], s36 offen lds")
        A(f"buffer_load_dwordx4 {vr(AB+8*ks,4)}, v1, s[24:27], s38 offen")
        A(f"buffer_load_dwordx4 {vr(AB+8*ks+4,4)}, v1, s[24:27], s39 offen")
        if ks < 13:
            A("s_add_u32 s36, s36, 14336")
            A("s_add_u32 s38, s38, 1024")
            A("s_cmp_ge_u32 s38, s50")
            A("s_cselect_b32 s49, 14336, 0")
            A("s_cselect_b32 s51, 200704, 0")
            A("s_sub_u32 s38, s38, s49")
            A("s_sub_u32 s36, s36, s51")
            A("s_add_u32 s39, s38, 57344")

    D = opt("bd", 6)
    for ks in range(D):
        loads(ks)
    A.stamp()
    for r in range(16, 80):
        A(f"v_mov_b32 v{r}, 0")

    def trreads(ks, st):
        for ct in range(2):
            for tp in range(2):
                A(f"ds_read_b64_tr_b16 {vr(WF[st]+4*ct+2*tp,2)}, v9 offset:{(ks*2+ct)*1024+tp*256}")

    A(f"s_waitcnt vmcnt({4*(D-1)})")
    A.stamp()
    trreads(0, 0)
    for ks in range(14):
        st = ks % 2
        if ks + D < 14:
            loads(ks + D)
        if ks < 13:
            A(f"s_waitcnt vmcnt({4*(min(13, ks+D)-(ks+1))})")
            trreads(ks + 1, 1 - st)
            A("s_waitcnt lgkmcnt(4)")
        else:
            A("s_waitcnt lgkmcnt(0)")
        for ti in range(2):
            for ct in range(2):
                A(mfma(ACC[ti * 2 + ct], WF[st] + 4 * ct, AB + 8 * ks + 4 * ti, ACC[ti * 2 + ct]))
    A.stamp()
    A("v_add_u32 v10, s41, v1")
    A("s_lshl_b32 s43, s35, 12")
    A("v_add_u32 v11, s43, v1")
    A("v_mul_u32_u24 v12, 896, v8")
    A("v_lshl_add_u32 v12, v7, 4, v12")
    A("s_lshr_b32 s44, s35, 1")
    A("s_and_b32 s45, s35, 1")
    A("s_lshl_b32 s46, s32, 1")
    A("s_add_u32 s46, s46, s44")
    A("s_mul_i32 s46, s46, 28672")
    A("s_lshl_b32 s47, s33, 7")
    A("s_add_u32 s46, s46, s47")
    A("s_lshl_b32 s45, s45, 6")
    A("s_add_u32 s46, s46, s45")
    A("s_nop 7")
    for tile in range(4):
        for r4 in range(4):
            A(f"ds_write_b128 v10, {vr(ACC[tile]+4*r4,4)} offset:{tile*4096+r4*1024}")
    A("s_waitcnt lgkmcnt(0)")
    A.stamp()
    A("s_barrier")
    A.stamp()
    for w in range(4):
        for r4 in range(4):
            off = w * 28672 + r4 * 1024
            if off < 65536:
                A(f"ds_read_b128 {vr(AB+16*w+4*r4,4)}, v11 offset:{off}")
            else:
                if r4 == 0:
                    A("v_add_u32 v13, 65536, v11")
                A(f"ds_read_b128 {vr(AB+16*w+4*r4,4)}, v13 offset:{off-65536}")
    A("s_waitcnt lgkmcnt(8)")
    for r in range(16):
        A(f"v_add_f32 v{AB+r}, v{AB+r}, v{AB+16+r}")
    A("s_waitcnt lgkmcnt(0)")
    for r in range(16):
        A(f"v_add_f32 v{AB+32+r}, v{AB+32+r}, v{AB+48+r}")
    for r in range(16):
        A(f"v_add_f32 v{AB+r}, v{AB+r}, v{AB+32+r}")
    for i in range(8):
        A(f"v_cvt_pk_bf16_f32 v{16+i}, v{AB+2*i}, v{AB+2*i+1}")
    A("s_nop 1")
    A("v_permlane32_swap_b32 v16, v18")
    A("v_permlane32_swap_b32 v17, v19")
    A("v_permlane32_swap_b32 v20, v22")
    A("v_permlane32_swap_b32 v21, v23")
    A("s_nop 1")
    A("buffer_store_dwordx4 v[16:19], v12, s[16:19], s46 offen")
    A("buffer_store_dwordx4 v[20:23], v12, s[16:19], s46 offen offset:32")
    A.stamp()
    A.stamp_flush(1, 35, 4)
    A("L_k3_end:")
    A("s_endpgm")
    return A.text(), 208, 56


HEADER = """; Kernarg layout for this problem (80 bytes, ptrs only, base s[0:1]):
;
;           in place, O^T/l accumulated with the 2:4-sparse MFMA reading the high halves of the fp32 P registers (row sums
;  phase 3: gated, normalised head outputs are handed over through d_ws; 224 workgroups compute 64x64 output tiles.
;  Flags: a flag word counts as set when it differs from the value this launch found at entry; d_debug bits
;  (zero at entry) are the authoritative fallback, so correctness does not depend on start order or placement.
"""


def main(outpath):
    name = NAME + "_kernel"
    body, nv, ns = gen_ka()
    out = HEADER
    out += "; @launch grid=(256,1,1) block=(512,1,1) lds=163840\n"
    out += '.amdgcn_target "amdgcn-amd-amdhsa--gfx950"\n.text\n'
    out += f".globl {name}\n.p2align 8\n.type {name},@function\n{name}:\n{body}"
    out += '.section .rodata,"a"\n'
    out += f""".p2align 6
.amdhsa_kernel {name}
  .amdhsa_next_free_vgpr {nv}
  .amdhsa_next_free_sgpr {102 if (STAMP or opt('dbgtime', 0)) else ns}
  .amdhsa_accum_offset {(nv+3)//4*4}
  .amdhsa_group_segment_fixed_size 0
  .amdhsa_kernarg_size 80
  .amdhsa_user_sgpr_count 2
  .amdhsa_user_sgpr_kernarg_segment_ptr 1
  .amdhsa_system_sgpr_workgroup_id_x 1
.end_amdhsa_kernel
"""
    open(outpath, "w").write(out)


if __name__ == "__main__":
    main(sys.argv[1] if len(sys.argv) > 1 else f"cdna_kernels/{NAME}.s")
```
